```python
import torch

def _softmax(x, axis=-1):
    return torch.softmax(x, dim=axis)
def _gelu(x):
    return torch.nn.functional.gelu(x, approximate="tanh")
def _silu(x):
    return torch.nn.functional.silu(x)
def _sigmoid(x):
    return torch.sigmoid(x)
def _layernorm(x, axis=-1, eps=1e-5):
    m = x.mean(dim=axis, keepdim=True)
    v = x.var(dim=axis, keepdim=True, unbiased=False)
    return (x - m) / torch.sqrt(v + eps)
def _scatter_add(tgt, idx, src, axis=0):
    return tgt.clone().index_add_(axis, idx, src)
def _segment_sum(src, seg, n):
    out = torch.zeros((n,) + src.shape[1:], dtype=src.dtype)
    return out.index_add_(0, seg, src)
def _pad(x, pw):
    flat = tuple(v for pair in reversed(pw) for v in pair)
    return torch.nn.functional.pad(x, flat)

kernel_name = 'gated_mix__ssm_conv_s4__spectral_gfnet__prompt'

def setup_inputs():

    _w = (lambda a: (lambda t: t.to(torch.bfloat16) if t.is_floating_point() else t)(torch.as_tensor(a)))
    def _A_setup():
        B, L, D, N = 1, 2048, 448, 256
        A_re = -(lambda _x: torch.exp(torch.as_tensor(_x)))((lambda *s: torch.randn(*s, dtype=torch.bfloat16) * 3.2)(D, N))
        A_im = torch.pi * (lambda *s: torch.randn(*s, dtype=torch.bfloat16) * 0.05)(D, N)
        B_re = (lambda *s: torch.randn(*s, dtype=torch.bfloat16) * 0.1)(D, N)
        B_im = (lambda *s: torch.randn(*s, dtype=torch.bfloat16) * 0.1)(D, N)
        C_re = (lambda *s: torch.randn(*s, dtype=torch.bfloat16) * 0.1)(D, N)
        C_im = (lambda *s: torch.randn(*s, dtype=torch.bfloat16) * 0.1)(D, N)
        log_dt = (lambda *s: torch.randn(*s, dtype=torch.bfloat16) * 0.05)(D) * 0.5 - 4.0
        Dskip = (lambda *s: torch.randn(*s, dtype=torch.bfloat16) * 0.05)(D)
        return {
            "u": _w((lambda *s: torch.randn(*s, dtype=torch.bfloat16) * 0.05)(B, L, D)),
            "A_re": _w(A_re),
            "A_im": _w(A_im),
            "B_re": _w(B_re),
            "B_im": _w(B_im),
            "C_re": _w(C_re),
            "C_im": _w(C_im),
            "log_dt": _w(log_dt),
            "Dskip": _w(Dskip),
        }
    _A_in = _A_setup()

    def _B_setup():
        B, S, D = 1, 2048, 448
        Df = D // 2 + 1
        return {
            "x": _w((lambda *s: torch.randn(*s, dtype=torch.bfloat16) * 0.05)(B, S, D)),
            "w_r": _w((lambda *s: torch.randn(*s, dtype=torch.bfloat16) * 1.6)(S, Df) * 0.02),
            "w_i": _w((lambda *s: torch.randn(*s, dtype=torch.bfloat16) * 1.6)(S, Df) * 0.02),
        }
    _B_in = _B_setup()

    return {
        "A_u": _A_in["u"],
        "A_A_re": _A_in["A_re"],
        "A_A_im": _A_in["A_im"],
        "A_B_re": _A_in["B_re"],
        "A_B_im": _A_in["B_im"],
        "A_C_re": _A_in["C_re"],
        "A_C_im": _A_in["C_im"],
        "A_log_dt": _A_in["log_dt"],
        "A_Dskip": _A_in["Dskip"],
        "B_x": _B_in["x"],
        "B_w_r": _B_in["w_r"],
        "B_w_i": _B_in["w_i"],
        "gate_w": _w((lambda *s: torch.randn(*s, dtype=torch.bfloat16) * 0.05)(448) * 16.0),
    }

def reference(A_u, A_A_re, A_A_im, A_B_re, A_B_im, A_C_re, A_C_im, A_log_dt, A_Dskip, B_x, B_w_r, B_w_i, gate_w):
    def _A_ref(u, A_re, A_im, B_re, B_im, C_re, C_im, log_dt, Dskip):
        Bsz, L, D = u.shape
        dt = torch.exp(log_dt)[:, None]
        A = A_re + 1j * A_im
        Bc = B_re + 1j * B_im
        Cc = C_re + 1j * C_im
        logdA = dt * A
        dB = dt * Bc
        l = (lambda x, dt: x.to(dt))(torch.arange(L), A_re.dtype)
        P = torch.exp(logdA[:, :, None] * l[None, None, :])
        K = torch.einsum("dn,dnl,dn->dl", Cc, P, dB).real
        L2 = 2 * L
        Kp = _pad(K, ((0, 0), (0, L)))
        up = (lambda x, *d: x.permute(*d))(u, 0, 2, 1)
        up = _pad(up, ((0, 0), (0, 0), (0, L)))
        Kf = (lambda x, axes=(-2,-1): torch.fft.rfft2(x.float(), dim=axes))(Kp[:, None, :], axes=(-2, -1))
        Uf = (lambda x, axes=(-2,-1): torch.fft.rfft2(x.float(), dim=axes))(up[:, :, None, :], axes=(-2, -1))
        Yf = Uf * Kf[None, :, :, :]
        y = (lambda x, s, axes=(-2,-1): torch.fft.irfft2(x, s=s, dim=axes).to(torch.bfloat16))(Yf, (1, L2), axes=(-2, -1))[:, :, 0, :L]
        y = (lambda x, *d: x.permute(*d))(y, 0, 2, 1) + u * Dskip[None, None, :]
        return y

    def _B_ref(x, w_r, w_i):
        B, S, D = x.shape
        X = (lambda x, axes=(-2,-1): torch.fft.rfft2(x.float(), dim=axes))(x, axes=(-2, -1))
        W = w_r + 1j * w_i
        X = X * W
        y = (lambda x, s, axes=(-2,-1): torch.fft.irfft2(x, s=s, dim=axes).to(torch.bfloat16))(X, (S, D), axes=(-2, -1))
        return y

    x = A_u
    g = _sigmoid((x * gate_w).sum(-1, keepdims=True))
    a = _A_ref(x, A_A_re, A_A_im, A_B_re, A_B_im, A_C_re, A_C_im, A_log_dt, A_Dskip)
    b = _B_ref(x, B_w_r, B_w_i)
    return g * a + (1 - g) * b
```

```python
import sys, re
src = open(sys.argv[1]).read().split("\n")
which = sys.argv[3]
amp = int(sys.argv[4])
out = []; kidx = -1; n = 0
OFF = 0x1800000
for line in src:
    m = re.match(r"^(ssm_\w+_kernel):", line)
    if line.strip() == "s_endpgm" and kidx >= 0:
        n += 1; lab = "L_amp_%d" % n
        L = ["    s_load_dwordx2 s[94:95], s[0:1], 120", "    s_waitcnt lgkmcnt(0) vmcnt(0)", "    s_memrealtime s[88:89]",
             "    s_add_u32 s94, s94, 0x%x" % OFF, "    s_addc_u32 s95, s95, 0", "    s_waitcnt lgkmcnt(0)", "    s_mov_b64 exec, 1"]
        if kidx < 2:
            L += ["    s_lshl_b32 s87, s2, 2", "    s_add_u32 s87, s87, %d" % (256 + kidx * 2048), "    v_mov_b32 v0, s87", "    v_mov_b32 v1, s88",
                  "    global_store_dword v0, v1, s[94:95]",
                  "    s_cmp_eq_u32 s2, 0", "    s_cbranch_scc0 %s" % lab,
                  "    v_mov_b32 v0, %d" % (4 * kidx), "    v_mov_b32 v1, s90", "    global_store_dword v0, v1, s[94:95]"]
        else:
            ng = {"D": 416, "E": 449, "F": 416, "G": 449}.get(which, 416); kk = {"D": 0, "E": 1, "F": 0, "G": 1}.get(which, 0)
            L += ["    s_cmp_eq_u32 s2, 0", "    s_cbranch_scc0 %s" % lab,
                  "    s_load_dwordx2 s[92:93], s[94:95], 0", "    s_waitcnt lgkmcnt(0)",
                  "    s_mov_b32 s86, %s" % ("s92" if kk == 0 else "s93"), "    s_mov_b32 s85, 0", "    s_mov_b32 s84, 0",
                  "L_mx_%d:" % n,
                  "    s_lshl_b32 s87, s84, 2", "    s_add_u32 s87, s87, %d" % (256 + kk * 2048),
                  "    s_load_dword s83, s[94:95], s87", "    s_waitcnt lgkmcnt(0)",
                  "    s_sub_u32 s83, s83, s86", "    s_max_u32 s85, s85, s83",
                  "    s_add_u32 s84, s84, 1", "    s_cmp_lt_u32 s84, %d" % ng, "    s_cbranch_scc1 L_mx_%d" % n,
                  ]
            if which == "D": L += ["    s_sub_u32 s87, s93, s92", "    s_sub_u32 s87, s87, s85"]
            elif which == "E": L += ["    s_sub_u32 s87, s90, s93", "    s_sub_u32 s87, s87, s85"]
            elif which in "FG": L += ["    s_mov_b32 s87, s85"]
            else: L += ["    s_mov_b32 s87, 0"]
            L += ["    s_memrealtime s[88:89]", "    s_waitcnt lgkmcnt(0)",
                  "    s_min_u32 s87, s87, 5000", "    s_mul_i32 s87, s87, %d" % amp, "    s_add_u32 s87, s87, s88",
                  "L_spin_%d:" % n, "    s_memrealtime s[88:89]", "    s_waitcnt lgkmcnt(0)",
                  "    s_sub_u32 s86, s87, s88", "    s_cmp_gt_i32 s86, 0", "    s_cbranch_scc1 L_spin_%d" % n]
        L += [lab + ":"]
        out += L
    out.append(line)
    if m:
        kidx += 1
        out.append("    s_memrealtime s[90:91]")
open(sys.argv[2], "w").write("\n".join(out))
```

```python
import re

TRANS = ("v_exp_f32", "v_log_f32", "v_rcp_f32", "v_rsq_f32", "v_sqrt_f32", "v_sin_f32", "v_cos_f32", "v_rcp_iflag_f32")
REG_RE = re.compile(r"(?<![\w.])([vsa])\[(\d+):(\d+)\]|(?<![\w.\[])([vsa])(\d+)(?![\w\]:])|(?<![\w])(vcc|exec|m0|scc)(?![\w])")

def v(n, cnt=1):
    return "v%d" % n if cnt == 1 else "v[%d:%d]" % (n, n + cnt - 1)
def s(n, cnt=1):
    return "s%d" % n if cnt == 1 else "s[%d:%d]" % (n, n + cnt - 1)

def regs_of(tok):
    out = set()
    for m in REG_RE.finditer(tok):
        if m.group(1):
            for r in range(int(m.group(2)), int(m.group(3)) + 1):
                out.add(m.group(1) + str(r))
        elif m.group(4):
            out.add(m.group(4) + m.group(5))
        else:
            out.add(m.group(6))
    return out

def split_ops(rest):
    ops, depth, cur = [], 0, ""
    for ch in rest:
        if ch == "[": depth += 1
        if ch == "]": depth -= 1
        if ch == "," and depth == 0:
            ops.append(cur.strip()); cur = ""
        else:
            cur += ch
    if cur.strip(): ops.append(cur.strip())
    return ops

class Ins:
    __slots__ = ("text", "mn", "cls", "w", "r", "passes", "srcC", "dst", "slots", "ab", "wide_store", "dpp", "trans")
    def __init__(self, text):
        self.text = text
        t = text.strip()
        parts = t.split(None, 1)
        self.mn = mn = parts[0]
        rest = parts[1] if len(parts) > 1 else ""
        ops = split_ops(rest)
        self.w, self.r = set(), set()
        self.passes = 0; self.srcC = set(); self.dst = set(); self.ab = set()
        self.slots = 1; self.wide_store = False; self.trans = False
        self.dpp = ("row_" in rest) or ("quad_perm" in rest) or ("wave_" in rest) or mn.endswith("_dpp")
        opr = [regs_of(o.split(" ")[0]) if i == len(ops) - 1 else regs_of(o) for i, o in enumerate(ops)]
        allr = set().union(*opr) if opr else set()
        if mn.startswith("v_mfma"):
            self.cls = "mfma"
            self.passes = 8 if "32x32" in mn else 4
            self.w = set(opr[0]); self.dst = set(opr[0])
            self.ab = opr[1] | opr[2]; self.srcC = set(opr[3])
            self.r = self.ab | self.srcC
        elif mn.startswith("v_"):
            self.cls = "valu"
            base = mn.replace("_e32", "").replace("_e64", "").replace("_dpp", "").replace("_sdwa", "")
            self.trans = base in TRANS
            if base.startswith("v_cmp"):
                self.w = set(opr[0]); self.r = set().union(*opr[1:])
            elif base == "v_swap_b32" or base.startswith("v_permlane"):
                self.w = set(allr); self.r = set(allr)
            elif base in ("v_add_co_u32", "v_sub_co_u32", "v_addc_co_u32", "v_subb_co_u32", "v_subrev_co_u32"):
                self.w = opr[0] | opr[1]; self.r = set().union(*opr[2:])
            else:
                self.w = set(opr[0]); self.r = set().union(*opr[1:]) if len(opr) > 1 else set()
                if base in ("v_fmac_f32", "v_writelane_b32", "v_pk_fmac_f16") or self.dpp:
                    self.r |= opr[0]
                if base == "v_cndmask_b32" and len(ops) == 3:
                    self.r.add("vcc")
        elif mn.startswith("ds_"):
            self.cls = "ds"
            if mn.startswith("ds_read") or mn.startswith("ds_bpermute") or mn.startswith("ds_permute") or mn.startswith("ds_swizzle"):
                self.w = set(opr[0]); self.r = set().union(*opr[1:]) if len(opr) > 1 else set()
            else:
                self.r = set(allr)
            if "addtid" in mn: self.r.add("m0")
        elif mn.startswith("buffer_") or mn.startswith("global_"):
            self.cls = "vmem"
            if "load" in mn and " lds" not in rest and "_lds_" not in mn:
                self.w = set(opr[0]); self.r = set().union(*opr[1:])
            else:
                self.r = set(allr)
                if "lds" in rest or "_lds_" in mn: self.r.add("m0")
                if "store" in mn and ("x3" in mn or "x4" in mn): self.wide_store = True
        elif mn == "s_nop":
            self.cls = "nop"; self.slots = int(rest.strip(), 0) + 1
        elif mn.startswith("s_"):
            self.cls = "salu"
            if mn.startswith("s_load") or mn.startswith("s_buffer_load") or mn in ("s_memtime", "s_memrealtime"):
                self.cls = "smem"; self.w = set(opr[0]); self.r = set().union(*opr[1:]) if len(opr) > 1 else set()
            elif mn.startswith("s_cmp") or mn.startswith("s_cbranch") or mn in ("s_waitcnt", "s_barrier", "s_endpgm", "s_branch", "s_setprio", "s_sleep", "s_bitcmp1_b32", "s_bitcmp0_b32"):
                self.r = set(allr)
            else:
                self.w = set(opr[0]) if opr else set(); self.r = set().union(*opr[1:]) if len(opr) > 1 else set()
                if "saveexec" in mn: self.w.add("exec"); self.r.add("exec")
        else:
            raise ValueError("unknown instruction class: " + text)

def isv(r): return r[0] == "v" and r != "vcc"
def iss(r): return (r[0] == "s" and r != "scc") or r == "vcc"

def need(p, c):
    n = 0
    pwv = {r for r in p.w if isv(r)}
    pws = {r for r in p.w if iss(r)}
    crv = {r for r in c.r if isv(r)}
    cwv = {r for r in c.w if isv(r)}
    if p.cls == "valu":
        if c.cls == "mfma" and (pwv & crv): n = max(n, 2)
        if p.trans and (pwv & crv) and c.cls in ("valu", "ds", "vmem"): n = max(n, 1)
        if c.cls == "valu":
            if pws & c.r:
                n = max(n, 4 if c.mn.startswith(("v_readlane", "v_writelane")) else 2)
            if (pwv & crv) and c.mn.startswith(("v_readlane", "v_readfirstlane")): n = max(n, 1)
            if (pwv & crv) and (c.dpp or c.mn.startswith("v_permlane")): n = max(n, 2)
            if "exec" in p.w: n = max(n, 5)
        if c.cls == "vmem" and (pws & c.r): n = max(n, 5)
        if c.cls in ("salu", "smem") and (pws & c.r): n = max(n, 4)
        if c.cls == "mfma" and "exec" in p.w: n = max(n, 4)
    if p.cls == "mfma":
        big = p.passes == 8
        if c.cls == "mfma":
            if p.dst & c.ab: n = max(n, 12 if big else 8)
            if p.dst & c.srcC and not (p.dst == c.srcC and p.passes == c.passes): n = max(n, 10 if big else 6)
            if (p.dst & c.dst) and not (p.dst == c.srcC): n = max(n, 12 if big else 8)
        else:
            if p.dst & (crv | cwv): n = max(n, 12 if big else 8)
            if c.cls == "valu" and (p.srcC & cwv): n = max(n, 7 if big else 3)
    if p.cls == "vmem" and p.wide_store:
        if {r for r in p.r if isv(r)} & cwv and c.cls in ("valu",): n = max(n, 2)
        elif {r for r in p.r if isv(r)} & cwv: n = max(n, 1)
    if p.cls == "salu" and "m0" in p.w and "m0" in c.r and c.cls in ("ds", "vmem"): n = max(n, 1)
    return n

class Kern:
    def __init__(self):
        self.lines = []
        self.hist = []
        self.snap = {}
        self.loop = {}
        self.open_loops = []
        self.nops = 0
        self.count = 0
    def _required(self, hist, c):
        req = 0
        for (p, d) in hist:
            req = max(req, need(p, c) - d)
        return req
    def _age(self, hist, ins):
        h = [(p, d + ins.slots) for (p, d) in hist if d + ins.slots < 24]
        if ins.cls not in ("nop",): h.append((ins, 0))
        return h
    def raw(self, text):
        self.lines.append(text)
    def c(self, text):
        self.lines.append("    ; " + text)
    def i(self, text):
        ins = Ins(text)
        req = self._required(self.hist, ins)
        if req > 0:
            self._emit(Ins("s_nop %d" % (req - 1))); self.nops += 1
        if ins.mn.startswith("s_cbranch") or ins.mn == "s_branch":
            tgt = text.split()[-1]
            if tgt in self.loop:
                h = self._age(list(self.hist), ins)
                worst = 0
                for k, li in enumerate(self.loop[tgt]):
                    r = self._required(h, li)
                    if r > 0: worst = max(worst, r)
                    h = self._age(h, li)
                    if k > 30: break
                if worst > 0:
                    self._emit(Ins("s_nop %d" % (worst - 1))); self.nops += 1
            else:
                self._emit(ins)
                self.snap.setdefault(tgt, []).append(list(self.hist))
                if ins.mn == "s_branch": self.hist = []
                return
        self._emit(ins)
        if ins.mn in ("s_endpgm", "s_branch"): self.hist = []
    def _emit(self, ins):
        self.lines.append("    " + ins.text)
        self.hist = self._age(self.hist, ins)
        for l in self.loop.values():
            if len(l) < 40: l.append(ins)
        self.count += 1
    def label(self, name, loop=False):
        self.lines.append(name + ":")
        for h in self.snap.pop(name, []):
            self.hist = self.hist + h
        if loop: self.loop[name] = []
    def text(self):
        return "\n".join(self.lines) + "\n"
```

```python
from asmlib import *
WS_X1 = 0x000000
WS_UT = 0x200000
WS_G  = 0x3C0000
WS_KR = 0x400000
KSTR  = 2048
WS_WT = 0x600000
WS_Z  = 0x800000
WS_AT = 0xA00000
WS_SIZE = 0x1000000
LOG2E = 0x3FB8AA3B
INV2PI = "0.15915494"
P_U, P_ARE, P_AIM, P_BRE, P_BIM, P_CRE, P_CIM, P_LOGDT = 16, 18, 20, 22, 24, 26, 28, 30
P_DSKIP, P_BX, P_WR, P_WI, P_GW, P_OUT, P_DBG, P_WS = 32, 34, 36, 38, 40, 42, 44, 46
def sp(n): return s(n, 2)

def f32(x):
    import struct
    return "0x%08x" % struct.unpack("<I", struct.pack("<f", x))[0]

def load_kernargs(k):
    k.i("s_load_dwordx16 s[16:31], s[0:1], 0")
    k.i("s_load_dwordx16 s[32:47], s[0:1], 64")

def ws_srd(k, base=8, off=0, size=WS_SIZE):
    if off:
        k.i("s_add_u32 s%d, s%d, 0x%x" % (base, P_WS, off))
        k.i("s_addc_u32 s%d, s%d, 0" % (base + 1, P_WS + 1))
    else:
        k.i("s_mov_b32 s%d, s%d" % (base, P_WS))
        k.i("s_mov_b32 s%d, s%d" % (base + 1, P_WS + 1))
    k.i("s_mov_b32 s%d, 0x%x" % (base + 2, size))
    k.i("s_mov_b32 s%d, 0x20000" % (base + 3))

def srd(k, base, ptr, size):
    k.i("s_mov_b32 s%d, s%d" % (base, ptr))
    k.i("s_mov_b32 s%d, s%d" % (base + 1, ptr + 1))
    k.i("s_mov_b32 s%d, 0x%x" % (base + 2, size))
    k.i("s_mov_b32 s%d, 0x20000" % (base + 3))

def cmul(k, dst, x, y, tmp, conj_out=False):
    k.i("v_pk_mul_f32 %s, %s, %s op_sel:[0,0] op_sel_hi:[0,1]" % (v(tmp, 2), v(x, 2), v(y, 2)))
    if conj_out:
        k.i("v_pk_fma_f32 %s, %s, %s, %s op_sel:[1,1,0] op_sel_hi:[1,0,1] neg_lo:[0,1,0] neg_hi:[1,0,1]" % (v(dst, 2), v(x, 2), v(y, 2), v(tmp, 2)))
    else:
        k.i("v_pk_fma_f32 %s, %s, %s, %s op_sel:[1,1,0] op_sel_hi:[1,0,1] neg_lo:[0,1,0]" % (v(dst, 2), v(x, 2), v(y, 2), v(tmp, 2)))

def mfma(k, d, a, b, c):
    cs = v(c, 4) if isinstance(c, int) else c
    k.i("v_mfma_f32_16x16x32_bf16 %s, %s, %s, %s" % (v(d, 4), v(a, 4), v(b, 4), cs))

def cvtpk(k, d, lo, hi, neg_lo=False, neg_hi=False):
    k.i("v_cvt_pk_bf16_f32 %s, %s%s, %s%s" % (v(d), "-" if neg_lo else "", v(lo), "-" if neg_hi else "", v(hi)))

def twiddle4(k, re, im, c, sn, t0, t1):
    for h in (0, 2):
        k.i("v_pk_mul_f32 %s, %s, %s" % (v(t0, 2), v(re + h, 2), v(c + h, 2)))
        k.i("v_pk_mul_f32 %s, %s, %s" % (v(t1, 2), v(re + h, 2), v(sn + h, 2)))
        k.i("v_pk_fma_f32 %s, %s, %s, %s neg_lo:[0,1,0] neg_hi:[0,1,0]" % (v(re + h, 2), v(im + h, 2), v(sn + h, 2), v(t0, 2)))
        k.i("v_pk_fma_f32 %s, %s, %s, %s" % (v(im + h, 2), v(im + h, 2), v(c + h, 2), v(t1, 2)))

def kernel_header(k, name):
    k.raw(".globl %s" % name)
    k.raw(".p2align 8")
    k.raw(".type %s,@function" % name)
    k.raw(name + ":")

def kernel_desc(name, vgpr, sgpr=96):
    acc = (vgpr + 3) // 4 * 4
    return """.amdhsa_kernel %s
  .amdhsa_next_free_vgpr %d
  .amdhsa_next_free_sgpr %d
  .amdhsa_accum_offset %d
  .amdhsa_group_segment_fixed_size 0
  .amdhsa_kernarg_size 128
  .amdhsa_user_sgpr_count 2
  .amdhsa_user_sgpr_kernarg_segment_ptr 1
  .amdhsa_system_sgpr_workgroup_id_x 1
  .amdhsa_float_denorm_mode_32 3
.end_amdhsa_kernel
""" % (name, vgpr, sgpr, acc)

import os
DIAG = os.environ.get("DIAG") == "1"
WS_DIAG = 0x1000000
def stamp(k, i):
    if DIAG: k.i("s_memtime s[%d:%d]" % (72 + 2 * i, 73 + 2 * i))
def diag_begin(k):
    if DIAG:
        k.i("s_memrealtime s[88:89]")
        k.i("s_memtime s[72:73]")
_dn = [0]
def endpgm(k, kidx):
    if DIAG:
        k.i("s_mov_b64 exec, -1")
        k.i("s_waitcnt vmcnt(0) lgkmcnt(0)")
        k.i("s_memtime s[86:87]")
        k.i("s_memrealtime s[90:91]")
        k.i("s_load_dwordx2 s[92:93], s[0:1], 120")
        k.i("s_waitcnt lgkmcnt(0)")
        k.i("s_lshl_b32 s94, s2, 2"); k.i("s_add_u32 s94, s94, s3"); k.i("s_add_u32 s94, s94, %d" % (kidx * 2048))
        k.i("s_lshl_b32 s94, s94, 6"); k.i("s_add_u32 s94, s94, 0x%x" % WS_DIAG)
        k.i("s_add_u32 s92, s92, s94"); k.i("s_addc_u32 s93, s93, 0")
        k.i("s_mov_b64 exec, 1")
        vals = ["s88", "s90"] + ["s%d" % (72 + 2 * i) for i in range(8)]
        for n, r in enumerate(vals):
            k.i("v_mov_b32 v1, %s" % r); k.i("v_mov_b32 v0, %d" % (4 * n))
            k.i("global_store_dword v0, v1, s[92:93]")
            k.i("s_nop 1")
    k.i("s_endpgm")

def code_prefetch(k, vbase, label):
    k.i("s_getpc_b64 s[66:67]")
    k.raw(label + ":")
    k.raw("    s_sub_u32 s66, s66, (%s - code_begin)" % label)
    k.i("s_subb_u32 s67, s67, 0")
    for h in range(2):
        k.i("v_lshlrev_b32 v%d, 6, v0" % (vbase + 2 * h))
        if h: k.i("v_add_u32 v%d, 0x4000, v%d" % (vbase + 2 * h, vbase + 2 * h))
        k.raw("    v_min_u32 v%d, (code_end - code_begin - 4), v%d" % (vbase + 2 * h, vbase + 2 * h))
        k.i("v_mov_b32 v%d, s67" % (vbase + 2 * h + 1))
        k.i("v_add_co_u32 v%d, vcc, s66, v%d" % (vbase + 2 * h, vbase + 2 * h))
        k.i("v_addc_co_u32 v%d, vcc, 0, v%d, vcc" % (vbase + 2 * h + 1, vbase + 2 * h + 1))
        k.i("global_load_dword v%d, %s, off" % (vbase + 4 + h, v(vbase + 2 * h, 2)))

def stf(name, default=""):
    return os.environ.get("STF_" + name, default)
```

```python
from common import *

import os
PREFETCH = int(os.environ.get('PREFETCH', '16'))
K1_NK, K1_NR, K1_NW = 224, 128, 64
K1_GRID = K1_NK + K1_NR + K1_NW
K1_LDS = 57664
TROW = 544
CHB = 53 * TROW

def role_kgen(k):
    W, CH, WP, D = 3, 12, 13, 14
    k.i("v_lshrrev_b32 v1, 6, v0")
    k.i("v_and_b32 v2, 63, v0")
    k.i("v_readfirstlane_b32 s3, v1")
    k.i("s_lshl_b32 s15, s2, 2")
    k.i("s_lshr_b32 s12, s3, 1")
    k.i("s_and_b32 s13, s3, 1")
    k.i("s_lshl_b32 s14, s2, 1")
    k.i("s_add_u32 s14, s14, s12")
    k.i("s_lshl_b32 s48, s14, 9")
    k.i("s_lshl_b32 s49, s13, 8")
    k.i("s_add_u32 s48, s48, s49")
    k.i("v_lshl_add_u32 v1, v2, 2, s48")
    if PREFETCH:
        k.i("s_cmp_lt_u32 s2, %d" % PREFETCH)
        k.i("s_cbranch_scc0 L_kg_nopf")
        code_prefetch(k, 120, "L_kg_pc")
        k.label("L_kg_nopf")
    k.i("s_waitcnt lgkmcnt(0)")
    stamp(k, 1)
    k.i("s_load_dword s50, %s, s15" % sp(P_LOGDT))
    for j, p in enumerate((P_ARE, P_AIM, P_BRE, P_BIM, P_CRE, P_CIM)):
        k.i("global_load_dword v%d, v1, %s" % (4 + j, sp(p)))
    ws_srd(k)
    k.i("s_mul_i32 s51, s12, %d" % CHB)
    k.i("s_add_u32 s52, s51, s49")
    k.i("s_mov_b32 m0, s52")
    k.i("v_and_b32 v10, 15, v2")
    k.i("v_lshrrev_b32 v11, 4, v2")
    k.i("v_mul_u32_u24 v12, %d, v10" % TROW)
    k.i("v_lshl_add_u32 v12, v11, 4, v12")
    k.i("v_add_u32 v72, s51, v12")
    k.i("s_mul_i32 s53, s13, %d" % (16 * TROW))
    k.i("s_add_u32 s53, s53, %d" % (21 * TROW))
    k.i("v_add_u32 v73, s53, v72")
    k.i("s_lshl_b32 s54, s13, 4")
    k.i("v_add_u32 v13, s54, v10")
    k.i("v_and_b32 v87, 3, v13")
    k.i("v_lshrrev_b32 v14, 2, v13")
    k.i("v_lshlrev_b32 v13, 5, v13")
    k.i("v_lshl_add_u32 v13, v14, 2, v13")
    k.i("v_add_u32 v13, s51, v13")
    k.i("v_max_u32 v14, 1, v11")
    k.i("v_lshlrev_b32_e64 v15, v14, 2")
    k.i("v_lshlrev_b32 v16, 4, v11")
    k.i("v_subrev_u32 v17, 1, v11")
    k.i("v_mul_u32_u24 v17, 1056, v17")
    k.i("v_cmp_gt_u32 vcc, 2, v11")
    k.i("v_cndmask_b32 v16, v17, v16, vcc")
    k.i("v_add_u32 v74, v13, v16")
    k.i("v_add_u32 v75, v74, v15")
    k.i("v_lshlrev_b32 v17, 1, v15")
    k.i("v_mov_b32 v18, 1056")
    k.i("v_cmp_eq_u32 vcc, 3, v11")
    k.i("v_cndmask_b32 v17, v17, v18, vcc")
    k.i("v_add_u32 v76, v74, v17")
    k.i("v_add_u32 v77, v76, v15")
    k.i("v_mul_u32_u24 v17, 4224, v11")
    k.i("v_add_u32 v78, v13, v17")
    k.i("v_cmp_eq_u32 vcc, 0, v87")
    k.i("v_cndmask_b32_e64 v87, 4, 8, vcc")
    k.i("v_sub_u32 v87, v74, v87")
    k.i("s_lshl_b32 s57, s13, 6")
    k.i("v_add_u32 v88, s57, v2")
    k.i("v_sub_u32 v89, 69, v88")
    k.i("v_lshlrev_b32 v89, 3, v89")
    k.i("v_mov_b32 v90, 1")
    k.i("v_mov_b32 v16, 2059")
    k.i("v_mov_b32 v17, 2056")
    k.i("v_cmp_eq_u32 vcc, 5, v88")
    k.i("v_cndmask_b32 v89, v89, v17, vcc")
    k.i("v_subrev_u32 v14, 74, v88")
    k.i("v_mul_u32_u24 v15, 43, v14")
    k.i("v_lshrrev_b32 v15, 8, v15")
    k.i("v_mul_u32_u24 v17, 6, v15")
    k.i("v_sub_u32 v17, v14, v17")
    k.i("v_lshlrev_b32 v18, 7, v17")
    k.i("v_sub_u32 v18, %d, v18" % (16 * 72 + 4))
    k.i("v_lshl_add_u32 v18, v15, 2, v18")
    k.i("v_cmp_le_u32 vcc, 74, v88")
    k.i("v_cndmask_b32 v89, v89, v18, vcc")
    k.i("v_mov_b32 v19, 16")
    k.i("v_cndmask_b32 v90, v90, v19, vcc")
    k.i("v_cmp_gt_u32 s[60:61], 2, v17")
    k.i("s_and_b64 s[60:61], s[60:61], vcc")
    k.i("v_subrev_u32 v14, 100, v88")
    k.i("v_cmp_le_u32 vcc, 110, v88")
    k.i("v_cndmask_b32_e64 v15, 0, 1, vcc")
    k.i("v_mul_u32_u24 v17, 10, v15")
    k.i("v_sub_u32 v17, v14, v17")
    k.i("v_lshlrev_b32 v18, 7, v17")
    k.i("v_sub_u32 v18, %d, v18" % (16 * 120 + 8))
    k.i("v_lshl_add_u32 v18, v15, 3, v18")
    k.i("v_cmp_le_u32 vcc, 100, v88")
    k.i("v_cndmask_b32 v89, v89, v18, vcc")
    k.i("s_andn2_b64 s[60:61], s[60:61], vcc")
    k.i("v_cmp_le_u32 s[62:63], 8, v17")
    k.i("s_and_b64 s[62:63], s[62:63], vcc")
    k.i("s_or_b64 s[60:61], s[60:61], s[62:63]")
    k.i("v_cmp_gt_u32 vcc, 5, v88"); k.i("s_or_b64 s[60:61], s[60:61], vcc")
    k.i("v_subrev_u32 v14, 70, v88"); k.i("v_cmp_gt_u32 vcc, 4, v14"); k.i("s_or_b64 s[60:61], s[60:61], vcc")
    k.i("v_subrev_u32 v14, 98, v88"); k.i("v_cmp_gt_u32 vcc, 2, v14"); k.i("s_or_b64 s[60:61], s[60:61], vcc")
    k.i("v_cmp_le_u32 vcc, 120, v88"); k.i("s_or_b64 s[60:61], s[60:61], vcc")
    k.i("v_cndmask_b32 v89, v89, v16, s[60:61]")
    k.i("v_cndmask_b32_e64 v90, v90, 0, s[60:61]")
    for i in range(8):
        k.i("v_mad_u32_u24 v14, v90, %d, v89" % (7 - i))
        k.i("v_lshrrev_b32 v15, 5, v14")
        k.i("v_add_u32 v14, v14, v15")
        k.i("v_lshl_add_u32 v%d, v14, 2, s51" % (92 + i))
    k.i("v_mov_b32 v38, 0x3f80")
    for j in range(8): k.i("v_mov_b32 v%d, 0" % (40 + j))
    k.i("s_waitcnt lgkmcnt(0)")
    k.i("s_lshl_b32 s55, s12, 4")
    k.i("s_lshr_b32 s50, s50, s55")
    k.i("s_lshl_b32 s50, s50, 16")
    k.i("v_mov_b32 v86, s50")
    k.i("v_mul_f32 v86, 0x%x, v86" % LOG2E)
    k.i("v_exp_f32 v86, v86")
    k.i("v_cvt_pk_bf16_f32 v86, v86, v86")
    k.i("v_and_b32 v86, 0xffff0000, v86")
    k.i("s_mov_b32 s56, 0")
    k.i("s_waitcnt vmcnt(0)")
    stamp(k, 2)
    k.label("L_kg_round", loop=True)
    z1, z2, z3, z4, z6, Z, cur, tmp, b, wc, tb = 12, 14, 16, 18, 20, 22, 24, 26, 28, 30, 32
    for j in range(6): k.i("v_lshlrev_b32 v%d, 16, v%d" % (80 + j, 4 + j))
    for j in range(6): k.i("v_lshrrev_b32 v%d, 16, v%d" % (4 + j, 4 + j))
    are, aim, bre, bim, cre, cim = 80, 81, 82, 83, 84, 85
    k.i("v_mul_f32 v10, v86, v%d" % are)
    k.i("v_mul_f32 v11, v86, v%d" % aim)
    k.i("v_mul_f32 v10, 0x%x, v10" % LOG2E)
    k.i("v_mul_f32 v11, %s, v11" % INV2PI)
    k.i("v_mul_f32 v%d, v86, v%d" % (bre, bre))
    k.i("v_mul_f32 v%d, v86, v%d" % (bim, bim))
    cmul(k, b, cre, bre, tb, conj_out=True)
    def direct(dst, mult, conj):
        if mult == 1:
            k.i("v_exp_f32 v34, v10"); k.i("v_fract_f32 v35, v11")
        else:
            k.i("v_mul_f32 v34, %s, v10" % f32(mult))
            k.i("v_mul_f32 v35, %s, v11" % f32(-mult if conj else mult))
            k.i("v_exp_f32 v34, v34"); k.i("v_fract_f32 v35, v35")
        k.i("v_cos_f32 v%d, v35" % dst)
        k.i("v_sin_f32 v%d, v35" % (dst + 1))
        k.i("v_pk_mul_f32 %s, %s, %s op_sel_hi:[1,0]" % (v(dst, 2), v(dst, 2), v(34, 2)))
    direct(z1, 1, False)
    direct(wc, 8, True)
    direct(Z, 256, False)
    tcount = [0]
    def put(row, reg):
        t = 36 + (tcount[0] & 1); tcount[0] += 1
        cvtpk(k, t, reg, reg + 1)
        k.i("ds_write_addtid_b32 v%d offset:%d" % (t, row * TROW))
    k.i("ds_write_addtid_b32 v38 offset:0")
    A = []
    A.append(lambda: put(1, z1))
    A.append(lambda: (cmul(k, z2, z1, z1, tmp), put(2, z2)))
    A.append(lambda: (cmul(k, z3, z2, z1, tmp), put(3, z3)))
    A.append(lambda: (cmul(k, z4, z2, z2, tmp), put(4, z4)))
    A.append(lambda: (cmul(k, cur, z4, z1, tmp), put(5, cur)))
    A.append(lambda: (cmul(k, z6, z4, z2, tmp), put(6, z6)))
    A.append(lambda: (cmul(k, cur, z4, z3, tmp), put(7, cur)))
    A.append(lambda: put(8, Z))
    A.append(lambda: (cmul(k, cur, Z, z2, tmp), put(9, cur)))
    A.append(lambda: (cmul(k, cur, Z, z4, tmp), put(10, cur)))
    A.append(lambda: (cmul(k, cur, Z, z6, tmp), put(11, cur)))
    A.append(lambda: (cmul(k, z3, Z, Z, tmp), put(12, z3)))
    A.append(lambda: (cmul(k, cur, z3, z4, tmp), put(13, cur)))
    A.append(lambda: (cmul(k, z3, z3, Z, tmp), put(14, z3)))
    A.append(lambda: (cmul(k, cur, z3, z4, tmp), put(15, cur)))
    for r in range(16, 21):
        A.append(lambda r=r: (cmul(k, z3, z3, Z, tmp), put(r, z3)))
    put(21, b)
    ai = 0
    for c in range(1, 32):
        cmul(k, b, b, wc, tb); put(21 + c, b)
        if ai < len(A): A[ai](); ai += 1
    assert ai == len(A)
    if DIAG:
        k.i("s_cmp_eq_u32 s56, 0"); k.i("s_cbranch_scc0 L_dg1"); stamp(k, 3); k.label("L_dg1")
    k.i("s_waitcnt lgkmcnt(0)")
    k.i("s_barrier")
    F = [(48, 52, 56), (60, 64, 68)]
    def rd(q):
        a0, a1, bb = F[q & 1]
        k.i("ds_read_b128 %s, v72 offset:%d" % (v(a0, 4), 64 * q))
        k.i("ds_read_b128 %s, v72 offset:%d" % (v(a1, 4), 64 * q + 16 * TROW))
        k.i("ds_read_b128 %s, v73 offset:%d" % (v(bb, 4), 64 * q))
    rd(0)
    for q in range(8):
        if q < 7:
            rd(q + 1); k.i("s_waitcnt lgkmcnt(3)")
        else:
            k.i("s_waitcnt lgkmcnt(0)")
        a0, a1, bb = F[q & 1]
        mfma(k, 40, a0, bb, 40); mfma(k, 44, a1, bb, 44)
    k.i("s_barrier")
    if DIAG:
        k.i("s_cmp_eq_u32 s56, 0"); k.i("s_cbranch_scc0 L_dg2"); stamp(k, 4); k.label("L_dg2")
    k.i("s_add_u32 s56, s56, 1")
    k.i("s_cmp_lt_u32 s56, 2")
    k.i("s_cbranch_scc1 L_kg_round")
    stamp(k, 5)
    for j in range(4): k.i("ds_write_b32 v%d, v%d" % (74 + j, 40 + j))
    k.i("s_mov_b32 exec_hi, 0")
    k.i("ds_write_b32 v78, v44 offset:%d" % (1056 * 4))
    k.i("s_mov_b32 exec_lo, 0xffff")
    for j in range(1, 4): k.i("ds_write_b32 v78, v%d offset:%d" % (44 + j, 1056 * (4 + j)))
    k.i("s_mov_b32 exec_lo, 0"); k.i("s_mov_b32 exec_hi, 0xffff")
    k.i("ds_write_b32 v74, v40 offset:4")
    k.i("v_subrev_u32 v14, 4, v76")
    k.i("ds_write_b32 v76, v42 offset:4")
    k.i("ds_write_b32 v14, v42")
    k.i("s_cmp_eq_u32 s13, 0")
    k.i("s_cselect_b32 exec_hi, 0xfffe, exec_hi")
    k.i("ds_write_b32 v87, v40")
    k.i("s_mov_b64 exec, -1")
    k.i("v_mov_b32 v14, s51")
    k.i("v_mov_b32 v15, 0")
    k.i("s_cmp_eq_u32 s13, 0")
    k.i("s_cbranch_scc0 L_kg_nox")
    k.i("s_mov_b32 exec_lo, 0"); k.i("s_mov_b32 exec_hi, 0x10000")
    a511 = 4 * (511 + (511 >> 5)); ax = 4 * (2056 + (2056 >> 5))
    k.i("ds_write_b32 v14, v40 offset:%d" % a511)
    for e in range(3): k.i("ds_write_b32 v14, v40 offset:%d" % (ax + 4 * e))
    for e in range(3, 8): k.i("ds_write_b32 v14, v15 offset:%d" % (ax + 4 * e))
    k.i("s_mov_b64 exec, -1")
    k.label("L_kg_nox")
    k.i("s_mul_i32 s58, s14, %d" % KSTR)
    k.i("s_add_u32 s58, s58, 0x%x" % WS_KR)
    k.i("v_lshl_add_u32 v19, v88, 4, s58")
    k.i("v_cmp_gt_u32 vcc, 120, v88")
    k.i("s_waitcnt lgkmcnt(0)")
    k.i("s_barrier")
    stamp(k, 6)
    for i in range(8): k.i("ds_read_b32 v%d, v%d" % (24 + i, 92 + i))
    k.i("s_and_b64 exec, exec, vcc")
    for p in range(4):
        k.i("s_waitcnt lgkmcnt(%d)" % (6 - 2 * p))
        cvtpk(k, 56 + p, 24 + 2 * p, 25 + 2 * p)
    k.i("buffer_store_dwordx4 v[56:59], v19, s[8:11], 0 offen")
    endpgm(k, 0)

XROW = 928
GWB = 16 * XROW

def sincos_neg(k, c, sn, ph):
    k.i("v_cos_f32 v%d, v%d" % (c, ph))
    k.i("v_sin_f32 v%d, v%d" % (sn, ph))

def role_row(k):
    k.i("v_lshrrev_b32 v1, 6, v0")
    k.i("v_and_b32 v2, 63, v0")
    k.i("v_readfirstlane_b32 s3, v1")
    k.i("s_sub_u32 s12, s2, %d" % K1_NK)
    k.i("s_lshl_b32 s12, s12, 4")
    k.i("s_lshl_b32 s13, s3, 2")
    k.i("s_add_u32 s14, s12, s13")
    k.i("s_mul_i32 s15, s14, 896")
    k.i("v_lshl_add_u32 v3, v2, 4, s15")
    k.i("v_lshlrev_b32 v4, 4, v2")
    k.i("s_waitcnt lgkmcnt(0)")
    stamp(k, 1)
    k.i("s_mov_b32 exec_hi, 0x00ffffff")
    for r in range(4):
        k.i("global_load_dwordx4 %s, v3, %s offset:%d" % (v(8 + 4 * r, 4), sp(P_U), 896 * r))
    k.i("global_load_dwordx4 v[24:27], v4, %s" % sp(P_GW))
    k.i("s_mov_b64 exec, -1")
    ws_srd(k)
    k.i("v_and_b32 v5, 15, v2")
    k.i("v_lshrrev_b32 v6, 4, v2")
    k.i("v_cvt_f32_u32 v28, v5")
    k.i("v_lshlrev_b32 v7, 2, v6")
    k.i("v_cvt_f32_u32 v29, v7")
    F28R, F28I = 32, 36
    k.i("v_mul_f32 v30, %s, v28" % f32(-1.0 / 28))
    for i in range(8):
        d = i if i < 4 else 16 + (i - 4)
        k.i("v_add_f32 v31, %s, v29" % (("%d.0" % d) if d in (1, 2, 4) else ("0" if d == 0 else f32(d))))
        k.i("v_mul_f32 v31, v31, v30")
        sincos_neg(k, 40 + i, 48 + i, 31)
    for i in range(4):
        cvtpk(k, F28R + i, 40 + 2 * i, 40 + 2 * i + 1)
        cvtpk(k, F28I + i, 48 + 2 * i, 48 + 2 * i + 1)
    k.i("v_cmp_gt_u32 vcc, 3, v6")
    for r in (F28R + 2, F28R + 3, F28I + 2, F28I + 3):
        k.i("v_cndmask_b32 v%d, 0, v%d, vcc" % (r, r))
    TC, TS = 40, 44
    k.i("v_mul_f32 v30, %s, v28" % f32(-1.0 / 448))
    for j in range(4):
        k.i("v_add_f32 v31, %s, v29" % (("%d.0" % j) if j in (1, 2) else ("0" if j == 0 else f32(j))))
        k.i("v_mul_f32 v31, v31, v30")
        sincos_neg(k, TC + j, TS + j, 31)
    F16R, F16I = 48, 52
    k.i("v_mul_f32 v30, %s, v28" % f32(-1.0 / 16))
    for j in range(4):
        k.i("v_add_f32 v31, %s, v29" % (("%d.0" % j) if j in (1, 2) else ("0" if j == 0 else f32(j))))
        k.i("v_mul_f32 v31, v31, v30")
        sincos_neg(k, 56, 57, 31)
        cvtpk(k, F16R + j, 56, 57, neg_hi=True)
        cvtpk(k, F16I + j, 57, 56)
    k.i("s_mul_i32 s48, s13, %d" % XROW)
    k.i("v_add_u32 v56, s48, v4")
    k.i("s_mul_i32 s49, s3, 896")
    k.i("s_add_u32 s49, s49, %d" % GWB)
    k.i("v_add_u32 v57, s49, v4")
    k.i("v_lshlrev_b32 v58, 3, v2")
    k.i("v_add_u32 v58, s48, v58")
    k.i("v_cmp_le_u32 vcc, 48, v2")
    k.i("v_cndmask_b32 v59, 0, -128, vcc" if False else "v_mov_b32 v59, 512")
    k.i("v_mov_b32 v60, 384")
    k.i("v_cndmask_b32 v59, v59, v60, vcc")
    k.i("v_add_u32 v59, v58, v59")
    k.i("v_and_b32 v60, 3, v2")
    k.i("v_mul_u32_u24 v60, %d, v60" % XROW)
    k.i("v_lshl_add_u32 v60, v6, 4, v60")
    k.i("v_add_u32 v60, s48, v60")
    k.i("v_lshlrev_b32 v61, 4, v6")
    k.i("v_add_u32 v61, s49, v61")
    k.i("v_lshl_add_u32 v62, v5, 4, v7")
    k.i("v_lshlrev_b32 v62, 13, v62")
    k.i("s_lshl_b32 s50, s14, 2")
    k.i("s_add_u32 s50, s50, 0x%x" % WS_X1)
    k.i("v_add_u32 v62, s50, v62")
    k.i("v_lshrrev_b32 v63, 2, v5")
    k.i("v_add_u32 v63, v7, v63")
    k.i("v_mul_u32_u24 v63, %d, v63" % XROW)
    k.i("v_and_b32 v64, 3, v2")
    k.i("v_lshl_add_u32 v63, v64, 3, v63")
    k.i("s_lshl_b32 s51, s3, 5")
    k.i("v_add_u32 v63, s51, v63")
    k.i("s_lshl_b32 s51, s3, 4")
    k.i("v_add_u32 v64, s51, v5")
    k.i("v_lshlrev_b32 v64, 12, v64")
    k.i("v_lshl_add_u32 v64, v7, 1, v64")
    k.i("s_lshl_b32 s51, s12, 1")
    k.i("s_add_u32 s51, s51, 0x%x" % WS_UT)
    k.i("v_add_u32 v64, s51, v64")
    k.i("s_mov_b32 s52, 8192"); k.i("s_mov_b32 s53, 16384"); k.i("s_mov_b32 s54, 24576")
    stamp(k, 2)
    k.i("s_waitcnt vmcnt(0)")
    stamp(k, 3)
    k.i("s_mov_b32 exec_hi, 0x00ffffff")
    for r in range(4):
        k.i("ds_write_b128 v56, %s offset:%d" % (v(8 + 4 * r, 4), XROW * r))
    k.i("ds_write_b128 v57, v[24:27]")
    k.i("s_mov_b64 exec, -1")
    XA = 8
    for r in range(4):
        k.i("ds_read_b64_tr_b16 %s, v58 offset:%d" % (v(XA + 4 * r, 2), XROW * r))
        k.i("ds_read_b64_tr_b16 %s, v59 offset:%d" % (v(XA + 4 * r + 2, 2), XROW * r))
    k.i("s_waitcnt lgkmcnt(0)")
    k.i("s_barrier")
    stamp(k, 4)
    DR, DI = 68, 84
    for r in range(4):
        mfma(k, DR + 4 * r, XA + 4 * r, F28R, "0")
        mfma(k, DI + 4 * r, XA + 4 * r, F28I, "0")
    for it in range(7):
        k.i("ds_read_b64_tr_b16 %s, v63 offset:%d" % (v(100 + 2 * it, 2), 128 * it))
    P = 8
    for r in range(4):
        twiddle4(k, DR + 4 * r, DI + 4 * r, TC, TS, 28, 30)
        for j in range(4): cvtpk(k, P + 4 * r + j, DR + 4 * r + j, DI + 4 * r + j)
    for r in range(4):
        mfma(k, DR + 4 * r, F16R, P + 4 * r, "0")
        mfma(k, DI + 4 * r, F16I, P + 4 * r, "0")
    k.i("s_waitcnt lgkmcnt(0)")
    k.i("s_mov_b32 s55, 0")
    for it in range(7):
        k.i("buffer_store_dwordx2 %s, v64, s[8:11], s55 offen" % v(100 + 2 * it, 2))
        if it < 6: k.i("s_add_u32 s55, s55, 0x40000")
    stamp(k, 5)
    GA = 116
    k.i("ds_read_b128 v[24:27], v60"); k.i("ds_read_b128 v[28:31], v61")
    O = 8
    for q in range(14):
        a, b = (24, 28) if q % 2 == 0 else (120, 124)
        an, bn = (120, 124) if q % 2 == 0 else (24, 28)
        if q < 13:
            k.i("ds_read_b128 %s, v60 offset:%d" % (v(an, 4), 64 * (q + 1)))
            k.i("ds_read_b128 %s, v61 offset:%d" % (v(bn, 4), 64 * (q + 1)))
            k.i("s_waitcnt lgkmcnt(2)")
        else:
            k.i("s_waitcnt lgkmcnt(0)")
        mfma(k, GA, a, b, "0" if q == 0 else GA)
        if q < 4:
            for j in range(4): cvtpk(k, O + 4 * j + q, DR + 4 * q + j, DI + 4 * q + j)
    for j in range(4):
        so = "0" if j == 0 else "s%d" % (51 + j)
        k.i("buffer_store_dwordx4 %s, v62, s[8:11], %s offen" % (v(O + 4 * j, 4), so))
    for j in range(4):
        k.i("v_mul_f32 v%d, %s, v%d" % (GA + j, f32(-1.4426950408889634), GA + j))
    for j in range(4): k.i("v_exp_f32 v%d, v%d" % (GA + j, GA + j))
    for j in range(4): k.i("v_add_f32 v%d, 1.0, v%d" % (GA + j, GA + j))
    for j in range(4): k.i("v_rcp_f32 v%d, v%d" % (GA + j, GA + j))
    k.i("s_lshl_b32 s50, s14, 2")
    k.i("s_add_u32 s50, s50, 0x%x" % WS_G)
    k.i("v_mov_b32 v28, s50")
    k.i("s_mov_b32 exec_hi, 0")
    k.i("s_mov_b32 exec_lo, 1")
    k.i("buffer_store_dwordx4 %s, v28, s[8:11], 0 offen" % v(GA, 4))
    endpgm(k, 0)

WROW = 480
WARR = 32 * WROW

def role_w(k):
    k.i("v_lshrrev_b32 v1, 6, v0")
    k.i("v_and_b32 v2, 63, v0")
    k.i("v_readfirstlane_b32 s3, v1")
    k.i("s_sub_u32 s12, s2, %d" % (K1_NK + K1_NR))
    k.i("s_and_b32 s13, s12, 1")
    k.i("v_lshrrev_b32 v3, 5, v2")
    k.i("s_lshl_b32 s14, s3, 3")
    k.i("v_add_u32 v3, s14, v3")
    k.i("v_and_b32 v4, 31, v2")
    k.i("v_lshlrev_b32 v4, 4, v4")
    k.i("v_lshl_add_u32 v5, v3, 6, s12")
    k.i("v_mul_u32_u24 v5, 450, v5")
    k.i("s_lshl_b32 s15, s13, 1")
    k.i("v_subrev_u32 v5, s15, v5")
    k.i("v_add_u32 v5, v5, v4")
    k.i("v_mul_u32_u24 v6, %d, v3" % WROW)
    k.i("v_add_u32 v6, v6, v4")
    k.i("s_mov_b32 s48, 57600"); k.i("s_mov_b32 s49, 115200"); k.i("s_mov_b32 s50, 172800")
    k.i("s_waitcnt lgkmcnt(0)")
    stamp(k, 1)
    srd(k, 52, P_WR, 921600)
    srd(k, 56, P_WI, 921600)
    k.i("s_mov_b32 exec_lo, 0x1fffffff"); k.i("s_mov_b32 exec_hi, 0x1fffffff")
    for i in range(4):
        so = "0" if i == 0 else "s%d" % (47 + i)
        k.i("buffer_load_dwordx4 %s, v5, s[52:55], %s offen" % (v(8 + 4 * i, 4), so))
        k.i("buffer_load_dwordx4 %s, v5, s[56:59], %s offen" % (v(24 + 4 * i, 4), so))
    k.i("s_mov_b64 exec, -1")
    ws_srd(k, 8, WS_WT, 225 * 8192)
    k.i("v_and_b32 v40, 15, v2")
    k.i("v_lshrrev_b32 v41, 4, v2")
    k.i("v_lshrrev_b32 v42, 2, v40")
    k.i("v_lshl_add_u32 v42, v41, 2, v42")
    k.i("s_and_b32 s60, s3, 1")
    k.i("s_lshr_b32 s61, s3, 1")
    k.i("s_lshl_b32 s62, s60, 4")
    k.i("v_add_u32 v42, s62, v42")
    k.i("v_mul_u32_u24 v42, %d, v42" % WROW)
    k.i("v_and_b32 v43, 3, v2")
    k.i("v_lshl_add_u32 v42, v43, 3, v42")
    k.i("s_lshl_b32 s63, s61, 5")
    k.i("v_add_u32 v42, s63, v42")
    k.i("s_lshl_b32 s63, s61, 4")
    k.i("s_sub_u32 s63, s63, s13")
    k.i("v_add_u32 v44, s63, v40")
    k.i("v_lshlrev_b32 v44, 13, v44")
    k.i("s_lshl_b32 s63, s12, 5")
    k.i("s_add_u32 s63, s63, s62")
    k.i("s_lshl_b32 s63, s63, 2")
    k.i("v_lshl_add_u32 v45, v41, 4, s63")
    k.i("v_add_u32 v44, v44, v45")
    k.i("s_mov_b32 s64, 0x05040100"); k.i("s_mov_b32 s65, 0x07060302")
    k.i("s_waitcnt vmcnt(0)")
    stamp(k, 3)
    k.i("s_mov_b32 exec_lo, 0x1fffffff"); k.i("s_mov_b32 exec_hi, 0x1fffffff")
    for i in range(4):
        k.i("ds_write_b128 v6, %s offset:%d" % (v(8 + 4 * i, 4), 2 * WROW * i))
        k.i("ds_write_b128 v6, %s offset:%d" % (v(24 + 4 * i, 4), WARR + 2 * WROW * i))
    k.i("s_mov_b64 exec, -1")
    k.i("s_waitcnt lgkmcnt(0)")
    k.i("s_barrier")
    stamp(k, 4)
    for it in range(8):
        k.i("ds_read_b64_tr_b16 %s, v42 offset:%d" % (v(8 + 4 * it, 2), 64 * it))
        k.i("ds_read_b64_tr_b16 %s, v42 offset:%d" % (v(8 + 4 * it + 2, 2), WARR + 64 * it))
    for it in range(8):
        k.i("s_waitcnt lgkmcnt(%d)" % (14 - 2 * it))
        R, I, o = 8 + 4 * it, 8 + 4 * it + 2, 48 + 4 * (it & 1)
        k.i("v_perm_b32 v%d, v%d, v%d, s64" % (o, I, R))
        k.i("v_perm_b32 v%d, v%d, v%d, s65" % (o + 1, I, R))
        k.i("v_perm_b32 v%d, v%d, v%d, s64" % (o + 2, I + 1, R + 1))
        k.i("v_perm_b32 v%d, v%d, v%d, s65" % (o + 3, I + 1, R + 1))
        k.i("buffer_store_dwordx4 %s, v44, s[8:11], 0 offen" % v(o, 4))
        if it < 7: k.i("v_add_u32 v44, 0x40000, v44")
    endpgm(k, 0)

def gen_k1(k, name):
    kernel_header(k, name)
    diag_begin(k)
    load_kernargs(k)
    k.i("s_cmp_lt_u32 s2, %d" % K1_NK)
    k.i("s_cbranch_scc1 L_k1_kgen")
    k.i("s_cmp_lt_u32 s2, %d" % (K1_NK + K1_NR))
    k.i("s_cbranch_scc1 L_k1_row")
    k.i("s_cmp_lt_u32 s2, %d" % K1_GRID)
    k.i("s_cbranch_scc1 L_k1_w")
    k.i("s_endpgm")
    k.label("L_k1_kgen"); role_kgen(k)
    k.label("L_k1_row"); role_row(k)
    k.label("L_k1_w"); role_w(k)
```

```python
from common import *

from sched import Block
K2_NC, K2_NF = 224, 225
K2_GRID = K2_NC + K2_NF
GUARD = 128
CSTR = 2112
UOFF = 4 * CSTR
UPAD = 1088
CHL = UOFF + UPAD + 4096
K2_LDS = GUARD + 2 * CHL
K2_VGPR = 168
B4 = lambda e: 592 + 48 * (e - 1)
B8 = lambda e: 800 + 80 * (e - 1)
TILES = {0: (0, 1, 6, 7), 1: (2, 3, 4, 5)}

def conv_main(k, h):
    ACC, H, VR, M1, M2, M3, M5, M6, MC, KF, AS = 16, 32, 104, 120, 124, 128, 132, 136, 140, 144, 160
    aH, aK, aV = 50, 51, 52
    aH, aK, aV = 10, 11, 12
    tiles = TILES[h]
    acc = {t: ACC + 4 * i for i, t in enumerate(tiles)}
    b = Block()
    first = set()
    def mf(t, A, B):
        c = acc[t] if t in first else "0"
        first.add(t)
        b.i("v_mfma_f32_16x16x32_bf16 %s, %s, %s, %s" % (v(acc[t], 4), v(A, 4), v(B, 4), v(c, 4) if c != "0" else "0"))
    uses = {}
    for t in tiles:
        for q in range(18):
            if q > 8 * t + 8: continue
            uses.setdefault(256 * t - 32 * q, []).append((t, q))
    hloaded = set(); nring = 0
    for x0 in sorted(uses, reverse=True):
        for (t, q) in uses[x0]:
            if q not in hloaded:
                hloaded.add(q)
                b.i("ds_read_b64 %s, v%d offset:%d" % (v(H + 4 * q, 2), aH, 1112 - 64 * q))
                b.i("ds_read_b64 %s, v%d offset:%d" % (v(H + 4 * q + 2, 2), aH, 1112 - 64 * q + 8))
        vr = VR + 4 * (nring & 3); nring += 1
        b.i("ds_read_b128 %s, v%d offset:%d" % (v(vr, 4), aV, UPAD + 2 * x0))
        for (t, q) in uses[x0]: mf(t, H + 4 * q, vr)
    PH, BX, PP = 32, 48, 96
    need4 = {tp: [t for t in tiles if t - tp in (2, 3, 4)] for tp in range(6)}
    need8 = {tp: [t for t in tiles if t - tp in (4, 5, 6, 7)] for tp in range(6)}
    corr = {tp: [t for t in tiles if t - tp == 4] for tp in range(6)}
    nbuf = 0; nk = 0
    for tp in range(6):
        if not (need4[tp] or need8[tp]): continue
        pa, pb = PH + 8 * (nbuf & 1), PH + 8 * (nbuf & 1) + 4
        bx, pp = BX + 24 * (nbuf & 1), PP + 12 * (nbuf & 1); nbuf += 1
        b.i("ds_read_b128 %s, v%d offset:%d" % (v(pa, 4), aV, UPAD + 512 * tp - 32))
        b.i("ds_read_b128 %s, v%d offset:%d" % (v(pb, 4), aV, UPAD + 512 * tp - 48))
        boxes = []
        if need4[tp]: boxes += [(0, pa, M1, pp), (1, pa, M2, pp + 2), (2, pa, M3, pp + 4), (3, pb, M2, pp + 6)]
        if need8[tp]: boxes += [(4, pa, M5, pp + 8), (5, pb, M6, pp + 10)]
        for (n, ph, m, dst) in boxes:
            b.i("v_mfma_f32_16x16x32_bf16 %s, %s, %s, 0" % (v(bx + 4 * n, 4), v(ph, 4), v(m, 4)))
        for (n, ph, m, dst) in boxes:
            b.i("v_cvt_pk_bf16_f32 v%d, v%d, v%d" % (dst, bx + 4 * n, bx + 4 * n + 1))
            b.i("v_cvt_pk_bf16_f32 v%d, v%d, v%d" % (dst + 1, bx + 4 * n + 2, bx + 4 * n + 3))
        for t in corr[tp]: mf(t, AS, pa)
        def kfrag(off0, off1):
            nonlocal nk
            kf = KF + 4 * (nk & 3); nk += 1
            b.i("ds_read_b64 %s, v%d offset:%d" % (v(kf, 2), aK, off0))
            b.i("ds_read_b64 %s, v%d offset:%d" % (v(kf + 2, 2), aK, off1))
            return kf
        for t in need4[tp]:
            D = t - tp
            for (e0, op) in ((1, pp), (3, pp + 4)):
                kf = kfrag(2 * (B4(e0) + 76 - 16 * D), 2 * (B4(e0 + 1) + 76 - 16 * D))
                mf(t, op, kf)
        for t in need8[tp]:
            D = t - tp
            kf = kfrag(2 * (B8(1) + 124 - 16 * D), 2 * (B8(2) + 124 - 16 * D))
            mf(t, pp + 8, kf)
    est = b.emit(k)
    k.c("scheduled estimate: %d cycles" % est)
    return acc

def conv_epilogue(k, h):
    tiles = TILES[h]; ACC = 16
    b = Block()
    for i, t in enumerate(tiles):
        b.i("ds_read_b64 %s, v13 offset:%d" % (v(56 + 2 * i, 2), UPAD + 512 * t))
    for i, t in enumerate(tiles):
        a = ACC + 4 * i; uu = 56 + 2 * i; x = 64 + 4 * i; o = 80 + 2 * i
        b.i("v_lshlrev_b32 v%d, 16, v%d" % (x, uu)); b.i("v_and_b32 v%d, 0xffff0000, v%d" % (x + 1, uu))
        b.i("v_lshlrev_b32 v%d, 16, v%d" % (x + 2, uu + 1)); b.i("v_and_b32 v%d, 0xffff0000, v%d" % (x + 3, uu + 1))
        b.i("v_pk_fma_f32 %s, %s, s[56:57], %s" % (v(a, 2), v(x, 2), v(a, 2)))
        b.i("v_pk_fma_f32 %s, %s, s[56:57], %s" % (v(a + 2, 2), v(x + 2, 2), v(a + 2, 2)))
        b.i("v_cvt_pk_bf16_f32 v%d, v%d, v%d" % (o, a, a + 1)); b.i("v_cvt_pk_bf16_f32 v%d, v%d, v%d" % (o + 1, a + 2, a + 3))
        b.i("s_mov_b32 s%d, %d" % (62 + i, t * 16 * 14336))
        b.i("buffer_store_dwordx2 %s, v14, s[8:11], s%d offen" % (v(o, 2), 62 + i))
    b.emit(k)

def role_conv(k):
    k.i("v_lshrrev_b32 v1, 6, v0")
    k.i("v_and_b32 v2, 63, v0")
    k.i("v_readfirstlane_b32 s3, v1")
    k.i("s_lshl_b32 s15, s2, 2")
    k.i("s_lshr_b32 s12, s3, 1")
    k.i("s_and_b32 s13, s3, 1")
    k.i("s_lshl_b32 s14, s2, 1")
    k.i("s_add_u32 s14, s14, s12")
    k.i("s_lshl_b32 s48, s13, 6")
    k.i("v_add_u32 v3, s48, v2")
    k.i("s_mul_i32 s49, s14, %d" % KSTR)
    k.i("s_add_u32 s49, s49, 0x%x" % WS_KR)
    k.i("v_lshl_add_u32 v4, v3, 4, s49")
    k.i("s_lshl_b32 s50, s14, 12")
    k.i("s_add_u32 s50, s50, 0x%x" % WS_UT)
    k.i("v_lshl_add_u32 v5, v3, 4, s50")
    k.i("s_waitcnt lgkmcnt(0)")
    stamp(k, 1)
    ws_srd(k)
    k.i("s_load_dword s51, %s, s15" % sp(P_DSKIP))
    for e in range(3):
        k.i("buffer_load_dwordx4 %s, v4, s[8:11], 0 offen offset:%d" % (v(16 + 4 * e, 4), 4 * e))
    for i in range(2):
        k.i("buffer_load_dwordx4 %s, v5, s[8:11], 0 offen offset:%d" % (v(40 + 4 * i, 4), 2048 * i))
    k.i("s_mul_i32 s52, s12, %d" % CHL)
    k.i("s_add_u32 s52, s52, %d" % GUARD)
    k.i("s_add_u32 s53, s52, %d" % UOFF)
    k.i("v_lshl_add_u32 v6, v3, 4, s52")
    k.i("v_lshl_add_u32 v7, v3, 4, s53")
    for j in range(4): k.i("v_mov_b32 v%d, 0" % (32 + j))
    k.i("v_cmp_gt_u32 vcc, %d, v3" % (UPAD // 16))
    k.i("s_and_saveexec_b64 s[60:61], vcc")
    k.i("ds_write_b128 v7, v[32:35]")
    k.i("s_mov_b64 exec, s[60:61]")
    k.i("v_and_b32 v48, 15, v2")
    k.i("v_lshrrev_b32 v49, 4, v2")
    k.i("v_and_b32 v50, 3, v48")
    k.i("v_lshrrev_b32 v51, 2, v48")
    k.i("v_mul_u32_u24 v50, %d, v50" % CSTR)
    k.i("v_lshlrev_b32 v51, 3, v51")
    k.i("v_sub_u32 v50, v50, v51")
    k.i("v_add_u32 v50, s52, v50")
    k.i("v_lshl_add_u32 v10, v49, 4, v50")
    k.i("v_lshl_add_u32 v11, v49, 3, v50")
    k.i("v_lshlrev_b32 v51, 5, v48")
    k.i("v_add_u32 v51, s53, v51")
    k.i("v_lshl_add_u32 v12, v49, 4, v51")
    k.i("v_lshl_add_u32 v13, v49, 3, v51")
    k.i("v_mul_u32_u24 v14, 14336, v48")
    k.i("v_lshl_add_u32 v14, v49, 3, v14")
    k.i("s_lshl_b32 s59, s14, 5")
    k.i("s_add_u32 s59, s59, 0x%x" % WS_AT)
    k.i("v_add_u32 v14, s59, v14")
    k.i("v_lshlrev_b32 v52, 3, v49")
    k.i("v_sub_u32 v52, v52, v48")
    k.i("s_mov_b32 s54, 0x8001"); k.i("s_mov_b32 s55, 0x10001")
    for (reg, lo, hi, val) in ((120, 11, 13, 0x3f80), (124, 6, 10, 0x3f80), (128, 3, 5, 0x3f80), (132, 5, 11, 0x3f80), (136, 4, 12, 0x3f80), (140, 12, 13, 0xffff)):
        n = hi - lo + 1
        k.i("v_add_u32 v53, %d, v52" % (20 - lo))
        k.i("v_med3_i32 v53, v53, 0, 31")
        k.i("s_mov_b32 s56, 0x%x" % (((1 << n) - 1) << 20))
        k.i("v_lshrrev_b32_e64 v53, v53, s56")
        for p in range(4):
            k.i("v_bfe_u32 v54, v53, %d, 2" % (2 * p))
            k.i("v_mul_u32_u24 v54, 0x8001, v54")
            k.i("v_and_b32 v54, s55, v54")
            k.i("v_mul_u32_u24 v%d, 0x%x, v54" % (reg + p, val))
    k.i("s_waitcnt vmcnt(2)")
    stamp(k, 2)
    L0, L1, LX = 16, 20, 24
    k.i("ds_write_b128 v6, %s offset:%d" % (v(L0, 4), 3 * CSTR))
    k.i("ds_write_b128 v6, %s offset:%d" % (v(L1, 4), 1 * CSTR))
    for j in range(4): k.i("v_alignbit_b32 v%d, v%d, v%d, 16" % (28 + j, L1 + j, L0 + j))
    for j in range(4): k.i("v_alignbit_b32 v%d, v%d, v%d, 16" % (36 + j, LX + j, L1 + j))
    k.i("ds_write_b128 v6, v[28:31] offset:%d" % (2 * CSTR))
    k.i("ds_write_b128 v6, v[36:39] offset:%d" % (0 * CSTR))
    k.i("s_waitcnt vmcnt(0)")
    k.i("ds_write_b128 v7, v[40:43] offset:%d" % UPAD)
    k.i("ds_write_b128 v7, v[44:47] offset:%d" % (UPAD + 2048))
    k.i("s_lshl_b32 s58, s12, 4")
    k.i("v_mov_b32 v53, s52")
    k.i("s_waitcnt lgkmcnt(0)")
    k.i("s_lshr_b32 s51, s51, s58")
    k.i("s_lshl_b32 s56, s51, 16")
    k.i("s_mov_b32 s57, s56")
    k.i("s_barrier")
    stamp(k, 3)
    k.i("ds_read_u16 v54, v53 offset:%d" % (3 * CSTR + 2 * 752))
    k.i("s_waitcnt lgkmcnt(0)")
    k.i("v_lshl_or_b32 v54, v54, 16, v54")
    for p in range(4): k.i("v_and_b32 v%d, v54, v%d" % (160 + p, 140 + p))
    k.i("s_cmp_eq_u32 s13, 0")
    k.i("s_cbranch_scc0 L_cv_h1")
    conv_main(k, 0)
    stamp(k, 5)
    conv_epilogue(k, 0)
    endpgm(k, 1)
    k.label("L_cv_h1")
    conv_main(k, 1)
    stamp(k, 5)
    conv_epilogue(k, 1)
    endpgm(k, 1)

INB, EXB = 0, 9216

def fi(x):
    return {0: "0", 1: "1.0", 2: "2.0", 4: "4.0"}.get(x, f32(x))

def role_col(k):
    BR, BI, AR, AI, TC, TS, DA, ACR, ACI, P, WW = 16, 32, 48, 64, 80, 88, 96, 128, 136, 144, 152
    k.i("v_lshrrev_b32 v1, 6, v0")
    k.i("v_and_b32 v2, 63, v0")
    k.i("v_readfirstlane_b32 s3, v1")
    k.i("s_sub_u32 s12, s2, %d" % K2_NC)
    k.i("s_lshr_b32 s13, s12, 4"); k.i("s_add_u32 s13, s13, 1")
    k.i("s_and_b32 s14, s12, 15")
    k.i("s_sub_u32 s48, s12, 208")
    k.i("s_cmp_ge_u32 s12, 208")
    k.i("s_cselect_b32 s13, 0, s13"); k.i("s_cselect_b32 s14, s48, s14")
    k.i("s_sub_u32 s48, s12, 217")
    k.i("s_cmp_ge_u32 s12, 217")
    k.i("s_cselect_b32 s13, 14, s13"); k.i("s_cselect_b32 s14, s48, s14")
    k.i("s_lshl_b32 s15, s13, 4"); k.i("s_add_u32 s15, s15, s14")
    k.i("s_mul_i32 s48, s14, 28"); k.i("s_add_u32 s48, s48, s13")
    k.i("s_sub_u32 s49, 448, s48")
    k.i("s_cmp_gt_u32 s48, 224")
    k.i("s_cselect_b32 s50, 1, 0")
    k.i("s_cselect_b32 s49, s49, s48")
    k.i("s_lshl_b32 s51, s15, 13")
    k.i("s_add_u32 s51, s51, 0x%x" % WS_X1)
    k.i("v_lshl_add_u32 v3, v0, 4, s51")
    k.i("v_and_b32 v4, 15, v2")
    k.i("v_lshrrev_b32 v5, 4, v2")
    k.i("s_lshl_b32 s52, s3, 4")
    k.i("v_add_u32 v6, s52, v4")
    k.i("v_lshlrev_b32 v7, 2, v5")
    k.i("v_lshl_add_u32 v8, v6, 5, v7")
    k.i("v_sub_u32 v9, 64, v6"); k.i("v_and_b32 v9, 63, v9")
    k.i("v_lshlrev_b32 v9, 5, v9"); k.i("v_sub_u32 v9, v9, v7"); k.i("v_add_u32 v9, 12, v9")
    k.i("v_cmp_eq_u32 vcc, 0, v6")
    k.i("v_addc_co_u32 v9, vcc, 0, v9, vcc")
    k.i("s_cmp_eq_u32 s50, 1")
    k.i("s_cselect_b64 vcc, -1, 0")
    k.i("v_cndmask_b32 v8, v8, v9, vcc")
    k.i("s_lshl_b32 s53, s49, 13")
    k.i("s_add_u32 s53, s53, 0x%x" % WS_WT)
    k.i("v_lshl_add_u32 v8, v8, 2, s53")
    k.i("s_waitcnt lgkmcnt(0)")
    stamp(k, 1)
    ws_srd(k)
    k.i("buffer_load_dwordx4 %s, v3, s[8:11], 0 offen" % v(DA, 4))
    k.i("s_mov_b32 s54, 4096")
    k.i("buffer_load_dwordx4 %s, v3, s[8:11], s54 offen" % v(DA + 4, 4))
    k.i("buffer_load_dwordx4 %s, v8, s[8:11], 0 offen" % v(WW, 4))
    k.i("buffer_load_dwordx4 %s, v8, s[8:11], 0 offen offset:64" % v(WW + 4, 4))
    k.i("s_load_dword s55, %s, s53" % sp(P_WS))
    sc2 = 2.0 / (2048 * 448); sc1 = 1.0 / (2048 * 448)
    k.i("s_mov_b32 s56, %s" % f32(sc2))
    k.i("s_cmp_eq_u32 s48, 0"); k.i("s_cselect_b32 s56, %s, s56" % f32(sc1))
    k.i("s_cmp_eq_u32 s48, 224"); k.i("s_cselect_b32 s56, %s, s56" % f32(sc1))
    k.i("s_mov_b32 s57, s56")
    k.i("s_lshl_b32 s58, s50, 31"); k.i("s_xor_b32 s58, s58, s56"); k.i("s_mov_b32 s59, s58")
    k.i("v_and_b32 v9, 7, v0")
    k.i("v_lshlrev_b32 v9, 2, v9")
    k.i("v_lshrrev_b32 v10, 3, v0")
    k.i("v_xor_b32 v10, v10, v9")
    k.i("v_lshlrev_b32 v10, 2, v10")
    k.i("v_mul_u32_u24 v9, 288, v9")
    k.i("v_add_u32 v9, v9, v10")
    k.i("v_lshrrev_b32 v10, 2, v4")
    k.i("v_xor_b32 v10, v10, v5")
    k.i("v_lshlrev_b32 v10, 4, v10")
    k.i("v_mul_u32_u24 v11, 288, v4")
    k.i("v_add_u32 v10, v10, v11")
    k.i("v_xor_b32 v11, v4, v7")
    k.i("v_lshlrev_b32 v11, 2, v11")
    k.i("v_mul_u32_u24 v12, 288, v7")
    k.i("v_add_u32 v11, v11, v12")
    k.i("s_lshl_b32 s60, s3, 6"); k.i("s_add_u32 s60, s60, %d" % EXB)
    k.i("s_xor_b32 s61, s3, 1"); k.i("s_lshl_b32 s61, s61, 6"); k.i("s_add_u32 s61, s61, %d" % (EXB + 4608))
    k.i("v_add_u32 v12, s61, v11")
    k.i("v_add_u32 v11, s60, v11")
    k.i("v_lshlrev_b32 v13, 15, v6")
    k.i("v_lshl_add_u32 v13, v5, 4, v13")
    k.i("s_lshl_b32 s62, s15, 6"); k.i("s_add_u32 s62, s62, 0x%x" % WS_Z)
    k.i("v_add_u32 v13, s62, v13")
    k.i("v_cvt_f32_u32 v14, v6")
    k.i("v_cvt_f32_u32 v15, v7")
    t0, t1, t2, t3 = 160, 161, 162, 163
    k.i("v_mul_f32 v%d, %s, v14" % (t3, f32(-1.0 / 64)))
    for q in range(2):
        for i in range(4):
            k.i("v_add_f32 v%d, %s, v15" % (t0, fi(16 * q + i)))
            k.i("v_mul_f32 v%d, v%d, v%d" % (t0, t0, t3))
            k.i("v_cos_f32 v%d, v%d" % (t1, t0)); k.i("v_sin_f32 v%d, v%d" % (t2, t0))
            cvtpk(k, BR + 4 * q + i, t1, t2, neg_hi=True)
            cvtpk(k, BI + 4 * q + i, t2, t1)
    k.i("v_and_b32 v%d, 1, v4" % t0)
    k.i("v_mul_u32_u24 v%d, 0x8000, v%d" % (t0, t0))
    k.i("v_lshl_or_b32 v164, v%d, 16, v%d" % (t0, t0))
    for j in range(8):
        k.i("v_xor_b32 v%d, v164, v%d" % (BR + 8 + j, BR + j))
        k.i("v_xor_b32 v%d, v164, v%d" % (BI + 8 + j, BI + j))
    k.i("v_cvt_f32_u32 v%d, v4" % t3)
    k.i("v_mul_f32 v%d, %s, v%d" % (t3, f32(-1.0 / 32), t3))
    for j in range(4):
        k.i("v_add_f32 v%d, %s, v15" % (t0, fi(j)))
        k.i("v_mul_f32 v%d, v%d, v%d" % (t0, t0, t3))
        k.i("v_cos_f32 v%d, v%d" % (t1, t0)); k.i("v_sin_f32 v%d, v%d" % (t2, t0))
        cvtpk(k, AR + j, t1, t2, neg_hi=True)
        cvtpk(k, AI + j, t2, t1)
    k.i("s_mov_b32 s63, 0x80008000")
    for X in (AR, AI):
        for j in range(4):
            k.i("v_xor_b32 v%d, v164, v%d" % (X + 4 + j, X + j))
        for Tk in range(2):
            for j in range(4):
                src = X + 4 * Tk + j
                if j & 1: k.i("v_xor_b32 v%d, s63, v%d" % (X + 8 + 4 * Tk + j, src))
                else: k.i("v_mov_b32 v%d, v%d" % (X + 8 + 4 * Tk + j, src))
    k.i("v_mul_f32 v%d, %s, v14" % (t3, f32(-1.0 / 2048)))
    for T in range(2):
        for j in range(4):
            k.i("v_add_f32 v%d, %s, v15" % (t0, fi(16 * T + j)))
            k.i("v_mul_f32 v%d, v%d, v%d" % (t0, t0, t3))
            k.i("v_cos_f32 v%d, v%d" % (TC + 4 * T + j, t0)); k.i("v_sin_f32 v%d, v%d" % (TS + 4 * T + j, t0))
    stamp(k, 2)
    k.i("s_waitcnt vmcnt(2)")
    stamp(k, 3)
    for i in range(2):
        for e in range(4):
            k.i("ds_write_b32 v9, v%d offset:%d" % (DA + 4 * i + e, INB + 128 * i + 288 * e))
    k.i("s_waitcnt lgkmcnt(0)")
    k.i("s_barrier")
    stamp(k, 4)
    def big_stage(region):
        for T in range(2):
            for q in range(4):
                k.i("ds_read_b128 %s, v10 offset:%d" % (v(DA + 16 * T + 4 * q, 4), region + 4608 * T + 64 * (q ^ T)))
        for T in range(2):
            for q in range(4):
                k.i("s_waitcnt lgkmcnt(%d)" % (7 - 4 * T - q))
                a = DA + 16 * T + 4 * q
                mfma(k, ACR + 4 * T, a, BR + 4 * q, "0" if q == 0 else ACR + 4 * T)
                mfma(k, ACI + 4 * T, a, BI + 4 * q, "0" if q == 0 else ACI + 4 * T)
    def small_stage(outr, outi):
        for To in range(2):
            for Tk in range(2):
                mfma(k, outr + 4 * To, AR + 4 * (2 * To + Tk), P + 4 * Tk, "0" if Tk == 0 else outr + 4 * To)
                mfma(k, outi + 4 * To, AI + 4 * (2 * To + Tk), P + 4 * Tk, "0" if Tk == 0 else outi + 4 * To)
    big_stage(INB)
    for T in range(2):
        twiddle4(k, ACR + 4 * T, ACI + 4 * T, TC + 4 * T, TS + 4 * T, t0, t2)
        for j in range(4): cvtpk(k, P + 4 * T + j, ACR + 4 * T + j, ACI + 4 * T + j)
    XR, XI = DA, DA + 8
    small_stage(XR, XI)
    stamp(k, 5)
    k.i("s_waitcnt vmcnt(0) lgkmcnt(0)")
    k.i("s_cmp_eq_u32 s50, 0")
    k.i("s_cbranch_scc1 L_col_norev")
    for j in range(4): k.i("v_swap_b32 v%d, v%d" % (WW + j, WW + 7 - j))
    k.i("s_cmp_eq_u32 s3, 0")
    k.i("s_cbranch_scc0 L_col_norev")
    k.i("v_writelane_b32 v%d, s55, 0" % WW)
    k.label("L_col_norev")
    WR, WI = DA + 16, DA + 24
    for j in range(8):
        k.i("v_lshlrev_b32 v%d, 16, v%d" % (WR + j, WW + j))
        k.i("v_and_b32 v%d, 0xffff0000, v%d" % (WI + j, WW + j))
    for j in range(0, 8, 2):
        k.i("v_pk_mul_f32 %s, %s, s[56:57]" % (v(WR + j, 2), v(WR + j, 2)))
        k.i("v_pk_mul_f32 %s, %s, s[58:59]" % (v(WI + j, 2), v(WI + j, 2)))
    for T in range(2):
        twiddle4(k, XR + 4 * T, XI + 4 * T, WR + 4 * T, WI + 4 * T, t0, t2)
        for j in range(4): cvtpk(k, P + 4 * T + j, XI + 4 * T + j, XR + 4 * T + j)
    small_stage(ACR, ACI)
    for T in range(2):
        twiddle4(k, ACR + 4 * T, ACI + 4 * T, TC + 4 * T, TS + 4 * T, t0, t2)
        for j in range(4): cvtpk(k, P + 4 * T + j, ACR + 4 * T + j, ACI + 4 * T + j)
    for T in range(2):
        for j in range(4):
            k.i("ds_write_b32 v%d, v%d offset:%d" % (11 + T, P + 4 * T + j, 288 * j))
    k.i("s_waitcnt lgkmcnt(0)")
    k.i("s_barrier")
    stamp(k, 6)
    big_stage(EXB)
    k.i("s_mov_b32 s54, 16384")
    for T in range(2):
        for j in range(4): cvtpk(k, P + 4 * T + j, ACI + 4 * T + j, ACR + 4 * T + j)
        k.i("buffer_store_dwordx4 %s, v13, s[8:11], %s offen" % (v(P + 4 * T, 4), "0" if T == 0 else "s54"))
    endpgm(k, 1)

def gen_k2(k, name):
    kernel_header(k, name)
    diag_begin(k)
    load_kernargs(k)
    k.i("s_cmp_lt_u32 s2, %d" % K2_NC)
    k.i("s_cbranch_scc1 L_k2_conv")
    k.i("s_cmp_lt_u32 s2, %d" % K2_GRID)
    k.i("s_cbranch_scc1 L_k2_col")
    k.i("s_endpgm")
    k.label("L_k2_conv"); role_conv(k)
    k.label("L_k2_col"); role_col(k)
```

```python
from common import *

K3_GRID = 128
K3_BLOCK = 256
ZRS = 1040
ZI = 0
A1 = 16 * ZRS
A2 = A1 + 14336
ARS = 912
K3_LDS = A2 + 16 * ARS + 128
K3_VGPR = 128

def fi(x):
    return {0: "0", 1: "1.0", 2: "2.0", 4: "4.0"}.get(x, f32(x))

def gen_k3(k, name):
    kernel_header(k, name)
    diag_begin(k)
    load_kernargs(k)
    k.i("s_cmp_lt_u32 s2, %d" % K3_GRID)
    k.i("s_cbranch_scc1 L_k3_go")
    k.i("s_endpgm")
    k.label("L_k3_go")
    k.i("v_lshrrev_b32 v1, 6, v0")
    k.i("v_and_b32 v2, 63, v0")
    k.i("v_readfirstlane_b32 s3, v1")
    k.i("s_lshl_b32 s12, s2, 14"); k.i("s_add_u32 s12, s12, 0x%x" % WS_Z)
    k.i("v_lshl_add_u32 v3, v0, 4, s12")
    k.i("s_mul_i32 s13, s2, 14336"); k.i("s_add_u32 s13, s13, 0x%x" % WS_AT)
    k.i("v_lshl_add_u32 v4, v0, 4, s13")
    k.i("v_lshrrev_b32 v5, 2, v2")
    k.i("s_cmp_eq_u32 s3, 0"); k.i("s_cselect_b32 s14, 9, 16")
    k.i("s_cmp_eq_u32 s3, 2"); k.i("s_cselect_b32 s15, 8, 16")
    k.i("s_cmp_eq_u32 s3, 3"); k.i("s_cselect_b32 s15, 0, s15")
    k.i("v_mov_b32 v8, 0x7ffffff0")
    k.i("v_cmp_gt_u32 vcc, s14, v5")
    k.i("v_cndmask_b32 v6, v8, v3, vcc")
    k.i("v_cmp_gt_u32 vcc, s15, v5")
    k.i("v_add_u32 v7, 0x3000, v3")
    k.i("v_cndmask_b32 v7, v8, v7, vcc")
    k.i("s_lshl_b32 s48, s2, 4"); k.i("s_lshl_b32 s49, s3, 2"); k.i("s_add_u32 s48, s48, s49")
    k.i("s_lshl_b32 s50, s48, 2"); k.i("s_add_u32 s50, s50, 0x%x" % WS_G)
    k.i("s_waitcnt lgkmcnt(0)")
    stamp(k, 1)
    ws_srd(k)
    k.i("s_load_dwordx4 s[60:63], %s, s50" % sp(P_WS))
    k.i("s_mov_b32 s51, 0x1000"); k.i("s_mov_b32 s52, 0x2000"); k.i("s_mov_b32 s53, 0x3000")
    ZL, AL = 16, 32
    k.i("buffer_load_dwordx4 %s, v6, s[8:11], 0 offen" % v(ZL, 4))
    k.i("buffer_load_dwordx4 %s, v3, s[8:11], s51 offen" % v(ZL + 4, 4))
    k.i("buffer_load_dwordx4 %s, v3, s[8:11], s52 offen" % v(ZL + 8, 4))
    k.i("buffer_load_dwordx4 %s, v7, s[8:11], 0 offen" % v(ZL + 12, 4))
    for i in range(3):
        k.i("buffer_load_dwordx4 %s, v4, s[8:11], %s offen" % (v(AL + 4 * i, 4), "0" if i == 0 else "s%d" % (50 + i)))
    k.i("s_cmp_lt_u32 s3, 2")
    k.i("s_cbranch_scc0 L_k3_noa3")
    k.i("buffer_load_dwordx4 %s, v4, s[8:11], s53 offen" % v(AL + 12, 4))
    k.label("L_k3_noa3")
    srd(k, 56, P_OUT, 2048 * 896)
    k.i("v_and_b32 v9, 3, v2")
    k.i("v_mul_u32_u24 v9, %d, v9" % (4 * ZRS))
    k.i("s_lshl_b32 s54, s3, 6")
    k.i("v_add_u32 v9, s54, v9")
    k.i("v_lshl_add_u32 v10, v5, 2, v9")
    k.i("v_xor_b32 v11, 8, v5")
    k.i("v_lshl_add_u32 v11, v11, 2, v9")
    k.i("v_lshlrev_b32 v12, 4, v0")
    k.i("v_add_u32 v12, %d, v12" % A1)
    k.i("v_and_b32 v13, 15, v2")
    k.i("v_lshrrev_b32 v14, 4, v2")
    k.i("v_lshlrev_b32 v15, 3, v2")
    k.i("s_lshl_b32 s54, s3, 9"); k.i("s_add_u32 s54, s54, %d" % A1)
    k.i("v_add_u32 v15, s54, v15")
    k.i("v_mul_u32_u24 v48, %d, v13" % ARS)
    k.i("v_lshl_add_u32 v48, v14, 3, v48")
    k.i("s_lshl_b32 s54, s3, 5"); k.i("s_add_u32 s54, s54, %d" % A2)
    k.i("v_add_u32 v48, s54, v48")
    k.i("v_lshrrev_b32 v49, 2, v13"); k.i("v_and_b32 v49, 1, v49"); k.i("v_lshlrev_b32 v49, 1, v49")
    k.i("v_xor_b32 v49, v49, v14")
    k.i("v_lshlrev_b32 v49, 4, v49")
    k.i("v_lshl_add_u32 v49, v13, 6, v49")
    k.i("s_mul_i32 s54, s3, %d" % (4 * ZRS))
    k.i("v_add_u32 v49, s54, v49")
    k.i("v_lshlrev_b32 v50, 3, v14")
    k.i("v_lshl_add_u32 v50, v13, 5, v50")
    k.i("s_mul_i32 s54, s48, 896")
    k.i("v_add_u32 v51, s54, v50")
    k.i("s_mul_i32 s54, s3, %d" % (4 * ARS)); k.i("s_add_u32 s54, s54, %d" % A2)
    k.i("v_add_u32 v50, s54, v50")
    GR, GI, TC, TS, H0, H1 = 52, 56, 60, 64, 68, 72
    t0, t1, t2, t3 = 76, 77, 78, 79
    k.i("v_cvt_f32_u32 v80, v13")
    k.i("v_lshlrev_b32 v81, 2, v14"); k.i("v_cvt_f32_u32 v81, v81")
    k.i("v_mul_f32 v%d, %s, v80" % (t3, f32(1.0 / 16)))
    for j in range(4):
        k.i("v_add_f32 v%d, %s, v81" % (t0, fi(j))); k.i("v_mul_f32 v%d, v%d, v%d" % (t0, t0, t3))
        k.i("v_cos_f32 v%d, v%d" % (t1, t0)); k.i("v_sin_f32 v%d, v%d" % (t2, t0))
        cvtpk(k, GR + j, t1, t2, neg_hi=True); cvtpk(k, GI + j, t2, t1)
    k.i("v_mul_f32 v%d, %s, v80" % (t3, f32(1.0 / 448)))
    for j in range(4):
        k.i("v_add_f32 v%d, %s, v81" % (t0, fi(j))); k.i("v_mul_f32 v%d, v%d, v%d" % (t0, t0, t3))
        k.i("v_cos_f32 v%d, v%d" % (TC + j, t0)); k.i("v_sin_f32 v%d, v%d" % (TS + j, t0))
    for tile, H in ((0, H0), (1, H1)):
        k.i("v_add_f32 v%d, %s, v80" % (t3, fi(16 * tile)))
        k.i("v_mul_f32 v%d, %s, v%d" % (t3, f32(1.0 / 28), t3))
        for j in range(4):
            k.i("v_add_f32 v%d, %s, v81" % (t0, fi(j))); k.i("v_mul_f32 v%d, v%d, v%d" % (t0, t0, t3))
            k.i("v_cos_f32 v%d, v%d" % (t1, t0)); k.i("v_sin_f32 v%d, v%d" % (t2, t0))
            cvtpk(k, H + j, t1, t2, neg_hi=True)
    k.i("v_cmp_gt_u32 vcc, 3, v14")
    k.i("v_cndmask_b32 v%d, 0, v%d, vcc" % (H0 + 3, H0 + 3))
    k.i("v_cndmask_b32 v%d, 0, v%d, vcc" % (H1 + 3, H1 + 3))
    stamp(k, 2)
    k.i("s_waitcnt vmcnt(0) lgkmcnt(0)")
    stamp(k, 3)
    for rr in range(4):
        k.i("s_mov_b32 s%d, s%d" % (64 + 2 * rr, 60 + rr)); k.i("s_mov_b32 s%d, s%d" % (65 + 2 * rr, 60 + rr))
    for i in range(3):
        k.i("ds_write_b128 v12, %s offset:%d" % (v(AL + 4 * i, 4), 4096 * i))
    k.i("s_cmp_lt_u32 s3, 2")
    k.i("s_cbranch_scc0 L_k3_noa3w")
    k.i("ds_write_b128 v12, %s offset:%d" % (v(AL + 12, 4), 4096 * 3))
    k.label("L_k3_noa3w")
    for i in range(4):
        for e in range(4):
            k.i("ds_write_b32 v%d, v%d offset:%d" % (10 + (i & 1), ZL + 4 * i + e, ZI + 256 * i + ZRS * e))
    k.i("s_waitcnt lgkmcnt(0)")
    k.i("s_barrier")
    stamp(k, 4)
    for it in range(7):
        k.i("ds_read_b64_tr_b16 %s, v15 offset:%d" % (v(16 + 2 * it, 2), 2048 * it))
    ZA = 32
    for rr in range(4):
        k.i("ds_read_b128 %s, v49 offset:%d" % (v(ZA + 4 * rr, 4), ZI + ZRS * rr))
    for it in range(7):
        k.i("s_waitcnt lgkmcnt(10)")
        k.i("ds_write_b64 v48, %s offset:%d" % (v(16 + 2 * it, 2), 128 * it))
    DR, DI = 84, 100
    k.i("s_waitcnt lgkmcnt(7)")
    for rr in range(4):
        mfma(k, DR + 4 * rr, ZA + 4 * rr, GR, "0")
        mfma(k, DI + 4 * rr, ZA + 4 * rr, GI, "0")
    k.i("s_waitcnt lgkmcnt(0)")
    k.i("s_barrier")
    stamp(k, 5)
    AV = 16
    for rr in range(4):
        for tile in range(2):
            k.i("ds_read_b64 %s, v50 offset:%d" % (v(AV + 4 * rr + 2 * tile, 2), ARS * rr + 512 * tile))
    P = 32
    for rr in range(4):
        twiddle4(k, DR + 4 * rr, DI + 4 * rr, TC, TS, t0, t2)
        for j in range(4): cvtpk(k, P + 4 * rr + j, DR + 4 * rr + j, DI + 4 * rr + j)
    for rr in range(4):
        mfma(k, DR + 4 * rr, P + 4 * rr, H0, "0")
        mfma(k, DI + 4 * rr, P + 4 * rr, H1, "0")
    k.i("s_waitcnt lgkmcnt(0)")
    for rr in range(4):
        for tile in range(2):
            b = (DR if tile == 0 else DI) + 4 * rr; a = AV + 4 * rr + 2 * tile
            k.i("v_lshlrev_b32 v116, 16, v%d" % a); k.i("v_and_b32 v117, 0xffff0000, v%d" % a)
            k.i("v_lshlrev_b32 v118, 16, v%d" % (a + 1)); k.i("v_and_b32 v119, 0xffff0000, v%d" % (a + 1))
            k.i("v_pk_add_f32 v[116:117], v[116:117], %s neg_lo:[0,1] neg_hi:[0,1]" % v(b, 2))
            k.i("v_pk_add_f32 v[118:119], v[118:119], %s neg_lo:[0,1] neg_hi:[0,1]" % v(b + 2, 2))
            g = 64 + 2 * rr
            k.i("v_pk_fma_f32 v[116:117], v[116:117], s[%d:%d], %s" % (g, g + 1, v(b, 2)))
            k.i("v_pk_fma_f32 v[118:119], v[118:119], s[%d:%d], %s" % (g, g + 1, v(b + 2, 2)))
            o = 120 + 2 * tile
            cvtpk(k, o, 116, 117); cvtpk(k, o + 1, 118, 119)
            if tile == 1:
                k.i("s_mov_b32 exec_lo, 0x0fff0fff"); k.i("s_mov_b32 exec_hi, 0x0fff0fff")
            k.i("buffer_store_dwordx2 %s, v51, s[56:59], 0 offen offset:%d" % (v(o, 2), 896 * rr + 512 * tile))
            if tile == 1: k.i("s_mov_b64 exec, -1")
    endpgm(k, 2)
```

```python
from asmlib import Ins, isv

def cost(ins):
    mn = ins.mn
    if ins.cls == "mfma": return 4.0
    if ins.cls == "ds":
        if "b128" in mn: return 13.0 if "write" in mn else 9.5
        if "write" in mn: return 7.0 if "addtid" in mn else (9.0 if "b32" in mn else 10.0)
        return 8.0
    if ins.cls == "vmem": return 10.0
    if ins.cls == "valu": return 8.5 if ins.trans else 4.6
    return 2.0

def latency(p, c):
    if p.cls == "mfma":
        if c.cls == "mfma" and p.dst == c.srcC and not (p.dst & c.ab): return 16.0 * (p.passes // 4)
        return 16.0 * (p.passes // 4) + 30.0
    if p.cls == "ds": return 128.0
    if p.cls == "vmem": return 800.0
    if p.cls == "valu":
        base = cost(p)
        if c.cls == "mfma": return base + 8.0
        if p.trans: return base + 4.0
        return base
    return 4.0

class Block:
    def __init__(self, lds_lat=None):
        self.ins = []
        self.extra = []
    def i(self, text):
        self.ins.append(Ins(text)); return len(self.ins) - 1
    def order(self, a, b): self.extra.append((a, b))
    def emit(self, k, pre_ds=0, pre_vm=0, max_ds=14, drain=False):
        N = len(self.ins); I = self.ins
        preds = [dict() for _ in range(N)]
        lastw, readers = {}, {}
        last_dsw, ds_since_w, last_st, last_salu_scc = None, [], None, None
        for n, c in enumerate(I):
            for r in c.r:
                if r in lastw:
                    p = lastw[r]; preds[n][p] = max(preds[n].get(p, 0), latency(I[p], c))
            for r in c.w:
                if r in lastw:
                    p = lastw[r]
                    if not (I[p].cls == "mfma" and c.cls == "mfma" and I[p].dst == c.srcC):
                        preds[n][p] = max(preds[n].get(p, 0), latency(I[p], c) if I[p].cls in ("mfma", "ds", "vmem") else 1.0)
                for p in readers.get(r, []):
                    if p != n: preds[n][p] = max(preds[n].get(p, 0), 12.0 if (I[p].cls == "mfma" and r in I[p].srcC and c.cls == "valu") else 1.0)
            for r in c.r: readers.setdefault(r, []).append(n)
            for r in c.w: lastw[r] = n; readers[r] = []
            if c.cls == "ds":
                isw = "write" in c.mn
                if last_dsw is not None: preds[n][last_dsw] = max(preds[n].get(last_dsw, 0), 1.0)
                if isw:
                    for p in ds_since_w: preds[n][p] = max(preds[n].get(p, 0), 1.0)
                    last_dsw = n; ds_since_w = []
                else: ds_since_w.append(n)
            if c.cls == "vmem" and "store" in c.mn:
                if last_st is not None: preds[n][last_st] = max(preds[n].get(last_st, 0), 1.0)
                last_st = n
            if c.cls == "salu":
                if last_salu_scc is not None: preds[n][last_salu_scc] = max(preds[n].get(last_salu_scc, 0), 1.0)
                last_salu_scc = n
        for a, b in self.extra: preds[b][a] = max(preds[b].get(a, 0), 1.0)
        succ = [[] for _ in range(N)]
        for n in range(N):
            for p in preds[n]: succ[p].append(n)
        prio = [0.0] * N
        for n in range(N - 1, -1, -1):
            base = 16.0 if I[n].cls == "mfma" else cost(I[n])
            prio[n] = base + max([preds[sx][n] - base + prio[sx] if preds[sx][n] > base else prio[sx] for sx in succ[n]], default=0.0)
        issue = [None] * N
        npred = [len(preds[n]) for n in range(N)]
        ready = [n for n in range(N) if npred[n] == 0]
        t, mf_free = 0.0, 0.0
        dsq, vmq = [], []
        ds_done, vm_done = 0, 0
        loads_w = {}
        order = []
        while ready:
            best, bk = None, None
            for n in ready:
                c = I[n]
                rt = t
                for p, l in preds[n].items(): rt = max(rt, issue[p] + l)
                if c.cls == "mfma": rt = max(rt, mf_free)
                if c.cls == "ds" and len(dsq) + pre_ds - ds_done >= max_ds:
                    rt = max(rt, t + 64.0)
                key = (round(rt / 4.0), -prio[n], n)
                if bk is None or key < bk: best, bk = n, key
            n = best; c = I[n]
            rt = t
            for p, l in preds[n].items(): rt = max(rt, issue[p] + l)
            if c.cls == "mfma": rt = max(rt, mf_free)
            wd = wv = None
            for p in preds[n]:
                P = I[p]
                if (P.w & (c.r | c.w)):
                    if P.cls == "ds":
                        pos = dsq.index(p)
                        if pos >= ds_done: wd = pos if wd is None else max(wd, pos)
                    elif P.cls == "vmem":
                        pos = vmq.index(p)
                        if pos >= vm_done: wv = pos if wv is None else max(wv, pos)
            if c.cls == "ds" and len(dsq) - ds_done >= max_ds:
                pos = len(dsq) - max_ds
                wd = pos if wd is None else max(wd, pos)
            parts = []
            if wv is not None:
                parts.append("vmcnt(%d)" % min(63, len(vmq) - 1 - wv)); vm_done = wv + 1
            if wd is not None:
                a = min(15, len(dsq) - 1 - wd); parts.append("lgkmcnt(%d)" % a); ds_done = len(dsq) - a
            if parts: k.i("s_waitcnt " + " ".join(parts))
            k.i(c.text)
            issue[n] = rt
            t = rt + cost(c)
            if c.cls == "mfma": mf_free = rt + 16.0 * (c.passes // 4)
            if c.cls == "ds": dsq.append(n)
            if c.cls == "vmem": vmq.append(n)
            ready.remove(n); order.append(n)
            for sx in succ[n]:
                npred[sx] -= 1
                if npred[sx] == 0: ready.append(sx)
        assert len(order) == N
        if drain and len(dsq) > ds_done: k.i("s_waitcnt lgkmcnt(0)")
        return t
```

```python
import sys
from common import *
import k1
parts = sys.argv[2:] if len(sys.argv) > 2 else ["k1", "k2", "k3"]
hdr = open("gated_mix__ssm_conv_s4__spectral_gfnet__prompt.s.ref").read().split("\n")
head = [l for l in hdr if l.startswith(";") and "@launch" not in l and "Override launch" not in l and "grid=ceil" not in l]
k = Kern()
launch, desc = [], []
if "k1" in parts:
    launch.append("; @launch kernel=ssm_prep_kernel grid=(%d,1,1) block=(256,1,1) lds=%d" % (k1.K1_GRID, k1.K1_LDS))
if "k2" in parts:
    import k2
    launch.append("; @launch kernel=ssm_mix_kernel grid=(%d,1,1) block=(256,1,1) lds=%d" % (k2.K2_GRID, k2.K2_LDS))
if "k3" in parts and not k2.FUSE23:
    import k3
    launch.append("; @launch kernel=ssm_out_kernel grid=(%d,1,1) block=(%d,1,1) lds=%d" % (k3.K3_GRID, k3.K3_BLOCK, k3.K3_LDS))
k.raw('.amdgcn_target "amdgcn-amd-amdhsa--gfx950"')
k.raw(".text")
k.raw(".p2align 8")
k.raw("code_begin:")
if "k1" in parts: k1.gen_k1(k, "ssm_prep_kernel"); desc.append(kernel_desc("ssm_prep_kernel", 128))
if "k2" in parts: k2.gen_k2(k, "ssm_mix_kernel"); desc.append(kernel_desc("ssm_mix_kernel", k2.K2_VGPR))
if "k3" in parts and not k2.FUSE23: k3.gen_k3(k, "ssm_out_kernel"); desc.append(kernel_desc("ssm_out_kernel", k3.K3_VGPR))
k.raw("code_end:")
txt = "\n".join(head + launch) + "\n" + k.text() + '.section .rodata,"a"\n' + "".join(".p2align 6\n" + d for d in desc)
open(sys.argv[1], "w").write(txt)
print("instructions:", k.count, "auto nops:", k.nops, "bytes:", len(txt))
```

```python
from common import *
from sched import Block

import os
PREFETCH = int(os.environ.get('PREFETCH', '16'))
K1_NK, K1_NR, K1_NW = 224, 128, 64
K1_GRID = K1_NK + K1_NR + K1_NW
K1_LDS = 57664
TROW = 544
CHB = 53 * TROW

def role_kgen(k):
    W, CH, WP, D = 3, 12, 13, 14
    k.i("v_lshrrev_b32 v1, 6, v0")
    k.i("v_and_b32 v2, 63, v0")
    k.i("v_readfirstlane_b32 s3, v1")
    k.i("s_lshl_b32 s15, s2, 2")
    k.i("s_lshr_b32 s12, s3, 1")
    k.i("s_and_b32 s13, s3, 1")
    k.i("s_lshl_b32 s14, s2, 1")
    k.i("s_add_u32 s14, s14, s12")
    k.i("s_lshl_b32 s48, s14, 9")
    k.i("s_lshl_b32 s49, s13, 8")
    k.i("s_add_u32 s48, s48, s49")
    k.i("v_lshl_add_u32 v1, v2, 2, s48")
    if PREFETCH:
        k.i("s_cmp_lt_u32 s2, %d" % PREFETCH)
        k.i("s_cbranch_scc0 L_kg_nopf")
        code_prefetch(k, 120, "L_kg_pc")
        k.label("L_kg_nopf")
    k.i("s_waitcnt lgkmcnt(0)")
    stamp(k, 1)
    k.i("s_load_dword s50, %s, s15" % sp(P_LOGDT))
    for j, p in enumerate((P_ARE, P_AIM, P_BRE, P_BIM, P_CRE, P_CIM)):
        k.i("global_load_dword v%d, v1, %s" % (4 + j, sp(p)))
    ws_srd(k)
    k.i("s_mul_i32 s51, s12, %d" % CHB)
    k.i("s_add_u32 s52, s51, s49")
    k.i("s_mov_b32 m0, s52")
    k.i("v_and_b32 v10, 15, v2")
    k.i("v_lshrrev_b32 v11, 4, v2")
    k.i("v_mul_u32_u24 v12, %d, v10" % TROW)
    k.i("v_lshl_add_u32 v12, v11, 4, v12")
    k.i("v_add_u32 v72, s51, v12")
    k.i("s_mul_i32 s53, s13, %d" % (16 * TROW))
    k.i("s_add_u32 s53, s53, %d" % (21 * TROW))
    k.i("v_add_u32 v73, s53, v72")
    k.i("s_lshl_b32 s54, s13, 4")
    k.i("v_add_u32 v13, s54, v10")
    k.i("v_and_b32 v87, 3, v13")
    k.i("v_lshrrev_b32 v14, 2, v13")
    k.i("v_lshlrev_b32 v13, 5, v13")
    k.i("v_lshl_add_u32 v13, v14, 2, v13")
    k.i("v_add_u32 v13, s51, v13")
    k.i("v_max_u32 v14, 1, v11")
    k.i("v_lshlrev_b32_e64 v15, v14, 2")
    k.i("v_lshlrev_b32 v16, 4, v11")
    k.i("v_subrev_u32 v17, 1, v11")
    k.i("v_mul_u32_u24 v17, 1056, v17")
    k.i("v_cmp_gt_u32 vcc, 2, v11")
    k.i("v_cndmask_b32 v16, v17, v16, vcc")
    k.i("v_add_u32 v74, v13, v16")
    k.i("v_add_u32 v75, v74, v15")
    k.i("v_lshlrev_b32 v17, 1, v15")
    k.i("v_mov_b32 v18, 1056")
    k.i("v_cmp_eq_u32 vcc, 3, v11")
    k.i("v_cndmask_b32 v17, v17, v18, vcc")
    k.i("v_add_u32 v76, v74, v17")
    k.i("v_add_u32 v77, v76, v15")
    k.i("v_mul_u32_u24 v17, 4224, v11")
    k.i("v_add_u32 v78, v13, v17")
    k.i("v_cmp_eq_u32 vcc, 0, v87")
    k.i("v_cndmask_b32_e64 v87, 4, 8, vcc")
    k.i("v_sub_u32 v87, v74, v87")
    k.i("s_lshl_b32 s57, s13, 6")
    k.i("v_add_u32 v88, s57, v2")
    k.i("v_sub_u32 v89, 69, v88")
    k.i("v_lshlrev_b32 v89, 3, v89")
    k.i("v_mov_b32 v90, 1")
    k.i("v_mov_b32 v16, 2059")
    k.i("v_mov_b32 v17, 2056")
    k.i("v_cmp_eq_u32 vcc, 5, v88")
    k.i("v_cndmask_b32 v89, v89, v17, vcc")
    k.i("v_subrev_u32 v14, 74, v88")
    k.i("v_mul_u32_u24 v15, 43, v14")
    k.i("v_lshrrev_b32 v15, 8, v15")
    k.i("v_mul_u32_u24 v17, 6, v15")
    k.i("v_sub_u32 v17, v14, v17")
    k.i("v_lshlrev_b32 v18, 7, v17")
    k.i("v_sub_u32 v18, %d, v18" % (16 * 72 + 4))
    k.i("v_lshl_add_u32 v18, v15, 2, v18")
    k.i("v_cmp_le_u32 vcc, 74, v88")
    k.i("v_cndmask_b32 v89, v89, v18, vcc")
    k.i("v_mov_b32 v19, 16")
    k.i("v_cndmask_b32 v90, v90, v19, vcc")
    k.i("v_cmp_gt_u32 s[60:61], 2, v17")
    k.i("s_and_b64 s[60:61], s[60:61], vcc")
    k.i("v_subrev_u32 v14, 100, v88")
    k.i("v_cmp_le_u32 vcc, 110, v88")
    k.i("v_cndmask_b32_e64 v15, 0, 1, vcc")
    k.i("v_mul_u32_u24 v17, 10, v15")
    k.i("v_sub_u32 v17, v14, v17")
    k.i("v_lshlrev_b32 v18, 7, v17")
    k.i("v_sub_u32 v18, %d, v18" % (16 * 120 + 8))
    k.i("v_lshl_add_u32 v18, v15, 3, v18")
    k.i("v_cmp_le_u32 vcc, 100, v88")
    k.i("v_cndmask_b32 v89, v89, v18, vcc")
    k.i("s_andn2_b64 s[60:61], s[60:61], vcc")
    k.i("v_cmp_le_u32 s[62:63], 8, v17")
    k.i("s_and_b64 s[62:63], s[62:63], vcc")
    k.i("s_or_b64 s[60:61], s[60:61], s[62:63]")
    k.i("v_cmp_gt_u32 vcc, 5, v88"); k.i("s_or_b64 s[60:61], s[60:61], vcc")
    k.i("v_subrev_u32 v14, 70, v88"); k.i("v_cmp_gt_u32 vcc, 4, v14"); k.i("s_or_b64 s[60:61], s[60:61], vcc")
    k.i("v_subrev_u32 v14, 98, v88"); k.i("v_cmp_gt_u32 vcc, 2, v14"); k.i("s_or_b64 s[60:61], s[60:61], vcc")
    k.i("v_cmp_le_u32 vcc, 120, v88"); k.i("s_or_b64 s[60:61], s[60:61], vcc")
    k.i("v_cndmask_b32 v89, v89, v16, s[60:61]")
    k.i("v_cndmask_b32_e64 v90, v90, 0, s[60:61]")
    for i in range(8):
        k.i("v_mad_u32_u24 v14, v90, %d, v89" % (7 - i))
        k.i("v_lshrrev_b32 v15, 5, v14")
        k.i("v_add_u32 v14, v14, v15")
        k.i("v_lshl_add_u32 v%d, v14, 2, s51" % (92 + i))
    k.i("v_mov_b32 v38, 0x3f80")
    for j in range(8): k.i("v_mov_b32 v%d, 0" % (40 + j))
    k.i("s_waitcnt lgkmcnt(0)")
    k.i("s_lshl_b32 s55, s12, 4")
    k.i("s_lshr_b32 s50, s50, s55")
    k.i("s_lshl_b32 s50, s50, 16")
    k.i("v_mov_b32 v86, s50")
    k.i("v_mul_f32 v86, 0x%x, v86" % LOG2E)
    k.i("v_exp_f32 v86, v86")
    k.i("v_cvt_pk_bf16_f32 v86, v86, v86")
    k.i("v_and_b32 v86, 0xffff0000, v86")
    k.i("s_mov_b32 s56, 0")
    k.i("s_waitcnt vmcnt(0)")
    stamp(k, 2)
    k.label("L_kg_round", loop=True)
    blk = Block()
    class W:
        def i(self, t): blk.i(t)
    w = W()
    z1, z2, z3, z4, z6, Z, cur, tmp = 12, 14, 16, 18, 20, 22, 24, 26
    b0, b1, wc, w2, tb0, tb1, Zp, cur2, tmp2 = 28, 30, 32, 48, 50, 52, 54, 56, 58
    for j in range(6): w.i("v_lshlrev_b32 v%d, 16, v%d" % (80 + j, 4 + j))
    for j in range(6): w.i("v_lshrrev_b32 v%d, 16, v%d" % (4 + j, 4 + j))
    are, aim, bre, bim, cre, cim = 80, 81, 82, 83, 84, 85
    w.i("v_mul_f32 v10, v86, v%d" % are)
    w.i("v_mul_f32 v11, v86, v%d" % aim)
    w.i("v_mul_f32 v10, 0x%x, v10" % LOG2E)
    w.i("v_mul_f32 v11, %s, v11" % INV2PI)
    w.i("v_mul_f32 v%d, v86, v%d" % (bre, bre))
    w.i("v_mul_f32 v%d, v86, v%d" % (bim, bim))
    cmul(w, b0, cre, bre, tb0, conj_out=True)
    def direct(dst, mult, conj, t):
        if mult == 1:
            w.i("v_exp_f32 v%d, v10" % t); w.i("v_fract_f32 v%d, v11" % (t + 1))
        else:
            w.i("v_mul_f32 v%d, %s, v10" % (t, f32(mult)))
            w.i("v_mul_f32 v%d, %s, v11" % (t + 1, f32(-mult if conj else mult)))
            w.i("v_exp_f32 v%d, v%d" % (t, t)); w.i("v_fract_f32 v%d, v%d" % (t + 1, t + 1))
        w.i("v_cos_f32 v%d, v%d" % (dst, t + 1))
        w.i("v_sin_f32 v%d, v%d" % (dst + 1, t + 1))
        w.i("v_pk_mul_f32 %s, %s, %s op_sel_hi:[1,0]" % (v(dst, 2), v(dst, 2), v(t, 2)))
    direct(wc, 8, True, 60)
    direct(z1, 1, False, 62)
    direct(Z, 256, False, 64)
    tcount = [0]
    def put(row, reg):
        t = 66 + (tcount[0] & 3); tcount[0] += 1
        cvtpk(w, t, reg, reg + 1)
        w.i("ds_write_addtid_b32 v%d offset:%d" % (t, row * TROW))
    w.i("ds_write_addtid_b32 v38 offset:0")
    cmul(w, w2, wc, wc, tb1)
    cmul(w, b1, b0, wc, tb1)
    A = []
    A.append(lambda: put(1, z1))
    A.append(lambda: (cmul(w, z2, z1, z1, tmp), put(2, z2)))
    A.append(lambda: put(8, Z))
    A.append(lambda: (cmul(w, z4, z2, z2, tmp), put(4, z4)))
    A.append(lambda: (cmul(w, Zp, Z, Z, tmp2), put(12, Zp)))
    A.append(lambda: (cmul(w, z3, z2, z1, tmp), put(3, z3)))
    A.append(lambda: (cmul(w, cur2, Zp, z4, tmp2), put(13, cur2)))
    A.append(lambda: (cmul(w, cur, z4, z1, tmp), put(5, cur)))
    A.append(lambda: (cmul(w, Zp, Zp, Z, tmp2), put(14, Zp)))
    A.append(lambda: (cmul(w, z6, z4, z2, tmp), put(6, z6)))
    A.append(lambda: (cmul(w, cur2, Zp, z4, tmp2), put(15, cur2)))
    A.append(lambda: (cmul(w, cur, z4, z3, tmp), put(7, cur)))
    A.append(lambda: (cmul(w, Zp, Zp, Z, tmp2), put(16, Zp)))
    A.append(lambda: (cmul(w, cur, Z, z2, tmp), put(9, cur)))
    A.append(lambda: (cmul(w, Zp, Zp, Z, tmp2), put(17, Zp)))
    A.append(lambda: (cmul(w, cur, Z, z4, tmp), put(10, cur)))
    A.append(lambda: (cmul(w, Zp, Zp, Z, tmp2), put(18, Zp)))
    A.append(lambda: (cmul(w, cur, Z, z6, tmp), put(11, cur)))
    A.append(lambda: (cmul(w, Zp, Zp, Z, tmp2), put(19, Zp)))
    A.append(lambda: (cmul(w, Zp, Zp, Z, tmp2), put(20, Zp)))
    ai = 0
    for c in range(0, 32, 2):
        put(21 + c, b0); put(21 + c + 1, b1)
        if c < 30:
            cmul(w, b0, b0, w2, tb0); cmul(w, b1, b1, w2, tb1)
        for _ in range(2):
            if ai < len(A): A[ai](); ai += 1
    assert ai == len(A)
    est = blk.emit(k)
    k.c("gen estimate %d" % est)
    if DIAG:
        k.i("s_cmp_eq_u32 s56, 0"); k.i("s_cbranch_scc0 L_dg1"); stamp(k, 3); k.label("L_dg1")
    k.i("s_waitcnt lgkmcnt(0)")
    k.i("s_barrier")
    blk = Block()
    for q in range(8):
        a0 = (48, 60, 12, 24)[q % 4]
        blk.i("ds_read_b128 %s, v73 offset:%d" % (v(a0 + 8, 4), 64 * q))
        blk.i("ds_read_b128 %s, v72 offset:%d" % (v(a0, 4), 64 * q))
        blk.i("ds_read_b128 %s, v72 offset:%d" % (v(a0 + 4, 4), 64 * q + 16 * TROW))
        blk.i("v_mfma_f32_16x16x32_bf16 v[40:43], %s, %s, v[40:43]" % (v(a0, 4), v(a0 + 8, 4)))
        blk.i("v_mfma_f32_16x16x32_bf16 v[44:47], %s, %s, v[44:47]" % (v(a0 + 4, 4), v(a0 + 8, 4)))
    if os.environ.get("X"): pass
    est = blk.emit(k)
    k.c("mfma estimate %d" % est)
    k.i("s_barrier")
    if DIAG:
        k.i("s_cmp_eq_u32 s56, 0"); k.i("s_cbranch_scc0 L_dg2"); stamp(k, 4); k.label("L_dg2")
    k.i("s_add_u32 s56, s56, 1")
    k.i("s_cmp_lt_u32 s56, 2")
    k.i("s_cbranch_scc1 L_kg_round")
    stamp(k, 5)
    for j in range(4): k.i("ds_write_b32 v%d, v%d" % (74 + j, 40 + j))
    k.i("s_mov_b32 exec_hi, 0")
    k.i("ds_write_b32 v78, v44 offset:%d" % (1056 * 4))
    k.i("s_mov_b32 exec_lo, 0xffff")
    for j in range(1, 4): k.i("ds_write_b32 v78, v%d offset:%d" % (44 + j, 1056 * (4 + j)))
    k.i("s_mov_b32 exec_lo, 0"); k.i("s_mov_b32 exec_hi, 0xffff")
    k.i("ds_write_b32 v74, v40 offset:4")
    k.i("v_subrev_u32 v14, 4, v76")
    k.i("ds_write_b32 v76, v42 offset:4")
    k.i("ds_write_b32 v14, v42")
    k.i("s_cmp_eq_u32 s13, 0")
    k.i("s_cselect_b32 exec_hi, 0xfffe, exec_hi")
    k.i("ds_write_b32 v87, v40")
    k.i("s_mov_b64 exec, -1")
    k.i("v_mov_b32 v14, s51")
    k.i("v_mov_b32 v15, 0")
    k.i("s_cmp_eq_u32 s13, 0")
    k.i("s_cbranch_scc0 L_kg_nox")
    k.i("s_mov_b32 exec_lo, 0"); k.i("s_mov_b32 exec_hi, 0x10000")
    a511 = 4 * (511 + (511 >> 5)); ax = 4 * (2056 + (2056 >> 5))
    k.i("ds_write_b32 v14, v40 offset:%d" % a511)
    for e in range(3): k.i("ds_write_b32 v14, v40 offset:%d" % (ax + 4 * e))
    for e in range(3, 8): k.i("ds_write_b32 v14, v15 offset:%d" % (ax + 4 * e))
    k.i("s_mov_b64 exec, -1")
    k.label("L_kg_nox")
    k.i("s_mul_i32 s58, s14, %d" % KSTR)
    k.i("s_add_u32 s58, s58, 0x%x" % WS_KR)
    k.i("v_lshl_add_u32 v19, v88, 4, s58")
    k.i("v_cmp_gt_u32 vcc, 120, v88")
    k.i("s_waitcnt lgkmcnt(0)")
    k.i("s_barrier")
    stamp(k, 6)
    for i in range(8): k.i("ds_read_b32 v%d, v%d" % (24 + i, 92 + i))
    k.i("s_and_b64 exec, exec, vcc")
    for p in range(4):
        k.i("s_waitcnt lgkmcnt(%d)" % (6 - 2 * p))
        cvtpk(k, 56 + p, 24 + 2 * p, 25 + 2 * p)
    k.i("buffer_store_dwordx4 v[56:59], v19, s[8:11], 0 offen" + stf("KR"))
    endpgm(k, 0)

XROW = 928
GWB = 16 * XROW
XTB = GWB + 4 * 896
STF = os.environ.get('STF', ' sc1')

def sincos_neg(k, c, sn, ph):
    k.i("v_cos_f32 v%d, v%d" % (c, ph))
    k.i("v_sin_f32 v%d, v%d" % (sn, ph))

def role_row(k):
    k.i("v_lshrrev_b32 v1, 6, v0")
    k.i("v_and_b32 v2, 63, v0")
    k.i("v_readfirstlane_b32 s3, v1")
    k.i("s_sub_u32 s12, s2, %d" % K1_NK)
    k.i("s_lshl_b32 s12, s12, 4")
    k.i("s_lshl_b32 s13, s3, 2")
    k.i("s_add_u32 s14, s12, s13")
    k.i("s_mul_i32 s15, s14, 896")
    k.i("v_lshl_add_u32 v3, v2, 4, s15")
    k.i("v_lshlrev_b32 v4, 4, v2")
    k.i("s_waitcnt lgkmcnt(0)")
    stamp(k, 1)
    k.i("s_mov_b32 exec_hi, 0x00ffffff")
    for r in range(4):
        k.i("global_load_dwordx4 %s, v3, %s offset:%d" % (v(8 + 4 * r, 4), sp(P_U), 896 * r))
    k.i("global_load_dwordx4 v[24:27], v4, %s" % sp(P_GW))
    k.i("s_mov_b64 exec, -1")
    ws_srd(k)
    k.i("v_and_b32 v5, 15, v2")
    k.i("v_lshrrev_b32 v6, 4, v2")
    k.i("v_cvt_f32_u32 v28, v5")
    k.i("v_lshlrev_b32 v7, 2, v6")
    k.i("v_cvt_f32_u32 v29, v7")
    F28R, F28I = 32, 36
    k.i("v_mul_f32 v30, %s, v28" % f32(-1.0 / 28))
    for i in range(8):
        d = i if i < 4 else 16 + (i - 4)
        k.i("v_add_f32 v31, %s, v29" % (("%d.0" % d) if d in (1, 2, 4) else ("0" if d == 0 else f32(d))))
        k.i("v_mul_f32 v31, v31, v30")
        sincos_neg(k, 40 + i, 48 + i, 31)
    for i in range(4):
        cvtpk(k, F28R + i, 40 + 2 * i, 40 + 2 * i + 1)
        cvtpk(k, F28I + i, 48 + 2 * i, 48 + 2 * i + 1)
    k.i("v_cmp_gt_u32 vcc, 3, v6")
    for r in (F28R + 2, F28R + 3, F28I + 2, F28I + 3):
        k.i("v_cndmask_b32 v%d, 0, v%d, vcc" % (r, r))
    TC, TS = 40, 44
    k.i("v_mul_f32 v30, %s, v28" % f32(-1.0 / 448))
    for j in range(4):
        k.i("v_add_f32 v31, %s, v29" % (("%d.0" % j) if j in (1, 2) else ("0" if j == 0 else f32(j))))
        k.i("v_mul_f32 v31, v31, v30")
        sincos_neg(k, TC + j, TS + j, 31)
    F16R, F16I = 48, 52
    k.i("v_mul_f32 v30, %s, v28" % f32(-1.0 / 16))
    for j in range(4):
        k.i("v_add_f32 v31, %s, v29" % (("%d.0" % j) if j in (1, 2) else ("0" if j == 0 else f32(j))))
        k.i("v_mul_f32 v31, v31, v30")
        sincos_neg(k, 56, 57, 31)
        cvtpk(k, F16R + j, 56, 57, neg_hi=True)
        cvtpk(k, F16I + j, 57, 56)
    k.i("s_mul_i32 s48, s13, %d" % XROW)
    k.i("v_add_u32 v56, s48, v4")
    k.i("s_mul_i32 s49, s3, 896")
    k.i("s_add_u32 s49, s49, %d" % GWB)
    k.i("v_add_u32 v57, s49, v4")
    k.i("v_lshlrev_b32 v58, 3, v2")
    k.i("v_add_u32 v58, s48, v58")
    k.i("v_cmp_le_u32 vcc, 48, v2")
    k.i("v_cndmask_b32 v59, 0, -128, vcc" if False else "v_mov_b32 v59, 512")
    k.i("v_mov_b32 v60, 384")
    k.i("v_cndmask_b32 v59, v59, v60, vcc")
    k.i("v_add_u32 v59, v58, v59")
    k.i("v_and_b32 v60, 3, v2")
    k.i("v_mul_u32_u24 v60, %d, v60" % XROW)
    k.i("v_lshl_add_u32 v60, v6, 4, v60")
    k.i("v_add_u32 v60, s48, v60")
    k.i("v_lshlrev_b32 v61, 4, v6")
    k.i("v_add_u32 v61, s49, v61")
    k.i("v_mul_u32_u24 v62, 1040, v5")
    k.i("v_lshl_add_u32 v62, v6, 8, v62")
    k.i("s_lshl_b32 s51, s3, 4")
    k.i("s_add_u32 s51, s51, %d" % XTB)
    k.i("v_add_u32 v62, s51, v62")
    k.i("s_mul_i32 s51, s3, 1040"); k.i("s_add_u32 s51, s51, %d" % XTB)
    k.i("v_add_u32 v65, s51, v4")
    k.i("s_lshl_b32 s50, s12, 10")
    k.i("s_lshl_b32 s51, s3, 10")
    k.i("s_add_u32 s50, s50, s51")
    k.i("s_add_u32 s50, s50, 0x%x" % WS_X1)
    k.i("v_add_u32 v66, s50, v4")
    k.i("v_lshrrev_b32 v63, 2, v5")
    k.i("v_add_u32 v63, v7, v63")
    k.i("v_mul_u32_u24 v63, %d, v63" % XROW)
    k.i("v_and_b32 v64, 3, v2")
    k.i("v_lshl_add_u32 v63, v64, 3, v63")
    k.i("s_lshl_b32 s51, s3, 5")
    k.i("v_add_u32 v63, s51, v63")
    k.i("s_lshl_b32 s51, s3, 4")
    k.i("v_add_u32 v64, s51, v5")
    k.i("v_lshlrev_b32 v64, 5, v64")
    k.i("v_lshl_add_u32 v64, v6, 3, v64")
    k.i("s_mul_i32 s51, s12, 896")
    k.i("s_add_u32 s51, s51, 0x%x" % WS_UT)
    k.i("v_add_u32 v64, s51, v64")
    stamp(k, 2)
    k.i("s_waitcnt vmcnt(0)")
    stamp(k, 3)
    k.i("s_mov_b32 exec_hi, 0x00ffffff")
    for r in range(4):
        k.i("ds_write_b128 v56, %s offset:%d" % (v(8 + 4 * r, 4), XROW * r))
    k.i("ds_write_b128 v57, v[24:27]")
    k.i("s_mov_b64 exec, -1")
    XA = 8
    for r in range(4):
        k.i("ds_read_b64_tr_b16 %s, v58 offset:%d" % (v(XA + 4 * r, 2), XROW * r))
        k.i("ds_read_b64_tr_b16 %s, v59 offset:%d" % (v(XA + 4 * r + 2, 2), XROW * r))
    k.i("s_waitcnt lgkmcnt(0)")
    k.i("s_barrier")
    stamp(k, 4)
    DR, DI = 68, 84
    blk = Block()
    class W:
        def i(self, t): blk.i(t)
    w = W()
    for it in range(7):
        w.i("ds_read_b64_tr_b16 %s, v63 offset:%d" % (v(100 + 2 * it, 2), 128 * it))
    for r in range(4):
        mfma(w, DR + 4 * r, XA + 4 * r, F28R, "0")
        mfma(w, DI + 4 * r, XA + 4 * r, F28I, "0")
    for it in range(7):
        w.i("s_mov_b32 s%d, %d" % (56 + it, 2048 * it))
        w.i("buffer_store_dwordx2 %s, v64, s[8:11], s%d offen%s" % (v(100 + 2 * it, 2), 56 + it, STF))
    P = 8; O = 8
    for r in range(4):
        twiddle4(w, DR + 4 * r, DI + 4 * r, TC, TS, 28 + 92 * (r & 1), 30 + 92 * (r & 1))
        for j in range(4): cvtpk(w, P + 4 * r + j, DR + 4 * r + j, DI + 4 * r + j)
    for r in range(4):
        mfma(w, DR + 4 * r, F16R, P + 4 * r, "0")
        mfma(w, DI + 4 * r, F16I, P + 4 * r, "0")
    for r in range(4):
        for j in range(4): cvtpk(w, O + 4 * j + r, DR + 4 * r + j, DI + 4 * r + j)
    for j in range(4):
        w.i("ds_write_b128 v62, %s offset:%d" % (v(O + 4 * j, 4), 64 * j))
    est = blk.emit(k); k.c("row main estimate %d" % est)
    k.i("s_waitcnt lgkmcnt(0)")
    k.i("s_barrier")
    stamp(k, 5)
    for i in range(4):
        if i == 3:
            k.i("s_cmp_eq_u32 s3, 3"); k.i("s_cbranch_scc1 L_row_no15")
        k.i("ds_read_b128 %s, v65 offset:%d" % (v(8 + 4 * i, 4), 4160 * i))
    k.label("L_row_no15")
    blk = Block(); GA = 116
    k.i("s_mov_b32 s52, 4096"); k.i("s_mov_b32 s53, 8192"); k.i("s_mov_b32 s54, 12288")
    k.i("s_waitcnt lgkmcnt(0)")
    for i in range(4):
        if i == 3:
            k.i("s_cmp_eq_u32 s3, 3"); k.i("s_cbranch_scc1 L_row_no15s")
        k.i("buffer_store_dwordx4 %s, v66, s[8:11], %s offen%s" % (v(8 + 4 * i, 4), "0" if i == 0 else "s%d" % (51 + i), STF))
    k.label("L_row_no15s")
    stamp(k, 6)
    for q in range(14):
        a_, b_ = 68 + 8 * (q % 4), 72 + 8 * (q % 4)
        blk.i("ds_read_b128 %s, v60 offset:%d" % (v(a_, 4), 64 * q))
        blk.i("ds_read_b128 %s, v61 offset:%d" % (v(b_, 4), 64 * q))
        blk.i("v_mfma_f32_16x16x32_bf16 %s, %s, %s, %s" % (v(GA, 4), v(a_, 4), v(b_, 4), "0" if q == 0 else v(GA, 4)))
    blk.emit(k)
    for j in range(4):
        k.i("v_mul_f32 v%d, %s, v%d" % (GA + j, f32(-1.4426950408889634), GA + j))
    for j in range(4): k.i("v_exp_f32 v%d, v%d" % (GA + j, GA + j))
    for j in range(4): k.i("v_add_f32 v%d, 1.0, v%d" % (GA + j, GA + j))
    for j in range(4): k.i("v_rcp_f32 v%d, v%d" % (GA + j, GA + j))
    k.i("s_lshl_b32 s50, s14, 2")
    k.i("s_add_u32 s50, s50, 0x%x" % WS_G)
    k.i("v_mov_b32 v28, s50")
    k.i("s_mov_b32 exec_hi, 0")
    k.i("s_mov_b32 exec_lo, 1")
    k.i("buffer_store_dwordx4 %s, v28, s[8:11], 0 offen" % v(GA, 4))
    endpgm(k, 0)

WROW = 480
WARR = 32 * WROW

def role_w(k):
    k.i("v_lshrrev_b32 v1, 6, v0")
    k.i("v_and_b32 v2, 63, v0")
    k.i("v_readfirstlane_b32 s3, v1")
    k.i("s_sub_u32 s12, s2, %d" % (K1_NK + K1_NR))
    k.i("s_and_b32 s13, s12, 1")
    k.i("v_lshrrev_b32 v3, 5, v2")
    k.i("s_lshl_b32 s14, s3, 3")
    k.i("v_add_u32 v3, s14, v3")
    k.i("v_and_b32 v4, 31, v2")
    k.i("v_lshlrev_b32 v4, 4, v4")
    k.i("v_lshl_add_u32 v5, v3, 6, s12")
    k.i("v_mul_u32_u24 v5, 450, v5")
    k.i("s_lshl_b32 s15, s13, 1")
    k.i("v_subrev_u32 v5, s15, v5")
    k.i("v_add_u32 v5, v5, v4")
    k.i("v_mul_u32_u24 v6, %d, v3" % WROW)
    k.i("v_add_u32 v6, v6, v4")
    k.i("s_mov_b32 s48, 57600"); k.i("s_mov_b32 s49, 115200"); k.i("s_mov_b32 s50, 172800")
    k.i("s_waitcnt lgkmcnt(0)")
    stamp(k, 1)
    srd(k, 52, P_WR, 921600)
    srd(k, 56, P_WI, 921600)
    k.i("s_mov_b32 exec_lo, 0x1fffffff"); k.i("s_mov_b32 exec_hi, 0x1fffffff")
    for i in range(4):
        so = "0" if i == 0 else "s%d" % (47 + i)
        k.i("buffer_load_dwordx4 %s, v5, s[52:55], %s offen" % (v(8 + 4 * i, 4), so))
        k.i("buffer_load_dwordx4 %s, v5, s[56:59], %s offen" % (v(24 + 4 * i, 4), so))
    k.i("s_mov_b64 exec, -1")
    ws_srd(k, 8, WS_WT, 225 * 8192)
    k.i("v_and_b32 v40, 15, v2")
    k.i("v_lshrrev_b32 v41, 4, v2")
    k.i("v_lshrrev_b32 v42, 2, v40")
    k.i("v_lshl_add_u32 v42, v41, 2, v42")
    k.i("s_and_b32 s60, s3, 1")
    k.i("s_lshr_b32 s61, s3, 1")
    k.i("s_lshl_b32 s62, s60, 4")
    k.i("v_add_u32 v42, s62, v42")
    k.i("v_mul_u32_u24 v42, %d, v42" % WROW)
    k.i("v_and_b32 v43, 3, v2")
    k.i("v_lshl_add_u32 v42, v43, 3, v42")
    k.i("s_lshl_b32 s63, s61, 5")
    k.i("v_add_u32 v42, s63, v42")
    k.i("s_lshl_b32 s63, s61, 4")
    k.i("s_sub_u32 s63, s63, s13")
    k.i("v_add_u32 v44, s63, v40")
    k.i("v_lshlrev_b32 v44, 13, v44")
    k.i("s_lshl_b32 s63, s12, 5")
    k.i("s_add_u32 s63, s63, s62")
    k.i("s_lshl_b32 s63, s63, 2")
    k.i("v_lshl_add_u32 v45, v41, 4, s63")
    k.i("v_add_u32 v44, v44, v45")
    k.i("s_mov_b32 s64, 0x05040100"); k.i("s_mov_b32 s65, 0x07060302")
    k.i("s_waitcnt vmcnt(0)")
    stamp(k, 3)
    k.i("s_mov_b32 exec_lo, 0x1fffffff"); k.i("s_mov_b32 exec_hi, 0x1fffffff")
    for i in range(4):
        k.i("ds_write_b128 v6, %s offset:%d" % (v(8 + 4 * i, 4), 2 * WROW * i))
        k.i("ds_write_b128 v6, %s offset:%d" % (v(24 + 4 * i, 4), WARR + 2 * WROW * i))
    k.i("s_mov_b64 exec, -1")
    k.i("s_waitcnt lgkmcnt(0)")
    k.i("s_barrier")
    stamp(k, 4)
    for it in range(8):
        k.i("ds_read_b64_tr_b16 %s, v42 offset:%d" % (v(8 + 4 * it, 2), 64 * it))
        k.i("ds_read_b64_tr_b16 %s, v42 offset:%d" % (v(8 + 4 * it + 2, 2), WARR + 64 * it))
    for it in range(8):
        k.i("s_waitcnt lgkmcnt(%d)" % (14 - 2 * it))
        R, I, o = 8 + 4 * it, 8 + 4 * it + 2, 48 + 4 * (it & 1)
        k.i("v_perm_b32 v%d, v%d, v%d, s64" % (o, I, R))
        k.i("v_perm_b32 v%d, v%d, v%d, s65" % (o + 1, I, R))
        k.i("v_perm_b32 v%d, v%d, v%d, s64" % (o + 2, I + 1, R + 1))
        k.i("v_perm_b32 v%d, v%d, v%d, s65" % (o + 3, I + 1, R + 1))
        k.i("buffer_store_dwordx4 %s, v44, s[8:11], 0 offen%s" % (v(o, 4), STF))
        if it < 7: k.i("v_add_u32 v44, 0x40000, v44")
    endpgm(k, 0)

def gen_k1(k, name):
    kernel_header(k, name)
    diag_begin(k)
    load_kernargs(k)
    k.i("s_cmp_lt_u32 s2, %d" % K1_NK)
    k.i("s_cbranch_scc1 L_k1_kgen")
    k.i("s_cmp_lt_u32 s2, %d" % (K1_NK + K1_NR))
    k.i("s_cbranch_scc1 L_k1_row")
    k.i("s_cmp_lt_u32 s2, %d" % K1_GRID)
    k.i("s_cbranch_scc1 L_k1_w")
    k.i("s_endpgm")
    k.label("L_k1_kgen"); role_kgen(k)
    k.label("L_k1_row"); role_row(k)
    k.label("L_k1_w"); role_w(k)
```

```python
from common import *

from sched import Block
K2_NC, K2_NF = 224, 225
K2_GRID = K2_NC + K2_NF
GUARD = 128
CSTR = 2112
UOFF = 4 * CSTR
UPAD = 1088
CHL = UOFF + UPAD + 4096
K2_LDS = GUARD + 2 * CHL
K2_VGPR = 168
B4 = lambda e: 592 + 48 * (e - 1)
B8 = lambda e: 800 + 80 * (e - 1)
TILES = {0: (0, 1, 6, 7), 1: (2, 3, 4, 5)}

def conv_main(k, h):
    ACC, H, VR, M1, M2, M3, M5, M6, MC, KF, AS = 16, 32, 104, 120, 124, 128, 132, 136, 140, 144, 160
    aH, aK, aV = 50, 51, 52
    aH, aK, aV = 10, 11, 12
    tiles = TILES[h]
    acc = {t: ACC + 4 * i for i, t in enumerate(tiles)}
    b = Block()
    first = set()
    def mf(t, A, B):
        c = acc[t] if t in first else "0"
        first.add(t)
        b.i("v_mfma_f32_16x16x32_bf16 %s, %s, %s, %s" % (v(acc[t], 4), v(A, 4), v(B, 4), v(c, 4) if c != "0" else "0"))
    uses = {}
    for t in tiles:
        for q in range(18):
            if q > 8 * t + 8: continue
            uses.setdefault(256 * t - 32 * q, []).append((t, q))
    hloaded = set(); nring = 0
    for x0 in sorted(uses, reverse=True):
        for (t, q) in uses[x0]:
            if q not in hloaded:
                hloaded.add(q)
                b.i("ds_read_b64 %s, v%d offset:%d" % (v(H + 4 * q, 2), aH, 1112 - 64 * q))
                b.i("ds_read_b64 %s, v%d offset:%d" % (v(H + 4 * q + 2, 2), aH, 1112 - 64 * q + 8))
        vr = VR + 4 * (nring & 3); nring += 1
        b.i("ds_read_b128 %s, v%d offset:%d" % (v(vr, 4), aV, UPAD + 2 * x0))
        for (t, q) in uses[x0]: mf(t, H + 4 * q, vr)
    PH, BX, PP = 32, 48, 96
    need4 = {tp: [t for t in tiles if t - tp in (2, 3, 4)] for tp in range(6)}
    need8 = {tp: [t for t in tiles if t - tp in (4, 5, 6, 7)] for tp in range(6)}
    corr = {tp: [t for t in tiles if t - tp == 4] for tp in range(6)}
    nbuf = 0; nk = 0
    for tp in range(6):
        if not (need4[tp] or need8[tp]): continue
        pa, pb = PH + 8 * (nbuf & 1), PH + 8 * (nbuf & 1) + 4
        bx, pp = BX + 24 * (nbuf & 1), PP + 12 * (nbuf & 1); nbuf += 1
        b.i("ds_read_b128 %s, v%d offset:%d" % (v(pa, 4), aV, UPAD + 512 * tp - 32))
        b.i("ds_read_b128 %s, v%d offset:%d" % (v(pb, 4), aV, UPAD + 512 * tp - 48))
        boxes = []
        if need4[tp]: boxes += [(0, pa, M1, pp), (1, pa, M2, pp + 2), (2, pa, M3, pp + 4), (3, pb, M2, pp + 6)]
        if need8[tp]: boxes += [(4, pa, M5, pp + 8), (5, pb, M6, pp + 10)]
        for (n, ph, m, dst) in boxes:
            b.i("v_mfma_f32_16x16x32_bf16 %s, %s, %s, 0" % (v(bx + 4 * n, 4), v(ph, 4), v(m, 4)))
        for (n, ph, m, dst) in boxes:
            b.i("v_cvt_pk_bf16_f32 v%d, v%d, v%d" % (dst, bx + 4 * n, bx + 4 * n + 1))
            b.i("v_cvt_pk_bf16_f32 v%d, v%d, v%d" % (dst + 1, bx + 4 * n + 2, bx + 4 * n + 3))
        for t in corr[tp]: mf(t, AS, pa)
        def kfrag(off0, off1):
            nonlocal nk
            kf = KF + 4 * (nk & 3); nk += 1
            b.i("ds_read_b64 %s, v%d offset:%d" % (v(kf, 2), aK, off0))
            b.i("ds_read_b64 %s, v%d offset:%d" % (v(kf + 2, 2), aK, off1))
            return kf
        for t in need4[tp]:
            D = t - tp
            for (e0, op) in ((1, pp), (3, pp + 4)):
                kf = kfrag(2 * (B4(e0) + 76 - 16 * D), 2 * (B4(e0 + 1) + 76 - 16 * D))
                mf(t, op, kf)
        for t in need8[tp]:
            D = t - tp
            kf = kfrag(2 * (B8(1) + 124 - 16 * D), 2 * (B8(2) + 124 - 16 * D))
            mf(t, pp + 8, kf)
    est = b.emit(k)
    k.c("scheduled estimate: %d cycles" % est)
    return acc

def conv_epilogue(k, h):
    tiles = TILES[h]; ACC = 16
    b = Block()
    for i, t in enumerate(tiles):
        b.i("ds_read_b64 %s, v13 offset:%d" % (v(56 + 2 * i, 2), UPAD + 512 * t))
    for i, t in enumerate(tiles):
        a = ACC + 4 * i; uu = 56 + 2 * i; x = 64 + 4 * i; o = 80 + 2 * i
        b.i("v_lshlrev_b32 v%d, 16, v%d" % (x, uu)); b.i("v_and_b32 v%d, 0xffff0000, v%d" % (x + 1, uu))
        b.i("v_lshlrev_b32 v%d, 16, v%d" % (x + 2, uu + 1)); b.i("v_and_b32 v%d, 0xffff0000, v%d" % (x + 3, uu + 1))
        b.i("v_pk_fma_f32 %s, %s, s[56:57], %s" % (v(a, 2), v(x, 2), v(a, 2)))
        b.i("v_pk_fma_f32 %s, %s, s[56:57], %s" % (v(a + 2, 2), v(x + 2, 2), v(a + 2, 2)))
        b.i("v_cvt_pk_bf16_f32 v%d, v%d, v%d" % (o, a, a + 1)); b.i("v_cvt_pk_bf16_f32 v%d, v%d, v%d" % (o + 1, a + 2, a + 3))
        b.i("buffer_store_dwordx2 %s, v14, s[8:11], 0 offen offset:%d%s" % (v(o, 2), 512 * t, stf("AT")))
    b.emit(k)

def role_conv(k):
    k.i("v_lshrrev_b32 v1, 6, v0")
    k.i("v_and_b32 v2, 63, v0")
    k.i("v_readfirstlane_b32 s3, v1")
    k.i("s_and_b32 s48, s2, 7"); k.i("s_lshl_b32 s48, s48, 1")
    k.i("s_bfe_u32 s49, s2, 0x10003"); k.i("s_add_u32 s48, s48, s49")
    k.i("s_and_b32 s49, s2, 0xf0"); k.i("s_add_u32 s48, s48, s49")
    k.i("s_lshl_b32 s15, s48, 2")
    k.i("s_lshr_b32 s12, s3, 1")
    k.i("s_and_b32 s13, s3, 1")
    k.i("s_lshl_b32 s14, s48, 1")
    k.i("s_add_u32 s14, s14, s12")
    k.i("s_lshl_b32 s48, s13, 6")
    k.i("v_add_u32 v3, s48, v2")
    k.i("s_mul_i32 s49, s14, %d" % KSTR)
    k.i("s_add_u32 s49, s49, 0x%x" % WS_KR)
    k.i("v_lshl_add_u32 v4, v3, 4, s49")
    k.i("s_lshl_b32 s50, s14, 5")
    k.i("s_add_u32 s50, s50, 0x%x" % WS_UT)
    k.i("v_lshrrev_b32 v5, 1, v3")
    k.i("v_mul_u32_u24 v5, 14336, v5")
    k.i("v_and_b32 v6, 1, v3")
    k.i("v_lshl_add_u32 v5, v6, 4, v5")
    k.i("v_add_u32 v5, s50, v5")
    k.i("s_mov_b32 s50, %d" % (64 * 14336))
    k.i("s_waitcnt lgkmcnt(0)")
    stamp(k, 1)
    ws_srd(k)
    k.i("s_load_dword s51, %s, s15" % sp(P_DSKIP))
    for e in range(3):
        k.i("buffer_load_dwordx4 %s, v4, s[8:11], 0 offen offset:%d" % (v(16 + 4 * e, 4), 4 * e))
    k.i("buffer_load_dwordx4 v[40:43], v5, s[8:11], 0 offen")
    k.i("buffer_load_dwordx4 v[44:47], v5, s[8:11], s50 offen")
    k.i("s_mul_i32 s52, s12, %d" % CHL)
    k.i("s_add_u32 s52, s52, %d" % GUARD)
    k.i("s_add_u32 s53, s52, %d" % UOFF)
    k.i("v_lshl_add_u32 v6, v3, 4, s52")
    k.i("v_lshl_add_u32 v7, v3, 4, s53")
    for j in range(4): k.i("v_mov_b32 v%d, 0" % (32 + j))
    k.i("v_cmp_gt_u32 vcc, %d, v3" % (UPAD // 16))
    k.i("s_and_saveexec_b64 s[60:61], vcc")
    k.i("ds_write_b128 v7, v[32:35]")
    k.i("s_mov_b64 exec, s[60:61]")
    k.i("v_and_b32 v48, 15, v2")
    k.i("v_lshrrev_b32 v49, 4, v2")
    k.i("v_and_b32 v50, 3, v48")
    k.i("v_lshrrev_b32 v51, 2, v48")
    k.i("v_mul_u32_u24 v50, %d, v50" % CSTR)
    k.i("v_lshlrev_b32 v51, 3, v51")
    k.i("v_sub_u32 v50, v50, v51")
    k.i("v_add_u32 v50, s52, v50")
    k.i("v_lshl_add_u32 v10, v49, 4, v50")
    k.i("v_lshl_add_u32 v11, v49, 3, v50")
    k.i("v_lshlrev_b32 v51, 5, v48")
    k.i("v_add_u32 v51, s53, v51")
    k.i("v_lshl_add_u32 v12, v49, 4, v51")
    k.i("v_lshl_add_u32 v13, v49, 3, v51")
    k.i("v_lshlrev_b32 v14, 5, v48")
    k.i("v_lshl_add_u32 v14, v49, 3, v14")
    k.i("s_lshl_b32 s59, s14, 12")
    k.i("s_add_u32 s59, s59, 0x%x" % WS_AT)
    k.i("v_add_u32 v14, s59, v14")
    k.i("v_lshlrev_b32 v52, 3, v49")
    k.i("v_sub_u32 v52, v52, v48")
    k.i("s_mov_b32 s54, 0x8001"); k.i("s_mov_b32 s55, 0x10001")
    for (reg, lo, hi, val) in ((120, 11, 13, 0x3f80), (124, 6, 10, 0x3f80), (128, 3, 5, 0x3f80), (132, 5, 11, 0x3f80), (136, 4, 12, 0x3f80), (140, 12, 13, 0xffff)):
        n = hi - lo + 1
        k.i("v_add_u32 v53, %d, v52" % (20 - lo))
        k.i("v_med3_i32 v53, v53, 0, 31")
        k.i("s_mov_b32 s56, 0x%x" % (((1 << n) - 1) << 20))
        k.i("v_lshrrev_b32_e64 v53, v53, s56")
        for p in range(4):
            k.i("v_bfe_u32 v54, v53, %d, 2" % (2 * p))
            k.i("v_mul_u32_u24 v54, 0x8001, v54")
            k.i("v_and_b32 v54, s55, v54")
            k.i("v_mul_u32_u24 v%d, 0x%x, v54" % (reg + p, val))
    k.i("s_waitcnt vmcnt(2)")
    stamp(k, 2)
    L0, L1, LX = 16, 20, 24
    k.i("ds_write_b128 v6, %s offset:%d" % (v(L0, 4), 3 * CSTR))
    k.i("ds_write_b128 v6, %s offset:%d" % (v(L1, 4), 1 * CSTR))
    for j in range(4): k.i("v_alignbit_b32 v%d, v%d, v%d, 16" % (28 + j, L1 + j, L0 + j))
    for j in range(4): k.i("v_alignbit_b32 v%d, v%d, v%d, 16" % (36 + j, LX + j, L1 + j))
    k.i("ds_write_b128 v6, v[28:31] offset:%d" % (2 * CSTR))
    k.i("ds_write_b128 v6, v[36:39] offset:%d" % (0 * CSTR))
    k.i("s_waitcnt vmcnt(0)")
    k.i("ds_write_b128 v7, v[40:43] offset:%d" % UPAD)
    k.i("ds_write_b128 v7, v[44:47] offset:%d" % (UPAD + 2048))
    k.i("s_lshl_b32 s58, s12, 4")
    k.i("v_mov_b32 v53, s52")
    k.i("s_waitcnt lgkmcnt(0)")
    k.i("s_lshr_b32 s51, s51, s58")
    k.i("s_lshl_b32 s56, s51, 16")
    k.i("s_mov_b32 s57, s56")
    k.i("s_barrier")
    stamp(k, 3)
    k.i("ds_read_u16 v54, v53 offset:%d" % (3 * CSTR + 2 * 752))
    k.i("s_waitcnt lgkmcnt(0)")
    k.i("v_lshl_or_b32 v54, v54, 16, v54")
    for p in range(4): k.i("v_and_b32 v%d, v54, v%d" % (160 + p, 140 + p))
    k.i("s_cmp_eq_u32 s13, 0")
    k.i("s_cbranch_scc0 L_cv_h1")
    conv_main(k, 0)
    stamp(k, 5)
    conv_epilogue(k, 0)
    endpgm(k, 1)
    k.label("L_cv_h1")
    conv_main(k, 1)
    stamp(k, 5)
    conv_epilogue(k, 1)
    endpgm(k, 1)

INB, EXB = 0, 9216

def fi(x):
    return {0: "0", 1: "1.0", 2: "2.0", 4: "4.0"}.get(x, f32(x))

def role_col(k):
    BR, BI, AR, AI, TC, TS, DA, ACR, ACI, P, WW = 16, 32, 48, 64, 80, 88, 96, 128, 136, 144, 152
    k.i("v_lshrrev_b32 v1, 6, v0")
    k.i("v_and_b32 v2, 63, v0")
    k.i("v_readfirstlane_b32 s3, v1")
    k.i("s_sub_u32 s48, s2, %d" % K2_NC)
    k.i("s_and_b32 s12, s48, 7"); k.i("s_lshl_b32 s12, s12, 1")
    k.i("s_bfe_u32 s49, s48, 0x10003"); k.i("s_add_u32 s12, s12, s49")
    k.i("s_and_b32 s49, s48, 0xf0"); k.i("s_add_u32 s12, s12, s49")
    k.i("s_lshr_b32 s13, s12, 4"); k.i("s_add_u32 s13, s13, 1")
    k.i("s_and_b32 s14, s12, 15")
    k.i("s_cmp_ge_u32 s12, 208")
    k.i("s_cselect_b32 s13, 14, s13")
    k.i("s_sub_u32 s48, s12, 216")
    k.i("s_cmp_ge_u32 s12, 216")
    k.i("s_cselect_b32 s13, 0, s13"); k.i("s_cselect_b32 s14, s48, s14")
    k.i("s_lshl_b32 s15, s13, 4"); k.i("s_add_u32 s15, s15, s14")
    k.i("s_mul_i32 s48, s14, 28"); k.i("s_add_u32 s48, s48, s13")
    k.i("s_sub_u32 s49, 448, s48")
    k.i("s_cmp_gt_u32 s48, 224")
    k.i("s_cselect_b32 s50, 1, 0")
    k.i("s_cselect_b32 s49, s49, s48")
    k.i("s_lshl_b32 s51, s15, 6")
    k.i("s_add_u32 s51, s51, 0x%x" % WS_X1)
    k.i("v_lshrrev_b32 v3, 2, v0")
    k.i("v_lshlrev_b32 v3, 14, v3")
    k.i("v_and_b32 v4, 3, v0")
    k.i("v_lshl_add_u32 v3, v4, 4, v3")
    k.i("v_add_u32 v3, s51, v3")
    k.i("v_and_b32 v4, 15, v2")
    k.i("v_lshrrev_b32 v5, 4, v2")
    k.i("s_lshl_b32 s52, s3, 4")
    k.i("v_add_u32 v6, s52, v4")
    k.i("v_lshlrev_b32 v7, 2, v5")
    k.i("v_lshl_add_u32 v8, v6, 5, v7")
    k.i("v_sub_u32 v9, 64, v6"); k.i("v_and_b32 v9, 63, v9")
    k.i("v_lshlrev_b32 v9, 5, v9"); k.i("v_sub_u32 v9, v9, v7"); k.i("v_add_u32 v9, 12, v9")
    k.i("v_cmp_eq_u32 vcc, 0, v6")
    k.i("v_addc_co_u32 v9, vcc, 0, v9, vcc")
    k.i("s_cmp_eq_u32 s50, 1")
    k.i("s_cselect_b64 vcc, -1, 0")
    k.i("v_cndmask_b32 v8, v8, v9, vcc")
    k.i("s_lshl_b32 s53, s49, 13")
    k.i("s_add_u32 s53, s53, 0x%x" % WS_WT)
    k.i("v_lshl_add_u32 v8, v8, 2, s53")
    k.i("s_waitcnt lgkmcnt(0)")
    stamp(k, 1)
    ws_srd(k)
    k.i("buffer_load_dwordx4 %s, v3, s[8:11], 0 offen" % v(DA, 4))
    k.i("s_mov_b32 s54, 0x100000")
    k.i("buffer_load_dwordx4 %s, v3, s[8:11], s54 offen" % v(DA + 4, 4))
    k.i("buffer_load_dwordx4 %s, v8, s[8:11], 0 offen" % v(WW, 4))
    k.i("buffer_load_dwordx4 %s, v8, s[8:11], 0 offen offset:64" % v(WW + 4, 4))
    k.i("s_load_dword s55, %s, s53" % sp(P_WS))
    sc2 = 2.0 / (2048 * 448); sc1 = 1.0 / (2048 * 448)
    k.i("s_mov_b32 s56, %s" % f32(sc2))
    k.i("s_cmp_eq_u32 s48, 0"); k.i("s_cselect_b32 s56, %s, s56" % f32(sc1))
    k.i("s_cmp_eq_u32 s48, 224"); k.i("s_cselect_b32 s56, %s, s56" % f32(sc1))
    k.i("s_mov_b32 s57, s56")
    k.i("s_lshl_b32 s58, s50, 31"); k.i("s_xor_b32 s58, s58, s56"); k.i("s_mov_b32 s59, s58")
    k.i("v_and_b32 v9, 7, v0")
    k.i("v_lshlrev_b32 v9, 2, v9")
    k.i("v_lshrrev_b32 v10, 3, v0")
    k.i("v_xor_b32 v10, v10, v9")
    k.i("v_lshlrev_b32 v10, 2, v10")
    k.i("v_mul_u32_u24 v9, 288, v9")
    k.i("v_add_u32 v9, v9, v10")
    k.i("v_lshrrev_b32 v10, 2, v4")
    k.i("v_xor_b32 v10, v10, v5")
    k.i("v_lshlrev_b32 v10, 4, v10")
    k.i("v_mul_u32_u24 v11, 288, v4")
    k.i("v_add_u32 v10, v10, v11")
    k.i("v_xor_b32 v11, v4, v7")
    k.i("v_lshlrev_b32 v11, 2, v11")
    k.i("v_mul_u32_u24 v12, 288, v7")
    k.i("v_add_u32 v11, v11, v12")
    k.i("s_lshl_b32 s60, s3, 6"); k.i("s_add_u32 s60, s60, %d" % EXB)
    k.i("s_xor_b32 s61, s3, 1"); k.i("s_lshl_b32 s61, s61, 6"); k.i("s_add_u32 s61, s61, %d" % (EXB + 4608))
    k.i("v_add_u32 v12, s61, v11")
    k.i("v_add_u32 v11, s60, v11")
    k.i("v_lshlrev_b32 v13, 7, v6")
    k.i("v_lshl_add_u32 v13, v5, 4, v13")
    k.i("s_lshl_b32 s62, s15, 13"); k.i("s_add_u32 s62, s62, 0x%x" % WS_Z)
    k.i("v_add_u32 v13, s62, v13")
    k.i("v_cvt_f32_u32 v14, v6")
    k.i("v_cvt_f32_u32 v15, v7")
    t0, t1, t2, t3 = 160, 161, 162, 163
    k.i("v_mul_f32 v%d, %s, v14" % (t3, f32(-1.0 / 64)))
    for q in range(2):
        for i in range(4):
            k.i("v_add_f32 v%d, %s, v15" % (t0, fi(16 * q + i)))
            k.i("v_mul_f32 v%d, v%d, v%d" % (t0, t0, t3))
            k.i("v_cos_f32 v%d, v%d" % (t1, t0)); k.i("v_sin_f32 v%d, v%d" % (t2, t0))
            cvtpk(k, BR + 4 * q + i, t1, t2, neg_hi=True)
            cvtpk(k, BI + 4 * q + i, t2, t1)
    k.i("v_and_b32 v%d, 1, v4" % t0)
    k.i("v_mul_u32_u24 v%d, 0x8000, v%d" % (t0, t0))
    k.i("v_lshl_or_b32 v164, v%d, 16, v%d" % (t0, t0))
    for j in range(8):
        k.i("v_xor_b32 v%d, v164, v%d" % (BR + 8 + j, BR + j))
        k.i("v_xor_b32 v%d, v164, v%d" % (BI + 8 + j, BI + j))
    k.i("v_cvt_f32_u32 v%d, v4" % t3)
    k.i("v_mul_f32 v%d, %s, v%d" % (t3, f32(-1.0 / 32), t3))
    for j in range(4):
        k.i("v_add_f32 v%d, %s, v15" % (t0, fi(j)))
        k.i("v_mul_f32 v%d, v%d, v%d" % (t0, t0, t3))
        k.i("v_cos_f32 v%d, v%d" % (t1, t0)); k.i("v_sin_f32 v%d, v%d" % (t2, t0))
        cvtpk(k, AR + j, t1, t2, neg_hi=True)
        cvtpk(k, AI + j, t2, t1)
    k.i("s_mov_b32 s63, 0x80008000")
    for X in (AR, AI):
        for j in range(4):
            k.i("v_xor_b32 v%d, v164, v%d" % (X + 4 + j, X + j))
        for Tk in range(2):
            for j in range(4):
                src = X + 4 * Tk + j
                if j & 1: k.i("v_xor_b32 v%d, s63, v%d" % (X + 8 + 4 * Tk + j, src))
                else: k.i("v_mov_b32 v%d, v%d" % (X + 8 + 4 * Tk + j, src))
    k.i("v_mul_f32 v%d, %s, v14" % (t3, f32(-1.0 / 2048)))
    for T in range(2):
        for j in range(4):
            k.i("v_add_f32 v%d, %s, v15" % (t0, fi(16 * T + j)))
            k.i("v_mul_f32 v%d, v%d, v%d" % (t0, t0, t3))
            k.i("v_cos_f32 v%d, v%d" % (TC + 4 * T + j, t0)); k.i("v_sin_f32 v%d, v%d" % (TS + 4 * T + j, t0))
    stamp(k, 2)
    k.i("s_waitcnt vmcnt(2)")
    stamp(k, 3)
    for i in range(2):
        for e in range(4):
            k.i("ds_write_b32 v9, v%d offset:%d" % (DA + 4 * i + e, INB + 128 * i + 288 * e))
    k.i("s_waitcnt lgkmcnt(0)")
    k.i("s_barrier")
    stamp(k, 4)
    def big_stage(region):
        for T in range(2):
            for q in range(4):
                k.i("ds_read_b128 %s, v10 offset:%d" % (v(DA + 16 * T + 4 * q, 4), region + 4608 * T + 64 * (q ^ T)))
        for T in range(2):
            for q in range(4):
                k.i("s_waitcnt lgkmcnt(%d)" % (7 - 4 * T - q))
                a = DA + 16 * T + 4 * q
                mfma(k, ACR + 4 * T, a, BR + 4 * q, "0" if q == 0 else ACR + 4 * T)
                mfma(k, ACI + 4 * T, a, BI + 4 * q, "0" if q == 0 else ACI + 4 * T)
    def small_stage(outr, outi):
        for To in range(2):
            for Tk in range(2):
                mfma(k, outr + 4 * To, AR + 4 * (2 * To + Tk), P + 4 * Tk, "0" if Tk == 0 else outr + 4 * To)
                mfma(k, outi + 4 * To, AI + 4 * (2 * To + Tk), P + 4 * Tk, "0" if Tk == 0 else outi + 4 * To)
    big_stage(INB)
    for T in range(2):
        twiddle4(k, ACR + 4 * T, ACI + 4 * T, TC + 4 * T, TS + 4 * T, t0, t2)
        for j in range(4): cvtpk(k, P + 4 * T + j, ACR + 4 * T + j, ACI + 4 * T + j)
    XR, XI = DA, DA + 8
    small_stage(XR, XI)
    stamp(k, 5)
    k.i("s_waitcnt vmcnt(0) lgkmcnt(0)")
    k.i("s_cmp_eq_u32 s50, 0")
    k.i("s_cbranch_scc1 L_col_norev")
    for j in range(4): k.i("v_swap_b32 v%d, v%d" % (WW + j, WW + 7 - j))
    k.i("s_cmp_eq_u32 s3, 0")
    k.i("s_cbranch_scc0 L_col_norev")
    k.i("v_writelane_b32 v%d, s55, 0" % WW)
    k.label("L_col_norev")
    WR, WI = DA + 16, DA + 24
    for j in range(8):
        k.i("v_lshlrev_b32 v%d, 16, v%d" % (WR + j, WW + j))
        k.i("v_and_b32 v%d, 0xffff0000, v%d" % (WI + j, WW + j))
    for j in range(0, 8, 2):
        k.i("v_pk_mul_f32 %s, %s, s[56:57]" % (v(WR + j, 2), v(WR + j, 2)))
        k.i("v_pk_mul_f32 %s, %s, s[58:59]" % (v(WI + j, 2), v(WI + j, 2)))
    for T in range(2):
        twiddle4(k, XR + 4 * T, XI + 4 * T, WR + 4 * T, WI + 4 * T, t0, t2)
        for j in range(4): cvtpk(k, P + 4 * T + j, XI + 4 * T + j, XR + 4 * T + j)
    small_stage(ACR, ACI)
    for T in range(2):
        twiddle4(k, ACR + 4 * T, ACI + 4 * T, TC + 4 * T, TS + 4 * T, t0, t2)
        for j in range(4): cvtpk(k, P + 4 * T + j, ACR + 4 * T + j, ACI + 4 * T + j)
    for T in range(2):
        for j in range(4):
            k.i("ds_write_b32 v%d, v%d offset:%d" % (11 + T, P + 4 * T + j, 288 * j))
    k.i("s_waitcnt lgkmcnt(0)")
    k.i("s_barrier")
    stamp(k, 6)
    big_stage(EXB)
    for T in range(2):
        for j in range(4): cvtpk(k, P + 4 * T + j, ACI + 4 * T + j, ACR + 4 * T + j)
        k.i("buffer_store_dwordx4 %s, v13, s[8:11], 0 offen offset:%d%s" % (v(P + 4 * T, 4), 64 * T, stf("Z")))
    endpgm(k, 1)

def gen_k2(k, name):
    kernel_header(k, name)
    diag_begin(k)
    load_kernargs(k)
    k.i("s_cmp_lt_u32 s2, %d" % K2_NC)
    k.i("s_cbranch_scc1 L_k2_conv")
    k.i("s_cmp_lt_u32 s2, %d" % K2_GRID)
    k.i("s_cbranch_scc1 L_k2_col")
    k.i("s_endpgm")
    k.label("L_k2_conv"); role_conv(k)
    k.label("L_k2_col"); role_col(k)
```

```python
from common import *

K3_GRID = 128
K3_BLOCK = 256
ZRS = 1040
ZI = 0
A1 = 16 * ZRS
A2 = A1 + 14336
ARS = 912
K3_LDS = A2 + 16 * ARS + 128
K3_VGPR = 128

def fi(x):
    return {0: "0", 1: "1.0", 2: "2.0", 4: "4.0"}.get(x, f32(x))

def gen_k3(k, name):
    kernel_header(k, name)
    diag_begin(k)
    load_kernargs(k)
    k.i("s_cmp_lt_u32 s2, %d" % K3_GRID)
    k.i("s_cbranch_scc1 L_k3_go")
    k.i("s_endpgm")
    k.label("L_k3_go")
    k.i("v_lshrrev_b32 v1, 6, v0")
    k.i("v_and_b32 v2, 63, v0")
    k.i("v_readfirstlane_b32 s3, v1")
    k.i("s_and_b32 s4, s2, 7"); k.i("s_lshl_b32 s4, s4, 4"); k.i("s_lshr_b32 s5, s2, 3"); k.i("s_add_u32 s4, s4, s5")
    k.i("s_lshl_b32 s12, s4, 6"); k.i("s_add_u32 s12, s12, 0x%x" % WS_Z)
    k.i("v_lshrrev_b32 v3, 2, v0"); k.i("v_lshlrev_b32 v3, 13, v3")
    k.i("v_and_b32 v4, 3, v0"); k.i("v_lshl_add_u32 v3, v4, 4, v3")
    k.i("v_add_u32 v3, s12, v3")
    k.i("s_lshl_b32 s13, s4, 5"); k.i("s_add_u32 s13, s13, 0x%x" % WS_AT)
    k.i("v_lshrrev_b32 v4, 1, v0"); k.i("v_lshlrev_b32 v4, 12, v4")
    k.i("v_and_b32 v5, 1, v0"); k.i("v_lshl_add_u32 v4, v5, 4, v4")
    k.i("v_add_u32 v4, s13, v4")
    k.i("v_lshrrev_b32 v5, 2, v2")
    k.i("s_cmp_eq_u32 s3, 0"); k.i("s_cselect_b32 s14, 9, 16")
    k.i("s_cmp_eq_u32 s3, 2"); k.i("s_cselect_b32 s15, 8, 16")
    k.i("s_cmp_eq_u32 s3, 3"); k.i("s_cselect_b32 s15, 0, s15")
    k.i("v_mov_b32 v8, 0x7ffffff0")
    k.i("v_cmp_gt_u32 vcc, s14, v5")
    k.i("v_cndmask_b32 v6, v8, v3, vcc")
    k.i("v_cmp_gt_u32 vcc, s15, v5")
    k.i("v_add_u32 v7, 0x180000, v3")
    k.i("v_cndmask_b32 v7, v8, v7, vcc")
    k.i("s_lshl_b32 s48, s4, 4"); k.i("s_lshl_b32 s49, s3, 2"); k.i("s_add_u32 s48, s48, s49")
    k.i("s_lshl_b32 s50, s48, 2"); k.i("s_add_u32 s50, s50, 0x%x" % WS_G)
    k.i("s_waitcnt lgkmcnt(0)")
    stamp(k, 1)
    ws_srd(k)
    k.i("s_load_dwordx4 s[60:63], %s, s50" % sp(P_WS))
    k.i("s_mov_b32 s51, 0x80000"); k.i("s_mov_b32 s52, 0x100000"); k.i("s_mov_b32 s53, 0x180000")
    ZL, AL = 16, 32
    k.i("buffer_load_dwordx4 %s, v6, s[8:11], 0 offen" % v(ZL, 4))
    k.i("buffer_load_dwordx4 %s, v3, s[8:11], s51 offen" % v(ZL + 4, 4))
    k.i("buffer_load_dwordx4 %s, v3, s[8:11], s52 offen" % v(ZL + 8, 4))
    k.i("buffer_load_dwordx4 %s, v7, s[8:11], 0 offen" % v(ZL + 12, 4))
    for i in range(3):
        k.i("buffer_load_dwordx4 %s, v4, s[8:11], %s offen" % (v(AL + 4 * i, 4), "0" if i == 0 else "s%d" % (50 + i)))
    k.i("s_cmp_lt_u32 s3, 2")
    k.i("s_cbranch_scc0 L_k3_noa3")
    k.i("buffer_load_dwordx4 %s, v4, s[8:11], s53 offen" % v(AL + 12, 4))
    k.label("L_k3_noa3")
    srd(k, 56, P_OUT, 2048 * 896)
    k.i("v_and_b32 v9, 3, v2")
    k.i("v_mul_u32_u24 v9, %d, v9" % (4 * ZRS))
    k.i("s_lshl_b32 s54, s3, 6")
    k.i("v_add_u32 v9, s54, v9")
    k.i("v_lshl_add_u32 v10, v5, 2, v9")
    k.i("v_xor_b32 v11, 8, v5")
    k.i("v_lshl_add_u32 v11, v11, 2, v9")
    k.i("v_lshlrev_b32 v12, 4, v0")
    k.i("v_add_u32 v12, %d, v12" % A1)
    k.i("v_and_b32 v13, 15, v2")
    k.i("v_lshrrev_b32 v14, 4, v2")
    k.i("v_lshlrev_b32 v15, 3, v2")
    k.i("s_lshl_b32 s54, s3, 9"); k.i("s_add_u32 s54, s54, %d" % A1)
    k.i("v_add_u32 v15, s54, v15")
    k.i("v_mul_u32_u24 v48, %d, v13" % ARS)
    k.i("v_lshl_add_u32 v48, v14, 3, v48")
    k.i("s_lshl_b32 s54, s3, 5"); k.i("s_add_u32 s54, s54, %d" % A2)
    k.i("v_add_u32 v48, s54, v48")
    k.i("v_lshrrev_b32 v49, 2, v13"); k.i("v_and_b32 v49, 1, v49"); k.i("v_lshlrev_b32 v49, 1, v49")
    k.i("v_xor_b32 v49, v49, v14")
    k.i("v_lshlrev_b32 v49, 4, v49")
    k.i("v_lshl_add_u32 v49, v13, 6, v49")
    k.i("s_mul_i32 s54, s3, %d" % (4 * ZRS))
    k.i("v_add_u32 v49, s54, v49")
    k.i("v_lshlrev_b32 v50, 3, v14")
    k.i("v_lshl_add_u32 v50, v13, 5, v50")
    k.i("s_mul_i32 s54, s48, 896")
    k.i("v_add_u32 v51, s54, v50")
    k.i("s_mul_i32 s54, s3, %d" % (4 * ARS)); k.i("s_add_u32 s54, s54, %d" % A2)
    k.i("v_add_u32 v50, s54, v50")
    GR, GI, TC, TS, H0, H1 = 52, 56, 60, 64, 68, 72
    t0, t1, t2, t3 = 76, 77, 78, 79
    k.i("v_cvt_f32_u32 v80, v13")
    k.i("v_lshlrev_b32 v81, 2, v14"); k.i("v_cvt_f32_u32 v81, v81")
    k.i("v_mul_f32 v%d, %s, v80" % (t3, f32(1.0 / 16)))
    for j in range(4):
        k.i("v_add_f32 v%d, %s, v81" % (t0, fi(j))); k.i("v_mul_f32 v%d, v%d, v%d" % (t0, t0, t3))
        k.i("v_cos_f32 v%d, v%d" % (t1, t0)); k.i("v_sin_f32 v%d, v%d" % (t2, t0))
        cvtpk(k, GR + j, t1, t2, neg_hi=True); cvtpk(k, GI + j, t2, t1)
    k.i("v_mul_f32 v%d, %s, v80" % (t3, f32(1.0 / 448)))
    for j in range(4):
        k.i("v_add_f32 v%d, %s, v81" % (t0, fi(j))); k.i("v_mul_f32 v%d, v%d, v%d" % (t0, t0, t3))
        k.i("v_cos_f32 v%d, v%d" % (TC + j, t0)); k.i("v_sin_f32 v%d, v%d" % (TS + j, t0))
    for tile, H in ((0, H0), (1, H1)):
        k.i("v_add_f32 v%d, %s, v80" % (t3, fi(16 * tile)))
        k.i("v_mul_f32 v%d, %s, v%d" % (t3, f32(1.0 / 28), t3))
        for j in range(4):
            k.i("v_add_f32 v%d, %s, v81" % (t0, fi(j))); k.i("v_mul_f32 v%d, v%d, v%d" % (t0, t0, t3))
            k.i("v_cos_f32 v%d, v%d" % (t1, t0)); k.i("v_sin_f32 v%d, v%d" % (t2, t0))
            cvtpk(k, H + j, t1, t2, neg_hi=True)
    k.i("v_cmp_gt_u32 vcc, 3, v14")
    k.i("v_cndmask_b32 v%d, 0, v%d, vcc" % (H0 + 3, H0 + 3))
    k.i("v_cndmask_b32 v%d, 0, v%d, vcc" % (H1 + 3, H1 + 3))
    stamp(k, 2)
    k.i("s_waitcnt vmcnt(0) lgkmcnt(0)")
    stamp(k, 3)
    for rr in range(4):
        k.i("s_mov_b32 s%d, s%d" % (64 + 2 * rr, 60 + rr)); k.i("s_mov_b32 s%d, s%d" % (65 + 2 * rr, 60 + rr))
    for i in range(3):
        k.i("ds_write_b128 v12, %s offset:%d" % (v(AL + 4 * i, 4), 4096 * i))
    k.i("s_cmp_lt_u32 s3, 2")
    k.i("s_cbranch_scc0 L_k3_noa3w")
    k.i("ds_write_b128 v12, %s offset:%d" % (v(AL + 12, 4), 4096 * 3))
    k.label("L_k3_noa3w")
    for i in range(4):
        for e in range(4):
            k.i("ds_write_b32 v%d, v%d offset:%d" % (10 + (i & 1), ZL + 4 * i + e, ZI + 256 * i + ZRS * e))
    k.i("s_waitcnt lgkmcnt(0)")
    k.i("s_barrier")
    stamp(k, 4)
    for it in range(7):
        k.i("ds_read_b64_tr_b16 %s, v15 offset:%d" % (v(16 + 2 * it, 2), 2048 * it))
    ZA = 32
    for rr in range(4):
        k.i("ds_read_b128 %s, v49 offset:%d" % (v(ZA + 4 * rr, 4), ZI + ZRS * rr))
    for it in range(7):
        k.i("s_waitcnt lgkmcnt(10)")
        k.i("ds_write_b64 v48, %s offset:%d" % (v(16 + 2 * it, 2), 128 * it))
    DR, DI = 84, 100
    k.i("s_waitcnt lgkmcnt(7)")
    for rr in range(4):
        mfma(k, DR + 4 * rr, ZA + 4 * rr, GR, "0")
        mfma(k, DI + 4 * rr, ZA + 4 * rr, GI, "0")
    k.i("s_waitcnt lgkmcnt(0)")
    k.i("s_barrier")
    stamp(k, 5)
    AV = 16
    for rr in range(4):
        for tile in range(2):
            k.i("ds_read_b64 %s, v50 offset:%d" % (v(AV + 4 * rr + 2 * tile, 2), ARS * rr + 512 * tile))
    P = 32
    for rr in range(4):
        twiddle4(k, DR + 4 * rr, DI + 4 * rr, TC, TS, t0, t2)
        for j in range(4): cvtpk(k, P + 4 * rr + j, DR + 4 * rr + j, DI + 4 * rr + j)
    for rr in range(4):
        mfma(k, DR + 4 * rr, P + 4 * rr, H0, "0")
        mfma(k, DI + 4 * rr, P + 4 * rr, H1, "0")
    k.i("s_waitcnt lgkmcnt(0)")
    for rr in range(4):
        for tile in range(2):
            b = (DR if tile == 0 else DI) + 4 * rr; a = AV + 4 * rr + 2 * tile
            k.i("v_lshlrev_b32 v116, 16, v%d" % a); k.i("v_and_b32 v117, 0xffff0000, v%d" % a)
            k.i("v_lshlrev_b32 v118, 16, v%d" % (a + 1)); k.i("v_and_b32 v119, 0xffff0000, v%d" % (a + 1))
            k.i("v_pk_add_f32 v[116:117], v[116:117], %s neg_lo:[0,1] neg_hi:[0,1]" % v(b, 2))
            k.i("v_pk_add_f32 v[118:119], v[118:119], %s neg_lo:[0,1] neg_hi:[0,1]" % v(b + 2, 2))
            g = 64 + 2 * rr
            k.i("v_pk_fma_f32 v[116:117], v[116:117], s[%d:%d], %s" % (g, g + 1, v(b, 2)))
            k.i("v_pk_fma_f32 v[118:119], v[118:119], s[%d:%d], %s" % (g, g + 1, v(b + 2, 2)))
            o = 120 + 2 * tile
            cvtpk(k, o, 116, 117); cvtpk(k, o + 1, 118, 119)
            if tile == 1:
                k.i("s_mov_b32 exec_lo, 0x0fff0fff"); k.i("s_mov_b32 exec_hi, 0x0fff0fff")
            k.i("buffer_store_dwordx2 %s, v51, s[56:59], 0 offen offset:%d%s" % (v(o, 2), 896 * rr + 512 * tile, stf("OUT")))
            if tile == 1: k.i("s_mov_b64 exec, -1")
    endpgm(k, 2)
```

```python
from common import *
from sched import Block

import os
PREFETCH = int(os.environ.get('PREFETCH', '16'))
K1_NK, K1_NR, K1_NW = 224, 128, 64
K1_GRID = K1_NK + K1_NR + K1_NW
K1_LDS = 57664
TROW = 544
CHB = 53 * TROW

def role_kgen(k):
    W, CH, WP, D = 3, 12, 13, 14
    k.i("v_lshrrev_b32 v1, 6, v0")
    k.i("v_and_b32 v2, 63, v0")
    k.i("v_readfirstlane_b32 s3, v1")
    k.i("s_lshl_b32 s15, s2, 2")
    k.i("s_lshr_b32 s12, s3, 1")
    k.i("s_and_b32 s13, s3, 1")
    k.i("s_lshl_b32 s14, s2, 1")
    k.i("s_add_u32 s14, s14, s12")
    k.i("s_lshl_b32 s48, s14, 9")
    k.i("s_lshl_b32 s49, s13, 8")
    k.i("s_add_u32 s48, s48, s49")
    k.i("v_lshl_add_u32 v1, v2, 2, s48")
    if PREFETCH:
        k.i("s_cmp_lt_u32 s2, %d" % PREFETCH)
        k.i("s_cbranch_scc0 L_kg_nopf")
        code_prefetch(k, 120, "L_kg_pc")
        k.label("L_kg_nopf")
    k.i("s_waitcnt lgkmcnt(0)")
    stamp(k, 1)
    k.i("s_load_dword s50, %s, s15" % sp(P_LOGDT))
    for j, p in enumerate((P_ARE, P_AIM, P_BRE, P_BIM, P_CRE, P_CIM)):
        k.i("global_load_dword v%d, v1, %s" % (4 + j, sp(p)))
    ws_srd(k)
    k.i("s_mul_i32 s51, s12, %d" % CHB)
    k.i("s_add_u32 s52, s51, s49")
    k.i("s_mov_b32 m0, s52")
    k.i("v_and_b32 v10, 15, v2")
    k.i("v_lshrrev_b32 v11, 4, v2")
    k.i("v_mul_u32_u24 v12, %d, v10" % TROW)
    k.i("v_lshl_add_u32 v12, v11, 4, v12")
    k.i("v_add_u32 v72, s51, v12")
    k.i("s_mul_i32 s53, s13, %d" % (16 * TROW))
    k.i("s_add_u32 s53, s53, %d" % (21 * TROW))
    k.i("v_add_u32 v73, s53, v72")
    k.i("s_lshl_b32 s54, s13, 4")
    k.i("v_add_u32 v13, s54, v10")
    k.i("v_and_b32 v87, 3, v13")
    k.i("v_lshrrev_b32 v14, 2, v13")
    k.i("v_lshlrev_b32 v13, 5, v13")
    k.i("v_lshl_add_u32 v13, v14, 2, v13")
    k.i("v_add_u32 v13, s51, v13")
    k.i("v_max_u32 v14, 1, v11")
    k.i("v_lshlrev_b32_e64 v15, v14, 2")
    k.i("v_lshlrev_b32 v16, 4, v11")
    k.i("v_subrev_u32 v17, 1, v11")
    k.i("v_mul_u32_u24 v17, 1056, v17")
    k.i("v_cmp_gt_u32 vcc, 2, v11")
    k.i("v_cndmask_b32 v16, v17, v16, vcc")
    k.i("v_add_u32 v74, v13, v16")
    k.i("v_add_u32 v75, v74, v15")
    k.i("v_lshlrev_b32 v17, 1, v15")
    k.i("v_mov_b32 v18, 1056")
    k.i("v_cmp_eq_u32 vcc, 3, v11")
    k.i("v_cndmask_b32 v17, v17, v18, vcc")
    k.i("v_add_u32 v76, v74, v17")
    k.i("v_add_u32 v77, v76, v15")
    k.i("v_mul_u32_u24 v17, 4224, v11")
    k.i("v_add_u32 v78, v13, v17")
    k.i("v_cmp_eq_u32 vcc, 0, v87")
    k.i("v_cndmask_b32_e64 v87, 4, 8, vcc")
    k.i("v_sub_u32 v87, v74, v87")
    k.i("s_lshl_b32 s57, s13, 6")
    k.i("v_add_u32 v88, s57, v2")
    k.i("v_sub_u32 v89, 69, v88")
    k.i("v_lshlrev_b32 v89, 3, v89")
    k.i("v_mov_b32 v90, 1")
    k.i("v_mov_b32 v16, 2059")
    k.i("v_mov_b32 v17, 2056")
    k.i("v_cmp_eq_u32 vcc, 5, v88")
    k.i("v_cndmask_b32 v89, v89, v17, vcc")
    k.i("v_subrev_u32 v14, 74, v88")
    k.i("v_mul_u32_u24 v15, 43, v14")
    k.i("v_lshrrev_b32 v15, 8, v15")
    k.i("v_mul_u32_u24 v17, 6, v15")
    k.i("v_sub_u32 v17, v14, v17")
    k.i("v_lshlrev_b32 v18, 7, v17")
    k.i("v_sub_u32 v18, %d, v18" % (16 * 72 + 4))
    k.i("v_lshl_add_u32 v18, v15, 2, v18")
    k.i("v_cmp_le_u32 vcc, 74, v88")
    k.i("v_cndmask_b32 v89, v89, v18, vcc")
    k.i("v_mov_b32 v19, 16")
    k.i("v_cndmask_b32 v90, v90, v19, vcc")
    k.i("v_cmp_gt_u32 s[60:61], 2, v17")
    k.i("s_and_b64 s[60:61], s[60:61], vcc")
    k.i("v_subrev_u32 v14, 100, v88")
    k.i("v_cmp_le_u32 vcc, 110, v88")
    k.i("v_cndmask_b32_e64 v15, 0, 1, vcc")
    k.i("v_mul_u32_u24 v17, 10, v15")
    k.i("v_sub_u32 v17, v14, v17")
    k.i("v_lshlrev_b32 v18, 7, v17")
    k.i("v_sub_u32 v18, %d, v18" % (16 * 120 + 8))
    k.i("v_lshl_add_u32 v18, v15, 3, v18")
    k.i("v_cmp_le_u32 vcc, 100, v88")
    k.i("v_cndmask_b32 v89, v89, v18, vcc")
    k.i("s_andn2_b64 s[60:61], s[60:61], vcc")
    k.i("v_cmp_le_u32 s[62:63], 8, v17")
    k.i("s_and_b64 s[62:63], s[62:63], vcc")
    k.i("s_or_b64 s[60:61], s[60:61], s[62:63]")
    k.i("v_cmp_gt_u32 vcc, 5, v88"); k.i("s_or_b64 s[60:61], s[60:61], vcc")
    k.i("v_subrev_u32 v14, 70, v88"); k.i("v_cmp_gt_u32 vcc, 4, v14"); k.i("s_or_b64 s[60:61], s[60:61], vcc")
    k.i("v_subrev_u32 v14, 98, v88"); k.i("v_cmp_gt_u32 vcc, 2, v14"); k.i("s_or_b64 s[60:61], s[60:61], vcc")
    k.i("v_cmp_le_u32 vcc, 120, v88"); k.i("s_or_b64 s[60:61], s[60:61], vcc")
    k.i("v_cndmask_b32 v89, v89, v16, s[60:61]")
    k.i("v_cndmask_b32_e64 v90, v90, 0, s[60:61]")
    for i in range(8):
        k.i("v_mad_u32_u24 v14, v90, %d, v89" % (7 - i))
        k.i("v_lshrrev_b32 v15, 5, v14")
        k.i("v_add_u32 v14, v14, v15")
        k.i("v_lshl_add_u32 v%d, v14, 2, s51" % (92 + i))
    k.i("v_mov_b32 v38, 0x3f80")
    for j in range(8): k.i("v_mov_b32 v%d, 0" % (40 + j))
    k.i("s_waitcnt lgkmcnt(0)")
    k.i("s_lshl_b32 s55, s12, 4")
    k.i("s_lshr_b32 s50, s50, s55")
    k.i("s_lshl_b32 s50, s50, 16")
    k.i("v_mov_b32 v86, s50")
    k.i("v_mul_f32 v86, 0x%x, v86" % LOG2E)
    k.i("v_exp_f32 v86, v86")
    k.i("v_cvt_pk_bf16_f32 v86, v86, v86")
    k.i("v_and_b32 v86, 0xffff0000, v86")
    k.i("s_mov_b32 s56, 0")
    k.i("s_waitcnt vmcnt(0)")
    stamp(k, 2)
    k.label("L_kg_round", loop=True)
    blk = Block()
    class W:
        def i(self, t): blk.i(t)
    w = W()
    z1, z2, z3, z4, z6, Z, cur, tmp = 12, 14, 16, 18, 20, 22, 24, 26
    b0, b1, wc, w2, tb0, tb1, Zp, cur2, tmp2 = 28, 30, 32, 48, 50, 52, 54, 56, 58
    for j in range(6): w.i("v_lshlrev_b32 v%d, 16, v%d" % (80 + j, 4 + j))
    for j in range(6): w.i("v_lshrrev_b32 v%d, 16, v%d" % (4 + j, 4 + j))
    are, aim, bre, bim, cre, cim = 80, 81, 82, 83, 84, 85
    w.i("v_mul_f32 v10, v86, v%d" % are)
    w.i("v_mul_f32 v11, v86, v%d" % aim)
    w.i("v_mul_f32 v10, 0x%x, v10" % LOG2E)
    w.i("v_mul_f32 v11, %s, v11" % INV2PI)
    w.i("v_mul_f32 v%d, v86, v%d" % (bre, bre))
    w.i("v_mul_f32 v%d, v86, v%d" % (bim, bim))
    cmul(w, b0, cre, bre, tb0, conj_out=True)
    def direct(dst, mult, conj, t):
        if mult == 1:
            w.i("v_exp_f32 v%d, v10" % t); w.i("v_fract_f32 v%d, v11" % (t + 1))
        else:
            w.i("v_mul_f32 v%d, %s, v10" % (t, f32(mult)))
            w.i("v_mul_f32 v%d, %s, v11" % (t + 1, f32(-mult if conj else mult)))
            w.i("v_exp_f32 v%d, v%d" % (t, t)); w.i("v_fract_f32 v%d, v%d" % (t + 1, t + 1))
        w.i("v_cos_f32 v%d, v%d" % (dst, t + 1))
        w.i("v_sin_f32 v%d, v%d" % (dst + 1, t + 1))
        w.i("v_pk_mul_f32 %s, %s, %s op_sel_hi:[1,0]" % (v(dst, 2), v(dst, 2), v(t, 2)))
    direct(wc, 8, True, 60)
    direct(z1, 1, False, 62)
    direct(Z, 256, False, 64)
    tcount = [0]
    def put(row, reg):
        t = 66 + (tcount[0] & 3); tcount[0] += 1
        cvtpk(w, t, reg, reg + 1)
        w.i("ds_write_addtid_b32 v%d offset:%d" % (t, row * TROW))
    w.i("ds_write_addtid_b32 v38 offset:0")
    cmul(w, w2, wc, wc, tb1)
    cmul(w, b1, b0, wc, tb1)
    A = []
    A.append(lambda: put(1, z1))
    A.append(lambda: (cmul(w, z2, z1, z1, tmp), put(2, z2)))
    A.append(lambda: put(8, Z))
    A.append(lambda: (cmul(w, z4, z2, z2, tmp), put(4, z4)))
    A.append(lambda: (cmul(w, Zp, Z, Z, tmp2), put(12, Zp)))
    A.append(lambda: (cmul(w, z3, z2, z1, tmp), put(3, z3)))
    A.append(lambda: (cmul(w, cur2, Zp, z4, tmp2), put(13, cur2)))
    A.append(lambda: (cmul(w, cur, z4, z1, tmp), put(5, cur)))
    A.append(lambda: (cmul(w, Zp, Zp, Z, tmp2), put(14, Zp)))
    A.append(lambda: (cmul(w, z6, z4, z2, tmp), put(6, z6)))
    A.append(lambda: (cmul(w, cur2, Zp, z4, tmp2), put(15, cur2)))
    A.append(lambda: (cmul(w, cur, z4, z3, tmp), put(7, cur)))
    A.append(lambda: (cmul(w, Zp, Zp, Z, tmp2), put(16, Zp)))
    A.append(lambda: (cmul(w, cur, Z, z2, tmp), put(9, cur)))
    A.append(lambda: (cmul(w, Zp, Zp, Z, tmp2), put(17, Zp)))
    A.append(lambda: (cmul(w, cur, Z, z4, tmp), put(10, cur)))
    A.append(lambda: (cmul(w, Zp, Zp, Z, tmp2), put(18, Zp)))
    A.append(lambda: (cmul(w, cur, Z, z6, tmp), put(11, cur)))
    A.append(lambda: (cmul(w, Zp, Zp, Z, tmp2), put(19, Zp)))
    A.append(lambda: (cmul(w, Zp, Zp, Z, tmp2), put(20, Zp)))
    ai = 0
    for c in range(0, 32, 2):
        put(21 + c, b0); put(21 + c + 1, b1)
        if c < 30:
            cmul(w, b0, b0, w2, tb0); cmul(w, b1, b1, w2, tb1)
        for _ in range(2):
            if ai < len(A): A[ai](); ai += 1
    assert ai == len(A)
    est = blk.emit(k)
    k.c("gen estimate %d" % est)
    if DIAG:
        k.i("s_cmp_eq_u32 s56, 0"); k.i("s_cbranch_scc0 L_dg1"); stamp(k, 3); k.label("L_dg1")
    k.i("s_waitcnt lgkmcnt(0)")
    k.i("s_barrier")
    blk = Block()
    for q in range(8):
        a0 = (48, 60, 12, 24)[q % 4]
        blk.i("ds_read_b128 %s, v73 offset:%d" % (v(a0 + 8, 4), 64 * q))
        blk.i("ds_read_b128 %s, v72 offset:%d" % (v(a0, 4), 64 * q))
        blk.i("ds_read_b128 %s, v72 offset:%d" % (v(a0 + 4, 4), 64 * q + 16 * TROW))
        blk.i("v_mfma_f32_16x16x32_bf16 v[40:43], %s, %s, v[40:43]" % (v(a0, 4), v(a0 + 8, 4)))
        blk.i("v_mfma_f32_16x16x32_bf16 v[44:47], %s, %s, v[44:47]" % (v(a0 + 4, 4), v(a0 + 8, 4)))
    if os.environ.get("X"): pass
    est = blk.emit(k)
    k.c("mfma estimate %d" % est)
    k.i("s_barrier")
    if DIAG:
        k.i("s_cmp_eq_u32 s56, 0"); k.i("s_cbranch_scc0 L_dg2"); stamp(k, 4); k.label("L_dg2")
    k.i("s_add_u32 s56, s56, 1")
    k.i("s_cmp_lt_u32 s56, 2")
    k.i("s_cbranch_scc1 L_kg_round")
    stamp(k, 5)
    for j in range(4): k.i("ds_write_b32 v%d, v%d" % (74 + j, 40 + j))
    k.i("s_mov_b32 exec_hi, 0")
    k.i("ds_write_b32 v78, v44 offset:%d" % (1056 * 4))
    k.i("s_mov_b32 exec_lo, 0xffff")
    for j in range(1, 4): k.i("ds_write_b32 v78, v%d offset:%d" % (44 + j, 1056 * (4 + j)))
    k.i("s_mov_b32 exec_lo, 0"); k.i("s_mov_b32 exec_hi, 0xffff")
    k.i("ds_write_b32 v74, v40 offset:4")
    k.i("v_subrev_u32 v14, 4, v76")
    k.i("ds_write_b32 v76, v42 offset:4")
    k.i("ds_write_b32 v14, v42")
    k.i("s_cmp_eq_u32 s13, 0")
    k.i("s_cselect_b32 exec_hi, 0xfffe, exec_hi")
    k.i("ds_write_b32 v87, v40")
    k.i("s_mov_b64 exec, -1")
    k.i("v_mov_b32 v14, s51")
    k.i("v_mov_b32 v15, 0")
    k.i("s_cmp_eq_u32 s13, 0")
    k.i("s_cbranch_scc0 L_kg_nox")
    k.i("s_mov_b32 exec_lo, 0"); k.i("s_mov_b32 exec_hi, 0x10000")
    a511 = 4 * (511 + (511 >> 5)); ax = 4 * (2056 + (2056 >> 5))
    k.i("ds_write_b32 v14, v40 offset:%d" % a511)
    for e in range(3): k.i("ds_write_b32 v14, v40 offset:%d" % (ax + 4 * e))
    for e in range(3, 8): k.i("ds_write_b32 v14, v15 offset:%d" % (ax + 4 * e))
    k.i("s_mov_b64 exec, -1")
    k.label("L_kg_nox")
    k.i("s_mul_i32 s58, s14, %d" % KSTR)
    k.i("s_add_u32 s58, s58, 0x%x" % WS_KR)
    k.i("v_lshl_add_u32 v19, v88, 4, s58")
    k.i("v_cmp_gt_u32 vcc, 120, v88")
    k.i("s_waitcnt lgkmcnt(0)")
    k.i("s_barrier")
    stamp(k, 6)
    for i in range(8): k.i("ds_read_b32 v%d, v%d" % (24 + i, 92 + i))
    k.i("s_and_b64 exec, exec, vcc")
    for p in range(4):
        k.i("s_waitcnt lgkmcnt(%d)" % (6 - 2 * p))
        cvtpk(k, 56 + p, 24 + 2 * p, 25 + 2 * p)
    k.i("buffer_store_dwordx4 v[56:59], v19, s[8:11], 0 offen" + stf("KR", " sc1"))
    endpgm(k, 0)

XROW = 928
GWB = 16 * XROW
XTB = GWB + 4 * 896
STF = os.environ.get('STF', ' sc1')

def sincos_neg(k, c, sn, ph):
    k.i("v_cos_f32 v%d, v%d" % (c, ph))
    k.i("v_sin_f32 v%d, v%d" % (sn, ph))

def role_row(k):
    if int(os.environ.get("PRIO_ROW", "0")): k.i("s_setprio %s" % os.environ["PRIO_ROW"])
    k.i("v_lshrrev_b32 v1, 6, v0")
    k.i("v_and_b32 v2, 63, v0")
    k.i("v_readfirstlane_b32 s3, v1")
    k.i("s_sub_u32 s12, s2, %d" % K1_NK)
    k.i("s_lshl_b32 s12, s12, 4")
    k.i("s_lshl_b32 s13, s3, 2")
    k.i("s_add_u32 s14, s12, s13")
    k.i("s_mul_i32 s15, s14, 896")
    k.i("v_lshl_add_u32 v3, v2, 4, s15")
    k.i("v_lshlrev_b32 v4, 4, v2")
    k.i("s_waitcnt lgkmcnt(0)")
    stamp(k, 1)
    k.i("s_mov_b32 exec_hi, 0x00ffffff")
    for r in range(4):
        k.i("global_load_dwordx4 %s, v3, %s offset:%d" % (v(8 + 4 * r, 4), sp(P_U), 896 * r))
    k.i("global_load_dwordx4 v[24:27], v4, %s" % sp(P_GW))
    k.i("s_mov_b64 exec, -1")
    ws_srd(k)
    k.i("v_and_b32 v5, 15, v2")
    k.i("v_lshrrev_b32 v6, 4, v2")
    k.i("v_cvt_f32_u32 v28, v5")
    k.i("v_lshlrev_b32 v7, 2, v6")
    k.i("v_cvt_f32_u32 v29, v7")
    F28R, F28I = 32, 36
    k.i("v_mul_f32 v30, %s, v28" % f32(-1.0 / 28))
    for i in range(8):
        d = i if i < 4 else 16 + (i - 4)
        k.i("v_add_f32 v31, %s, v29" % (("%d.0" % d) if d in (1, 2, 4) else ("0" if d == 0 else f32(d))))
        k.i("v_mul_f32 v31, v31, v30")
        sincos_neg(k, 40 + i, 48 + i, 31)
    for i in range(4):
        cvtpk(k, F28R + i, 40 + 2 * i, 40 + 2 * i + 1)
        cvtpk(k, F28I + i, 48 + 2 * i, 48 + 2 * i + 1)
    k.i("v_cmp_gt_u32 vcc, 3, v6")
    for r in (F28R + 2, F28R + 3, F28I + 2, F28I + 3):
        k.i("v_cndmask_b32 v%d, 0, v%d, vcc" % (r, r))
    TC, TS = 40, 44
    k.i("v_mul_f32 v30, %s, v28" % f32(-1.0 / 448))
    for j in range(4):
        k.i("v_add_f32 v31, %s, v29" % (("%d.0" % j) if j in (1, 2) else ("0" if j == 0 else f32(j))))
        k.i("v_mul_f32 v31, v31, v30")
        sincos_neg(k, TC + j, TS + j, 31)
    F16R, F16I = 48, 52
    k.i("v_mul_f32 v30, %s, v28" % f32(-1.0 / 16))
    for j in range(4):
        k.i("v_add_f32 v31, %s, v29" % (("%d.0" % j) if j in (1, 2) else ("0" if j == 0 else f32(j))))
        k.i("v_mul_f32 v31, v31, v30")
        sincos_neg(k, 56, 57, 31)
        cvtpk(k, F16R + j, 56, 57, neg_hi=True)
        cvtpk(k, F16I + j, 57, 56)
    k.i("s_mul_i32 s48, s13, %d" % XROW)
    k.i("v_add_u32 v56, s48, v4")
    k.i("s_mul_i32 s49, s3, 896")
    k.i("s_add_u32 s49, s49, %d" % GWB)
    k.i("v_add_u32 v57, s49, v4")
    k.i("v_lshlrev_b32 v58, 3, v2")
    k.i("v_add_u32 v58, s48, v58")
    k.i("v_cmp_le_u32 vcc, 48, v2")
    k.i("v_cndmask_b32 v59, 0, -128, vcc" if False else "v_mov_b32 v59, 512")
    k.i("v_mov_b32 v60, 384")
    k.i("v_cndmask_b32 v59, v59, v60, vcc")
    k.i("v_add_u32 v59, v58, v59")
    k.i("v_and_b32 v60, 3, v2")
    k.i("v_mul_u32_u24 v60, %d, v60" % XROW)
    k.i("v_lshl_add_u32 v60, v6, 4, v60")
    k.i("v_add_u32 v60, s48, v60")
    k.i("v_lshlrev_b32 v61, 4, v6")
    k.i("v_add_u32 v61, s49, v61")
    k.i("v_mul_u32_u24 v62, 1040, v5")
    k.i("v_lshl_add_u32 v62, v6, 8, v62")
    k.i("s_lshl_b32 s51, s3, 4")
    k.i("s_add_u32 s51, s51, %d" % XTB)
    k.i("v_add_u32 v62, s51, v62")
    k.i("s_mul_i32 s51, s3, 1040"); k.i("s_add_u32 s51, s51, %d" % XTB)
    k.i("v_add_u32 v65, s51, v4")
    k.i("s_lshl_b32 s50, s12, 10")
    k.i("s_lshl_b32 s51, s3, 10")
    k.i("s_add_u32 s50, s50, s51")
    k.i("s_add_u32 s50, s50, 0x%x" % WS_X1)
    k.i("v_add_u32 v66, s50, v4")
    k.i("v_lshrrev_b32 v63, 2, v5")
    k.i("v_add_u32 v63, v7, v63")
    k.i("v_mul_u32_u24 v63, %d, v63" % XROW)
    k.i("v_and_b32 v64, 3, v2")
    k.i("v_lshl_add_u32 v63, v64, 3, v63")
    k.i("s_lshl_b32 s51, s3, 5")
    k.i("v_add_u32 v63, s51, v63")
    k.i("s_lshl_b32 s51, s3, 4")
    k.i("v_add_u32 v64, s51, v5")
    k.i("v_lshlrev_b32 v64, 5, v64")
    k.i("v_lshl_add_u32 v64, v6, 3, v64")
    k.i("s_mul_i32 s51, s12, 896")
    k.i("s_add_u32 s51, s51, 0x%x" % WS_UT)
    k.i("v_add_u32 v64, s51, v64")
    stamp(k, 2)
    k.i("s_waitcnt vmcnt(0)")
    stamp(k, 3)
    k.i("s_mov_b32 exec_hi, 0x00ffffff")
    for r in range(4):
        k.i("ds_write_b128 v56, %s offset:%d" % (v(8 + 4 * r, 4), XROW * r))
    k.i("ds_write_b128 v57, v[24:27]")
    k.i("s_mov_b64 exec, -1")
    XA = 8
    for r in range(4):
        k.i("ds_read_b64_tr_b16 %s, v58 offset:%d" % (v(XA + 4 * r, 2), XROW * r))
        k.i("ds_read_b64_tr_b16 %s, v59 offset:%d" % (v(XA + 4 * r + 2, 2), XROW * r))
    k.i("s_waitcnt lgkmcnt(0)")
    k.i("s_barrier")
    stamp(k, 4)
    DR, DI = 68, 84
    blk = Block()
    class W:
        def i(self, t): blk.i(t)
    w = W()
    for it in range(7):
        w.i("ds_read_b64_tr_b16 %s, v63 offset:%d" % (v(100 + 2 * it, 2), 128 * it))
    for r in range(4):
        mfma(w, DR + 4 * r, XA + 4 * r, F28R, "0")
        mfma(w, DI + 4 * r, XA + 4 * r, F28I, "0")
    for it in range(7):
        w.i("s_mov_b32 s%d, %d" % (56 + it, 2048 * it))
        w.i("buffer_store_dwordx2 %s, v64, s[8:11], s%d offen%s" % (v(100 + 2 * it, 2), 56 + it, STF))
    P = 8; O = 8
    for r in range(4):
        twiddle4(w, DR + 4 * r, DI + 4 * r, TC, TS, 28 + 92 * (r & 1), 30 + 92 * (r & 1))
        for j in range(4): cvtpk(w, P + 4 * r + j, DR + 4 * r + j, DI + 4 * r + j)
    for r in range(4):
        mfma(w, DR + 4 * r, F16R, P + 4 * r, "0")
        mfma(w, DI + 4 * r, F16I, P + 4 * r, "0")
    for r in range(4):
        for j in range(4): cvtpk(w, O + 4 * j + r, DR + 4 * r + j, DI + 4 * r + j)
    for j in range(4):
        w.i("ds_write_b128 v62, %s offset:%d" % (v(O + 4 * j, 4), 64 * j))
    est = blk.emit(k); k.c("row main estimate %d" % est)
    k.i("s_waitcnt lgkmcnt(0)")
    k.i("s_barrier")
    stamp(k, 5)
    for i in range(4):
        if i == 3:
            k.i("s_cmp_eq_u32 s3, 3"); k.i("s_cbranch_scc1 L_row_no15")
        k.i("ds_read_b128 %s, v65 offset:%d" % (v(8 + 4 * i, 4), 4160 * i))
    k.label("L_row_no15")
    blk = Block(); GA = 116
    k.i("s_mov_b32 s52, 4096"); k.i("s_mov_b32 s53, 8192"); k.i("s_mov_b32 s54, 12288")
    k.i("s_waitcnt lgkmcnt(0)")
    for i in range(4):
        if i == 3:
            k.i("s_cmp_eq_u32 s3, 3"); k.i("s_cbranch_scc1 L_row_no15s")
        k.i("buffer_store_dwordx4 %s, v66, s[8:11], %s offen%s" % (v(8 + 4 * i, 4), "0" if i == 0 else "s%d" % (51 + i), STF))
    k.label("L_row_no15s")
    stamp(k, 6)
    for q in range(14):
        a_, b_ = 68 + 8 * (q % 4), 72 + 8 * (q % 4)
        blk.i("ds_read_b128 %s, v60 offset:%d" % (v(a_, 4), 64 * q))
        blk.i("ds_read_b128 %s, v61 offset:%d" % (v(b_, 4), 64 * q))
        blk.i("v_mfma_f32_16x16x32_bf16 %s, %s, %s, %s" % (v(GA, 4), v(a_, 4), v(b_, 4), "0" if q == 0 else v(GA, 4)))
    blk.emit(k)
    for j in range(4):
        k.i("v_mul_f32 v%d, %s, v%d" % (GA + j, f32(-1.4426950408889634), GA + j))
    for j in range(4): k.i("v_exp_f32 v%d, v%d" % (GA + j, GA + j))
    for j in range(4): k.i("v_add_f32 v%d, 1.0, v%d" % (GA + j, GA + j))
    for j in range(4): k.i("v_rcp_f32 v%d, v%d" % (GA + j, GA + j))
    k.i("s_lshl_b32 s50, s14, 2")
    k.i("s_add_u32 s50, s50, 0x%x" % WS_G)
    k.i("v_mov_b32 v28, s50")
    k.i("s_mov_b32 exec_hi, 0")
    k.i("s_mov_b32 exec_lo, 1")
    k.i("buffer_store_dwordx4 %s, v28, s[8:11], 0 offen" % v(GA, 4))
    endpgm(k, 0)

WROW = 480
WARR = 32 * WROW

def role_w(k):
    if int(os.environ.get("PRIO_W", "0")): k.i("s_setprio %s" % os.environ["PRIO_W"])
    k.i("v_lshrrev_b32 v1, 6, v0")
    k.i("v_and_b32 v2, 63, v0")
    k.i("v_readfirstlane_b32 s3, v1")
    k.i("s_sub_u32 s12, s2, %d" % (K1_NK + K1_NR))
    k.i("s_and_b32 s13, s12, 1")
    k.i("v_lshrrev_b32 v3, 5, v2")
    k.i("s_lshl_b32 s14, s3, 3")
    k.i("v_add_u32 v3, s14, v3")
    k.i("v_and_b32 v4, 31, v2")
    k.i("v_lshlrev_b32 v4, 4, v4")
    k.i("v_lshl_add_u32 v5, v3, 6, s12")
    k.i("v_mul_u32_u24 v5, 450, v5")
    k.i("s_lshl_b32 s15, s13, 1")
    k.i("v_subrev_u32 v5, s15, v5")
    k.i("v_add_u32 v5, v5, v4")
    k.i("v_mul_u32_u24 v6, %d, v3" % WROW)
    k.i("v_add_u32 v6, v6, v4")
    k.i("s_mov_b32 s48, 57600"); k.i("s_mov_b32 s49, 115200"); k.i("s_mov_b32 s50, 172800")
    k.i("s_waitcnt lgkmcnt(0)")
    stamp(k, 1)
    srd(k, 52, P_WR, 921600)
    srd(k, 56, P_WI, 921600)
    k.i("s_mov_b32 exec_lo, 0x1fffffff"); k.i("s_mov_b32 exec_hi, 0x1fffffff")
    for i in range(4):
        so = "0" if i == 0 else "s%d" % (47 + i)
        k.i("buffer_load_dwordx4 %s, v5, s[52:55], %s offen" % (v(8 + 4 * i, 4), so))
        k.i("buffer_load_dwordx4 %s, v5, s[56:59], %s offen" % (v(24 + 4 * i, 4), so))
    k.i("s_mov_b64 exec, -1")
    ws_srd(k, 8, WS_WT, 225 * 8192)
    k.i("v_and_b32 v40, 15, v2")
    k.i("v_lshrrev_b32 v41, 4, v2")
    k.i("v_lshrrev_b32 v42, 2, v40")
    k.i("v_lshl_add_u32 v42, v41, 2, v42")
    k.i("v_mul_u32_u24 v42, %d, v42" % WROW)
    k.i("v_and_b32 v43, 3, v2")
    k.i("v_lshl_add_u32 v42, v43, 3, v42")
    k.i("s_lshl_b32 s63, s3, 5")
    k.i("v_add_u32 v42, s63, v42")
    k.i("s_lshl_b32 s63, s3, 4")
    k.i("s_sub_u32 s63, s63, s13")
    k.i("v_and_b32 v44, 7, v40")
    k.i("v_add_u32 v44, s63, v44")
    k.i("v_lshlrev_b32 v44, 13, v44")
    k.i("s_lshl_b32 s63, s12, 7")
    k.i("v_lshl_add_u32 v45, v41, 4, s63")
    k.i("v_lshrrev_b32 v46, 3, v40")
    k.i("v_lshl_add_u32 v45, v46, 6, v45")
    k.i("v_add_u32 v44, v44, v45")
    k.i("v_add_u32 v47, 0x10000, v44")
    k.i("s_mov_b32 s64, 0x05040100"); k.i("s_mov_b32 s65, 0x07060302")
    k.i("s_waitcnt vmcnt(0)")
    stamp(k, 3)
    k.i("s_mov_b32 exec_lo, 0x1fffffff"); k.i("s_mov_b32 exec_hi, 0x1fffffff")
    for i in range(4):
        k.i("ds_write_b128 v6, %s offset:%d" % (v(8 + 4 * i, 4), 2 * WROW * i))
        k.i("ds_write_b128 v6, %s offset:%d" % (v(24 + 4 * i, 4), WARR + 2 * WROW * i))
    k.i("s_mov_b64 exec, -1")
    k.i("s_waitcnt lgkmcnt(0)")
    k.i("s_barrier")
    stamp(k, 4)
    blk = Block()
    for it in range(4):
        RB = 8 + 8 * it
        for H in range(2):
            blk.i("ds_read_b64_tr_b16 %s, v42 offset:%d" % (v(RB + 4 * H, 2), 128 * it + 16 * WROW * H))
            blk.i("ds_read_b64_tr_b16 %s, v42 offset:%d" % (v(RB + 4 * H + 2, 2), WARR + 128 * it + 16 * WROW * H))
    for it in range(4):
        RB = 8 + 8 * it; o = 48 + 12 * it
        for H in range(2):
            R, I, d = RB + 4 * H, RB + 4 * H + 2, o + 4 * H
            blk.i("v_perm_b32 v%d, v%d, v%d, s64" % (d, I, R))
            blk.i("v_perm_b32 v%d, v%d, v%d, s65" % (d + 1, I, R))
            blk.i("v_perm_b32 v%d, v%d, v%d, s64" % (d + 2, I + 1, R + 1))
            blk.i("v_perm_b32 v%d, v%d, v%d, s65" % (d + 3, I + 1, R + 1))
        for j in range(4):
            blk.i("v_mov_b32 v%d, v%d" % (o + 8 + j, o + j))
            blk.i("v_mov_b32_dpp v%d, v%d row_ror:8 row_mask:0xf bank_mask:0xc" % (o + j, o + 4 + j))
            blk.i("v_mov_b32_dpp v%d, v%d row_ror:8 row_mask:0xf bank_mask:0x3" % (o + 4 + j, o + 8 + j))
        a0, a1 = 100 + 2 * it, 101 + 2 * it
        if it == 0:
            blk.i("v_mov_b32 v%d, v44" % a0); blk.i("v_mov_b32 v%d, v47" % a1)
        else:
            blk.i("v_add_u32 v%d, 0x%x, v44" % (a0, 0x80000 * it)); blk.i("v_add_u32 v%d, 0x%x, v47" % (a1, 0x80000 * it))
        blk.i("buffer_store_dwordx4 %s, v%d, s[8:11], 0 offen%s" % (v(o, 4), a0, STF))
        blk.i("buffer_store_dwordx4 %s, v%d, s[8:11], 0 offen%s" % (v(o + 4, 4), a1, STF))
    blk.emit(k)
    endpgm(k, 0)

def gen_k1(k, name):
    kernel_header(k, name)
    diag_begin(k)
    load_kernargs(k)
    k.i("s_cmp_lt_u32 s2, %d" % K1_NK)
    k.i("s_cbranch_scc1 L_k1_kgen")
    k.i("s_cmp_lt_u32 s2, %d" % (K1_NK + K1_NR))
    k.i("s_cbranch_scc1 L_k1_row")
    k.i("s_cmp_lt_u32 s2, %d" % K1_GRID)
    k.i("s_cbranch_scc1 L_k1_w")
    k.i("s_endpgm")
    k.label("L_k1_kgen"); role_kgen(k)
    k.label("L_k1_row"); role_row(k)
    k.label("L_k1_w"); role_w(k)
```

```python
from common import *

from sched import Block
import os
K2_NC, K2_NF = 224, 225
K2_GRID = K2_NC + K2_NF
GUARD = 128
CSTR = 2112
UOFF = 4 * CSTR
UPAD = 1088
CHL = UOFF + UPAD + 4096
K2_LDS = GUARD + 2 * CHL
K2_VGPR = 168
B4 = lambda e: 592 + 48 * (e - 1)
B8 = lambda e: 800 + 80 * (e - 1)
TILES = {0: (0, 1, 6, 7), 1: (2, 3, 4, 5)}

def conv_main(k, h):
    ACC, H, VR, M1, M2, M3, M5, M6, MC, KF, AS = 16, 32, 104, 120, 124, 128, 132, 136, 140, 144, 160
    aH, aK, aV = 50, 51, 52
    aH, aK, aV = 10, 11, 12
    tiles = TILES[h]
    acc = {t: ACC + 4 * i for i, t in enumerate(tiles)}
    b = Block()
    first = set()
    def mf(t, A, B):
        c = acc[t] if t in first else "0"
        first.add(t)
        b.i("v_mfma_f32_16x16x32_bf16 %s, %s, %s, %s" % (v(acc[t], 4), v(A, 4), v(B, 4), v(c, 4) if c != "0" else "0"))
    uses = {}
    for t in tiles:
        for q in range(18):
            if q > 8 * t + 8: continue
            uses.setdefault(256 * t - 32 * q, []).append((t, q))
    hloaded = set(); nring = 0
    for x0 in sorted(uses, reverse=True):
        for (t, q) in uses[x0]:
            if q not in hloaded:
                hloaded.add(q)
                b.i("ds_read_b64 %s, v%d offset:%d" % (v(H + 4 * q, 2), aH, 1112 - 64 * q))
                b.i("ds_read_b64 %s, v%d offset:%d" % (v(H + 4 * q + 2, 2), aH, 1112 - 64 * q + 8))
        vr = VR + 4 * (nring & 3); nring += 1
        b.i("ds_read_b128 %s, v%d offset:%d" % (v(vr, 4), aV, UPAD + 2 * x0))
        for (t, q) in uses[x0]: mf(t, H + 4 * q, vr)
    PH, BX, PP = 32, 48, 96
    need4 = {tp: [t for t in tiles if t - tp in (2, 3, 4)] for tp in range(6)}
    need8 = {tp: [t for t in tiles if t - tp in (4, 5, 6, 7)] for tp in range(6)}
    corr = {tp: [t for t in tiles if t - tp == 4] for tp in range(6)}
    nbuf = 0; nk = 0
    for tp in range(6):
        if not (need4[tp] or need8[tp]): continue
        pa, pb = PH + 8 * (nbuf & 1), PH + 8 * (nbuf & 1) + 4
        bx, pp = BX + 24 * (nbuf & 1), PP + 12 * (nbuf & 1); nbuf += 1
        b.i("ds_read_b128 %s, v%d offset:%d" % (v(pa, 4), aV, UPAD + 512 * tp - 32))
        b.i("ds_read_b128 %s, v%d offset:%d" % (v(pb, 4), aV, UPAD + 512 * tp - 48))
        boxes = []
        if need4[tp]: boxes += [(0, pa, M1, pp), (1, pa, M2, pp + 2), (2, pa, M3, pp + 4), (3, pb, M2, pp + 6)]
        if need8[tp]: boxes += [(4, pa, M5, pp + 8), (5, pb, M6, pp + 10)]
        for (n, ph, m, dst) in boxes:
            b.i("v_mfma_f32_16x16x32_bf16 %s, %s, %s, 0" % (v(bx + 4 * n, 4), v(ph, 4), v(m, 4)))
        for (n, ph, m, dst) in boxes:
            b.i("v_cvt_pk_bf16_f32 v%d, v%d, v%d" % (dst, bx + 4 * n, bx + 4 * n + 1))
            b.i("v_cvt_pk_bf16_f32 v%d, v%d, v%d" % (dst + 1, bx + 4 * n + 2, bx + 4 * n + 3))
        for t in corr[tp]: mf(t, AS, pa)
        def kfrag(off0, off1):
            nonlocal nk
            kf = KF + 4 * (nk & 3); nk += 1
            b.i("ds_read_b64 %s, v%d offset:%d" % (v(kf, 2), aK, off0))
            b.i("ds_read_b64 %s, v%d offset:%d" % (v(kf + 2, 2), aK, off1))
            return kf
        for t in need4[tp]:
            D = t - tp
            for (e0, op) in ((1, pp), (3, pp + 4)):
                kf = kfrag(2 * (B4(e0) + 76 - 16 * D), 2 * (B4(e0 + 1) + 76 - 16 * D))
                mf(t, op, kf)
        for t in need8[tp]:
            D = t - tp
            kf = kfrag(2 * (B8(1) + 124 - 16 * D), 2 * (B8(2) + 124 - 16 * D))
            mf(t, pp + 8, kf)
    est = b.emit(k)
    k.c("scheduled estimate: %d cycles" % est)
    return acc

def conv_epilogue(k, h):
    tiles = TILES[h]; ACC = 16
    b = Block()
    for i, t in enumerate(tiles):
        b.i("ds_read_b64 %s, v13 offset:%d" % (v(56 + 2 * i, 2), UPAD + 512 * t))
    for i, t in enumerate(tiles):
        a = ACC + 4 * i; uu = 56 + 2 * i; x = 64 + 4 * i; o = 80 + 2 * i
        b.i("v_lshlrev_b32 v%d, 16, v%d" % (x, uu)); b.i("v_and_b32 v%d, 0xffff0000, v%d" % (x + 1, uu))
        b.i("v_lshlrev_b32 v%d, 16, v%d" % (x + 2, uu + 1)); b.i("v_and_b32 v%d, 0xffff0000, v%d" % (x + 3, uu + 1))
        b.i("v_pk_fma_f32 %s, %s, s[56:57], %s" % (v(a, 2), v(x, 2), v(a, 2)))
        b.i("v_pk_fma_f32 %s, %s, s[56:57], %s" % (v(a + 2, 2), v(x + 2, 2), v(a + 2, 2)))
        b.i("v_cvt_pk_bf16_f32 v%d, v%d, v%d" % (o, a, a + 1)); b.i("v_cvt_pk_bf16_f32 v%d, v%d, v%d" % (o + 1, a + 2, a + 3))
        b.i("buffer_store_dwordx2 %s, v14, s[8:11], 0 offen offset:%d%s" % (v(o, 2), 512 * t, stf("AT", " sc1")))
    b.emit(k)

def role_conv(k):
    if int(os.environ.get("PRIO_CONV", "0")): k.i("s_setprio %s" % os.environ["PRIO_CONV"])
    k.i("v_lshrrev_b32 v1, 6, v0")
    k.i("v_and_b32 v2, 63, v0")
    k.i("v_readfirstlane_b32 s3, v1")
    k.i("s_and_b32 s48, s2, 7"); k.i("s_lshl_b32 s48, s48, 1")
    k.i("s_bfe_u32 s49, s2, 0x10003"); k.i("s_add_u32 s48, s48, s49")
    k.i("s_and_b32 s49, s2, 0xf0"); k.i("s_add_u32 s48, s48, s49")
    k.i("s_lshl_b32 s15, s48, 2")
    k.i("s_lshr_b32 s12, s3, 1")
    k.i("s_and_b32 s13, s3, 1")
    k.i("s_lshl_b32 s14, s48, 1")
    k.i("s_add_u32 s14, s14, s12")
    k.i("s_lshl_b32 s48, s13, 6")
    k.i("v_add_u32 v3, s48, v2")
    k.i("s_mul_i32 s49, s14, %d" % KSTR)
    k.i("s_add_u32 s49, s49, 0x%x" % WS_KR)
    k.i("v_lshl_add_u32 v4, v3, 4, s49")
    k.i("s_lshl_b32 s50, s14, 5")
    k.i("s_add_u32 s50, s50, 0x%x" % WS_UT)
    k.i("v_lshrrev_b32 v5, 1, v3")
    k.i("v_mul_u32_u24 v5, 14336, v5")
    k.i("v_and_b32 v6, 1, v3")
    k.i("v_lshl_add_u32 v5, v6, 4, v5")
    k.i("v_add_u32 v5, s50, v5")
    k.i("s_mov_b32 s50, %d" % (64 * 14336))
    k.i("s_waitcnt lgkmcnt(0)")
    stamp(k, 1)
    ws_srd(k)
    k.i("s_load_dword s51, %s, s15" % sp(P_DSKIP))
    for e in range(3):
        k.i("buffer_load_dwordx4 %s, v4, s[8:11], 0 offen offset:%d" % (v(16 + 4 * e, 4), 4 * e))
    k.i("buffer_load_dwordx4 v[40:43], v5, s[8:11], 0 offen")
    k.i("buffer_load_dwordx4 v[44:47], v5, s[8:11], s50 offen")
    k.i("s_mul_i32 s52, s12, %d" % CHL)
    k.i("s_add_u32 s52, s52, %d" % GUARD)
    k.i("s_add_u32 s53, s52, %d" % UOFF)
    k.i("v_lshl_add_u32 v6, v3, 4, s52")
    k.i("v_lshl_add_u32 v7, v3, 4, s53")
    for j in range(4): k.i("v_mov_b32 v%d, 0" % (32 + j))
    k.i("v_cmp_gt_u32 vcc, %d, v3" % (UPAD // 16))
    k.i("s_and_saveexec_b64 s[60:61], vcc")
    k.i("ds_write_b128 v7, v[32:35]")
    k.i("s_mov_b64 exec, s[60:61]")
    k.i("v_and_b32 v48, 15, v2")
    k.i("v_lshrrev_b32 v49, 4, v2")
    k.i("v_and_b32 v50, 3, v48")
    k.i("v_lshrrev_b32 v51, 2, v48")
    k.i("v_mul_u32_u24 v50, %d, v50" % CSTR)
    k.i("v_lshlrev_b32 v51, 3, v51")
    k.i("v_sub_u32 v50, v50, v51")
    k.i("v_add_u32 v50, s52, v50")
    k.i("v_lshl_add_u32 v10, v49, 4, v50")
    k.i("v_lshl_add_u32 v11, v49, 3, v50")
    k.i("v_lshlrev_b32 v51, 5, v48")
    k.i("v_add_u32 v51, s53, v51")
    k.i("v_lshl_add_u32 v12, v49, 4, v51")
    k.i("v_lshl_add_u32 v13, v49, 3, v51")
    k.i("v_lshlrev_b32 v14, 5, v48")
    k.i("v_lshl_add_u32 v14, v49, 3, v14")
    k.i("s_lshl_b32 s59, s14, 12")
    k.i("s_add_u32 s59, s59, 0x%x" % WS_AT)
    k.i("v_add_u32 v14, s59, v14")
    k.i("v_lshlrev_b32 v52, 3, v49")
    k.i("v_sub_u32 v52, v52, v48")
    k.i("s_mov_b32 s54, 0x8001"); k.i("s_mov_b32 s55, 0x10001")
    for (reg, lo, hi, val) in ((120, 11, 13, 0x3f80), (124, 6, 10, 0x3f80), (128, 3, 5, 0x3f80), (132, 5, 11, 0x3f80), (136, 4, 12, 0x3f80), (140, 12, 13, 0xffff)):
        n = hi - lo + 1
        k.i("v_add_u32 v53, %d, v52" % (20 - lo))
        k.i("v_med3_i32 v53, v53, 0, 31")
        k.i("s_mov_b32 s56, 0x%x" % (((1 << n) - 1) << 20))
        k.i("v_lshrrev_b32_e64 v53, v53, s56")
        for p in range(4):
            k.i("v_bfe_u32 v54, v53, %d, 2" % (2 * p))
            k.i("v_mul_u32_u24 v54, 0x8001, v54")
            k.i("v_and_b32 v54, s55, v54")
            k.i("v_mul_u32_u24 v%d, 0x%x, v54" % (reg + p, val))
    k.i("s_waitcnt vmcnt(2)")
    stamp(k, 2)
    L0, L1, LX = 16, 20, 24
    k.i("ds_write_b128 v6, %s offset:%d" % (v(L0, 4), 3 * CSTR))
    k.i("ds_write_b128 v6, %s offset:%d" % (v(L1, 4), 1 * CSTR))
    for j in range(4): k.i("v_alignbit_b32 v%d, v%d, v%d, 16" % (28 + j, L1 + j, L0 + j))
    for j in range(4): k.i("v_alignbit_b32 v%d, v%d, v%d, 16" % (36 + j, LX + j, L1 + j))
    k.i("ds_write_b128 v6, v[28:31] offset:%d" % (2 * CSTR))
    k.i("ds_write_b128 v6, v[36:39] offset:%d" % (0 * CSTR))
    k.i("s_waitcnt vmcnt(0)")
    k.i("ds_write_b128 v7, v[40:43] offset:%d" % UPAD)
    k.i("ds_write_b128 v7, v[44:47] offset:%d" % (UPAD + 2048))
    k.i("s_lshl_b32 s58, s12, 4")
    k.i("v_mov_b32 v53, s52")
    k.i("s_waitcnt lgkmcnt(0)")
    k.i("s_lshr_b32 s51, s51, s58")
    k.i("s_lshl_b32 s56, s51, 16")
    k.i("s_mov_b32 s57, s56")
    k.i("s_barrier")
    stamp(k, 3)
    k.i("ds_read_u16 v54, v53 offset:%d" % (3 * CSTR + 2 * 752))
    k.i("s_waitcnt lgkmcnt(0)")
    k.i("v_lshl_or_b32 v54, v54, 16, v54")
    for p in range(4): k.i("v_and_b32 v%d, v54, v%d" % (160 + p, 140 + p))
    k.i("s_cmp_eq_u32 s13, 0")
    k.i("s_cbranch_scc0 L_cv_h1")
    conv_main(k, 0)
    stamp(k, 5)
    conv_epilogue(k, 0)
    endpgm(k, 1)
    k.label("L_cv_h1")
    conv_main(k, 1)
    stamp(k, 5)
    conv_epilogue(k, 1)
    endpgm(k, 1)

INB, EXB = 0, 9216

def fi(x):
    return {0: "0", 1: "1.0", 2: "2.0", 4: "4.0"}.get(x, f32(x))

def role_col(k):
    BR, BI, AR, AI, TC, TS, DA, ACR, ACI, P, WW = 16, 32, 48, 64, 80, 88, 96, 128, 136, 144, 152
    if int(os.environ.get("PRIO_COL", "0")): k.i("s_setprio %s" % os.environ["PRIO_COL"])
    k.i("v_lshrrev_b32 v1, 6, v0")
    k.i("v_and_b32 v2, 63, v0")
    k.i("v_readfirstlane_b32 s3, v1")
    k.i("s_sub_u32 s48, s2, %d" % K2_NC)
    k.i("s_and_b32 s12, s48, 7"); k.i("s_lshl_b32 s12, s12, 1")
    k.i("s_bfe_u32 s49, s48, 0x10003"); k.i("s_add_u32 s12, s12, s49")
    k.i("s_and_b32 s49, s48, 0xf0"); k.i("s_add_u32 s12, s12, s49")
    k.i("s_lshr_b32 s13, s12, 4"); k.i("s_add_u32 s13, s13, 1")
    k.i("s_and_b32 s14, s12, 15")
    k.i("s_cmp_ge_u32 s12, 208")
    k.i("s_cselect_b32 s13, 14, s13")
    k.i("s_sub_u32 s48, s12, 216")
    k.i("s_cmp_ge_u32 s12, 216")
    k.i("s_cselect_b32 s13, 0, s13"); k.i("s_cselect_b32 s14, s48, s14")
    k.i("s_lshl_b32 s15, s13, 4"); k.i("s_add_u32 s15, s15, s14")
    k.i("s_mul_i32 s48, s14, 28"); k.i("s_add_u32 s48, s48, s13")
    k.i("s_sub_u32 s49, 448, s48")
    k.i("s_cmp_gt_u32 s48, 224")
    k.i("s_cselect_b32 s50, 1, 0")
    k.i("s_cselect_b32 s49, s49, s48")
    k.i("s_lshl_b32 s51, s15, 6")
    k.i("s_add_u32 s51, s51, 0x%x" % WS_X1)
    k.i("v_lshrrev_b32 v3, 2, v0")
    k.i("v_lshlrev_b32 v3, 14, v3")
    k.i("v_and_b32 v4, 3, v0")
    k.i("v_lshl_add_u32 v3, v4, 4, v3")
    k.i("v_add_u32 v3, s51, v3")
    k.i("v_and_b32 v4, 15, v2")
    k.i("v_lshrrev_b32 v5, 4, v2")
    k.i("s_lshl_b32 s52, s3, 4")
    k.i("v_add_u32 v6, s52, v4")
    k.i("v_lshlrev_b32 v7, 2, v5")
    k.i("v_lshl_add_u32 v8, v6, 5, v7")
    k.i("v_sub_u32 v9, 64, v6"); k.i("v_and_b32 v9, 63, v9")
    k.i("v_lshlrev_b32 v9, 5, v9"); k.i("v_sub_u32 v9, v9, v7"); k.i("v_add_u32 v9, 12, v9")
    k.i("v_cmp_eq_u32 vcc, 0, v6")
    k.i("v_addc_co_u32 v9, vcc, 0, v9, vcc")
    k.i("s_cmp_eq_u32 s50, 1")
    k.i("s_cselect_b64 vcc, -1, 0")
    k.i("v_cndmask_b32 v8, v8, v9, vcc")
    k.i("s_lshl_b32 s53, s49, 13")
    k.i("s_add_u32 s53, s53, 0x%x" % WS_WT)
    k.i("v_lshl_add_u32 v8, v8, 2, s53")
    k.i("s_waitcnt lgkmcnt(0)")
    stamp(k, 1)
    ws_srd(k)
    k.i("buffer_load_dwordx4 %s, v3, s[8:11], 0 offen" % v(DA, 4))
    k.i("s_mov_b32 s54, 0x100000")
    k.i("buffer_load_dwordx4 %s, v3, s[8:11], s54 offen" % v(DA + 4, 4))
    k.i("buffer_load_dwordx4 %s, v8, s[8:11], 0 offen" % v(WW, 4))
    k.i("buffer_load_dwordx4 %s, v8, s[8:11], 0 offen offset:64" % v(WW + 4, 4))
    k.i("s_load_dword s55, %s, s53" % sp(P_WS))
    sc2 = 2.0 / (2048 * 448); sc1 = 1.0 / (2048 * 448)
    k.i("s_mov_b32 s56, %s" % f32(sc2))
    k.i("s_cmp_eq_u32 s48, 0"); k.i("s_cselect_b32 s56, %s, s56" % f32(sc1))
    k.i("s_cmp_eq_u32 s48, 224"); k.i("s_cselect_b32 s56, %s, s56" % f32(sc1))
    k.i("s_mov_b32 s57, s56")
    k.i("s_lshl_b32 s58, s50, 31"); k.i("s_xor_b32 s58, s58, s56"); k.i("s_mov_b32 s59, s58")
    k.i("v_and_b32 v9, 7, v0")
    k.i("v_lshlrev_b32 v9, 2, v9")
    k.i("v_lshrrev_b32 v10, 3, v0")
    k.i("v_xor_b32 v10, v10, v9")
    k.i("v_lshlrev_b32 v10, 2, v10")
    k.i("v_mul_u32_u24 v9, 288, v9")
    k.i("v_add_u32 v9, v9, v10")
    k.i("v_lshrrev_b32 v10, 2, v4")
    k.i("v_xor_b32 v10, v10, v5")
    k.i("v_lshlrev_b32 v10, 4, v10")
    k.i("v_mul_u32_u24 v11, 288, v4")
    k.i("v_add_u32 v10, v10, v11")
    k.i("v_xor_b32 v11, v4, v7")
    k.i("v_lshlrev_b32 v11, 2, v11")
    k.i("v_mul_u32_u24 v12, 288, v7")
    k.i("v_add_u32 v11, v11, v12")
    k.i("s_lshl_b32 s60, s3, 6"); k.i("s_add_u32 s60, s60, %d" % EXB)
    k.i("s_xor_b32 s61, s3, 1"); k.i("s_lshl_b32 s61, s61, 6"); k.i("s_add_u32 s61, s61, %d" % (EXB + 4608))
    k.i("v_add_u32 v12, s61, v11")
    k.i("v_add_u32 v11, s60, v11")
    k.i("v_and_b32 v13, 7, v4")
    k.i("v_add_u32 v13, s52, v13")
    k.i("v_lshlrev_b32 v13, 7, v13")
    k.i("v_lshrrev_b32 v14, 3, v4")
    k.i("v_lshl_add_u32 v13, v14, 6, v13")
    k.i("v_lshl_add_u32 v13, v5, 4, v13")
    k.i("s_lshl_b32 s62, s15, 13"); k.i("s_add_u32 s62, s62, 0x%x" % WS_Z)
    k.i("v_add_u32 v13, s62, v13")
    k.i("v_cvt_f32_u32 v14, v6")
    k.i("v_cvt_f32_u32 v15, v7")
    t0, t1, t2, t3 = 160, 161, 162, 163
    k.i("v_mul_f32 v%d, %s, v14" % (t3, f32(-1.0 / 64)))
    for q in range(2):
        for i in range(4):
            k.i("v_add_f32 v%d, %s, v15" % (t0, fi(16 * q + i)))
            k.i("v_mul_f32 v%d, v%d, v%d" % (t0, t0, t3))
            k.i("v_cos_f32 v%d, v%d" % (t1, t0)); k.i("v_sin_f32 v%d, v%d" % (t2, t0))
            cvtpk(k, BR + 4 * q + i, t1, t2, neg_hi=True)
            cvtpk(k, BI + 4 * q + i, t2, t1)
    k.i("v_and_b32 v%d, 1, v4" % t0)
    k.i("v_mul_u32_u24 v%d, 0x8000, v%d" % (t0, t0))
    k.i("v_lshl_or_b32 v164, v%d, 16, v%d" % (t0, t0))
    for j in range(8):
        k.i("v_xor_b32 v%d, v164, v%d" % (BR + 8 + j, BR + j))
        k.i("v_xor_b32 v%d, v164, v%d" % (BI + 8 + j, BI + j))
    k.i("v_cvt_f32_u32 v%d, v4" % t3)
    k.i("v_mul_f32 v%d, %s, v%d" % (t3, f32(-1.0 / 32), t3))
    for j in range(4):
        k.i("v_add_f32 v%d, %s, v15" % (t0, fi(j)))
        k.i("v_mul_f32 v%d, v%d, v%d" % (t0, t0, t3))
        k.i("v_cos_f32 v%d, v%d" % (t1, t0)); k.i("v_sin_f32 v%d, v%d" % (t2, t0))
        cvtpk(k, AR + j, t1, t2, neg_hi=True)
        cvtpk(k, AI + j, t2, t1)
    k.i("s_mov_b32 s63, 0x80008000")
    for X in (AR, AI):
        for j in range(4):
            k.i("v_xor_b32 v%d, v164, v%d" % (X + 4 + j, X + j))
        for Tk in range(2):
            for j in range(4):
                src = X + 4 * Tk + j
                if j & 1: k.i("v_xor_b32 v%d, s63, v%d" % (X + 8 + 4 * Tk + j, src))
                else: k.i("v_mov_b32 v%d, v%d" % (X + 8 + 4 * Tk + j, src))
    k.i("v_mul_f32 v%d, %s, v14" % (t3, f32(-1.0 / 2048)))
    for T in range(2):
        for j in range(4):
            k.i("v_add_f32 v%d, %s, v15" % (t0, fi(16 * T + j)))
            k.i("v_mul_f32 v%d, v%d, v%d" % (t0, t0, t3))
            k.i("v_cos_f32 v%d, v%d" % (TC + 4 * T + j, t0)); k.i("v_sin_f32 v%d, v%d" % (TS + 4 * T + j, t0))
    stamp(k, 2)
    stamp(k, 2)
    k.i("s_waitcnt vmcnt(2)")
    stamp(k, 3)
    for i in range(2):
        for e in range(4):
            k.i("ds_write_b32 v9, v%d offset:%d" % (DA + 4 * i + e, INB + 128 * i + 288 * e))
    k.i("s_waitcnt vmcnt(0)")
    k.i("s_cmp_eq_u32 s50, 0")
    k.i("s_cbranch_scc1 L_col_norev")
    for j in range(4): k.i("v_swap_b32 v%d, v%d" % (WW + j, WW + 7 - j))
    k.i("s_waitcnt lgkmcnt(0)")
    k.i("s_cmp_eq_u32 s3, 0")
    k.i("s_cbranch_scc0 L_col_norev")
    k.i("v_writelane_b32 v%d, s55, 0" % WW)
    k.label("L_col_norev")
    k.i("s_waitcnt lgkmcnt(0)")
    k.i("s_barrier")
    stamp(k, 4)
    blk = Block()
    class W_:
        def i(self, t): blk.i(t)
    w = W_()
    def big_stage(region):
        for T in range(2):
            for q in range(4):
                w.i("ds_read_b128 %s, v10 offset:%d" % (v(DA + 16 * T + 4 * q, 4), region + 4608 * T + 64 * (q ^ T)))
        for q in range(4):
            for T in range(2):
                a = DA + 16 * T + 4 * q
                mfma(w, ACR + 4 * T, a, BR + 4 * q, "0" if q == 0 else ACR + 4 * T)
                mfma(w, ACI + 4 * T, a, BI + 4 * q, "0" if q == 0 else ACI + 4 * T)
    def small_stage(outr, outi):
        for Tk in range(2):
            for To in range(2):
                mfma(w, outr + 4 * To, AR + 4 * (2 * To + Tk), P + 4 * Tk, "0" if Tk == 0 else outr + 4 * To)
                mfma(w, outi + 4 * To, AI + 4 * (2 * To + Tk), P + 4 * Tk, "0" if Tk == 0 else outi + 4 * To)
    tmps = [(160, 162), (164 + 0, 166)]
    WR, WI = 0, 0
    big_stage(INB)
    for T in range(2):
        twiddle4(w, ACR + 4 * T, ACI + 4 * T, TC + 4 * T, TS + 4 * T, *tmps[T])
        for j in range(4): cvtpk(w, P + 4 * T + j, ACR + 4 * T + j, ACI + 4 * T + j)
    XR, XI = DA, DA + 8
    WR, WI = DA + 16, DA + 24
    for j in range(8):
        w.i("v_lshlrev_b32 v%d, 16, v%d" % (WR + j, WW + j))
        w.i("v_and_b32 v%d, 0xffff0000, v%d" % (WI + j, WW + j))
    for j in range(0, 8, 2):
        w.i("v_pk_mul_f32 %s, %s, s[56:57]" % (v(WR + j, 2), v(WR + j, 2)))
        w.i("v_pk_mul_f32 %s, %s, s[58:59]" % (v(WI + j, 2), v(WI + j, 2)))
    small_stage(XR, XI)
    for T in range(2):
        twiddle4(w, XR + 4 * T, XI + 4 * T, WR + 4 * T, WI + 4 * T, *tmps[T])
        for j in range(4): cvtpk(w, P + 4 * T + j, XI + 4 * T + j, XR + 4 * T + j)
    small_stage(ACR, ACI)
    for T in range(2):
        twiddle4(w, ACR + 4 * T, ACI + 4 * T, TC + 4 * T, TS + 4 * T, *tmps[T])
        for j in range(4): cvtpk(w, P + 4 * T + j, ACR + 4 * T + j, ACI + 4 * T + j)
    for T in range(2):
        for j in range(4):
            w.i("ds_write_b32 v%d, v%d offset:%d" % (11 + T, P + 4 * T + j, 288 * j))
    est = blk.emit(k); k.c("col block 1 estimate %d" % est)
    k.i("s_waitcnt lgkmcnt(0)")
    k.i("s_barrier")
    stamp(k, 6)
    blk = Block()
    big_stage(EXB)
    for T in range(2):
        for j in range(4): cvtpk(w, P + 4 * T + j, ACI + 4 * T + j, ACR + 4 * T + j)
    for j in range(4):
        w.i("v_mov_b32 v%d, v%d" % (WW + j, P + j))
        w.i("v_mov_b32_dpp v%d, v%d row_ror:8 row_mask:0xf bank_mask:0xc" % (P + j, P + 4 + j))
        w.i("v_mov_b32_dpp v%d, v%d row_ror:8 row_mask:0xf bank_mask:0x3" % (P + 4 + j, WW + j))
    for T in range(2):
        w.i("buffer_store_dwordx4 %s, v13, s[8:11], 0 offen offset:%d%s" % (v(P + 4 * T, 4), 1024 * T, stf("Z")))
    est = blk.emit(k); k.c("col block 2 estimate %d" % est)
    endpgm(k, 1)

def gen_k2(k, name):
    kernel_header(k, name)
    diag_begin(k)
    load_kernargs(k)
    k.i("s_cmp_lt_u32 s2, %d" % K2_NC)
    k.i("s_cbranch_scc1 L_k2_conv")
    k.i("s_cmp_lt_u32 s2, %d" % K2_GRID)
    k.i("s_cbranch_scc1 L_k2_col")
    k.i("s_endpgm")
    k.label("L_k2_conv"); role_conv(k)
    k.label("L_k2_col"); role_col(k)
```

```python
from asmlib import *
PADB = int(__import__('os').environ.get('PADB', '256'))
SW2 = 225 * 128 + 128
SX1, SUT, SWT, SZ, SAT = 16384 + PADB, 14336 + PADB, 8192 + PADB, 8192 + PADB, 4096 + PADB
WS_X1 = 0x000000
WS_UT = 0x300000
WS_G  = 0x5F0000
WS_KR = 0x600000
KSTR  = 2048
WS_WT = 0x800000
WS_Z  = 0xB00000
WS_AT = 0xE00000
WS_SIZE = 0x1200000
LOG2E = 0x3FB8AA3B
INV2PI = "0.15915494"
P_U, P_ARE, P_AIM, P_BRE, P_BIM, P_CRE, P_CIM, P_LOGDT = 16, 18, 20, 22, 24, 26, 28, 30
P_DSKIP, P_BX, P_WR, P_WI, P_GW, P_OUT, P_DBG, P_WS = 32, 34, 36, 38, 40, 42, 44, 46
def sp(n): return s(n, 2)

def f32(x):
    import struct
    return "0x%08x" % struct.unpack("<I", struct.pack("<f", x))[0]

def load_kernargs(k):
    k.i("s_load_dwordx16 s[16:31], s[0:1], 0")
    k.i("s_load_dwordx16 s[32:47], s[0:1], 64")

def ws_srd(k, base=8, off=0, size=WS_SIZE):
    if off:
        k.i("s_add_u32 s%d, s%d, 0x%x" % (base, P_WS, off))
        k.i("s_addc_u32 s%d, s%d, 0" % (base + 1, P_WS + 1))
    else:
        k.i("s_mov_b32 s%d, s%d" % (base, P_WS))
        k.i("s_mov_b32 s%d, s%d" % (base + 1, P_WS + 1))
    k.i("s_mov_b32 s%d, 0x%x" % (base + 2, size))
    k.i("s_mov_b32 s%d, 0x20000" % (base + 3))

def srd(k, base, ptr, size):
    k.i("s_mov_b32 s%d, s%d" % (base, ptr))
    k.i("s_mov_b32 s%d, s%d" % (base + 1, ptr + 1))
    k.i("s_mov_b32 s%d, 0x%x" % (base + 2, size))
    k.i("s_mov_b32 s%d, 0x20000" % (base + 3))

def cmul(k, dst, x, y, tmp, conj_out=False):
    k.i("v_pk_mul_f32 %s, %s, %s op_sel:[0,0] op_sel_hi:[0,1]" % (v(tmp, 2), v(x, 2), v(y, 2)))
    if conj_out:
        k.i("v_pk_fma_f32 %s, %s, %s, %s op_sel:[1,1,0] op_sel_hi:[1,0,1] neg_lo:[0,1,0] neg_hi:[1,0,1]" % (v(dst, 2), v(x, 2), v(y, 2), v(tmp, 2)))
    else:
        k.i("v_pk_fma_f32 %s, %s, %s, %s op_sel:[1,1,0] op_sel_hi:[1,0,1] neg_lo:[0,1,0]" % (v(dst, 2), v(x, 2), v(y, 2), v(tmp, 2)))

def mfma(k, d, a, b, c):
    cs = v(c, 4) if isinstance(c, int) else c
    k.i("v_mfma_f32_16x16x32_bf16 %s, %s, %s, %s" % (v(d, 4), v(a, 4), v(b, 4), cs))

def cvtpk(k, d, lo, hi, neg_lo=False, neg_hi=False):
    k.i("v_cvt_pk_bf16_f32 %s, %s%s, %s%s" % (v(d), "-" if neg_lo else "", v(lo), "-" if neg_hi else "", v(hi)))

def twiddle4(k, re, im, c, sn, t0, t1):
    for h in (0, 2):
        k.i("v_pk_mul_f32 %s, %s, %s" % (v(t0, 2), v(re + h, 2), v(c + h, 2)))
        k.i("v_pk_mul_f32 %s, %s, %s" % (v(t1, 2), v(re + h, 2), v(sn + h, 2)))
        k.i("v_pk_fma_f32 %s, %s, %s, %s neg_lo:[0,1,0] neg_hi:[0,1,0]" % (v(re + h, 2), v(im + h, 2), v(sn + h, 2), v(t0, 2)))
        k.i("v_pk_fma_f32 %s, %s, %s, %s" % (v(im + h, 2), v(im + h, 2), v(c + h, 2), v(t1, 2)))

def kernel_header(k, name):
    k.raw(".globl %s" % name)
    k.raw(".p2align 8")
    k.raw(".type %s,@function" % name)
    k.raw(name + ":")

def kernel_desc(name, vgpr, sgpr=96):
    acc = (vgpr + 3) // 4 * 4
    return """.amdhsa_kernel %s
  .amdhsa_next_free_vgpr %d
  .amdhsa_next_free_sgpr %d
  .amdhsa_accum_offset %d
  .amdhsa_group_segment_fixed_size 0
  .amdhsa_kernarg_size 128
  .amdhsa_user_sgpr_count 2
  .amdhsa_user_sgpr_kernarg_segment_ptr 1
  .amdhsa_system_sgpr_workgroup_id_x 1
  .amdhsa_float_denorm_mode_32 3
.end_amdhsa_kernel
""" % (name, vgpr, sgpr, acc)

import os
DIAG = os.environ.get("DIAG") == "1"
WS_DIAG = 0x1400000
def stamp(k, i):
    if DIAG: k.i("s_memtime s[%d:%d]" % (72 + 2 * i, 73 + 2 * i))
def diag_begin(k):
    if DIAG:
        k.i("s_memrealtime s[88:89]")
        k.i("s_memtime s[72:73]")
_dn = [0]
def endpgm(k, kidx):
    if DIAG:
        k.i("s_mov_b64 exec, -1")
        k.i("s_waitcnt vmcnt(0) lgkmcnt(0)")
        k.i("s_memtime s[86:87]")
        k.i("s_memrealtime s[90:91]")
        k.i("s_load_dwordx2 s[92:93], s[0:1], 120")
        k.i("s_waitcnt lgkmcnt(0)")
        k.i("s_lshl_b32 s94, s2, 2"); k.i("s_add_u32 s94, s94, s3"); k.i("s_add_u32 s94, s94, %d" % (kidx * 2048))
        k.i("s_lshl_b32 s94, s94, 6"); k.i("s_add_u32 s94, s94, 0x%x" % WS_DIAG)
        k.i("s_add_u32 s92, s92, s94"); k.i("s_addc_u32 s93, s93, 0")
        k.i("s_mov_b64 exec, 1")
        vals = ["s88", "s90"] + ["s%d" % (72 + 2 * i) for i in range(8)]
        for n, r in enumerate(vals):
            k.i("v_mov_b32 v1, %s" % r); k.i("v_mov_b32 v0, %d" % (4 * n))
            k.i("global_store_dword v0, v1, s[92:93]")
            k.i("s_nop 1")
    k.i("s_endpgm")

def code_prefetch(k, vbase, label):
    k.i("s_getpc_b64 s[66:67]")
    k.raw(label + ":")
    k.raw("    s_sub_u32 s66, s66, (%s - code_begin)" % label)
    k.i("s_subb_u32 s67, s67, 0")
    for h in range(2):
        k.i("v_lshlrev_b32 v%d, 6, v0" % (vbase + 2 * h))
        if h: k.i("v_add_u32 v%d, 0x4000, v%d" % (vbase + 2 * h, vbase + 2 * h))
        k.raw("    v_min_u32 v%d, (code_end - code_begin - 4), v%d" % (vbase + 2 * h, vbase + 2 * h))
        k.i("v_mov_b32 v%d, s67" % (vbase + 2 * h + 1))
        k.i("v_add_co_u32 v%d, vcc, s66, v%d" % (vbase + 2 * h, vbase + 2 * h))
        k.i("v_addc_co_u32 v%d, vcc, 0, v%d, vcc" % (vbase + 2 * h + 1, vbase + 2 * h + 1))
        k.i("global_load_dword v%d, %s, off" % (vbase + 4 + h, v(vbase + 2 * h, 2)))

def stf(name, default=""):
    return os.environ.get("STF_" + name, default)
```

```python
from common import *
from sched import Block

import os
PREFETCH = int(os.environ.get('PREFETCH', '16'))
K1_NK, K1_NR, K1_NW = 224, 128, 64
K1_GRID = K1_NK + K1_NR + K1_NW
ORDER = os.environ.get("K1_ORDER", "krw")
_sz = {"k": K1_NK, "r": K1_NR, "w": K1_NW}
OFF = {}
_o = 0
for _c in ORDER:
    OFF[_c] = _o; _o += _sz[_c]
K1_LDS = 4 * 13568
TROW = 256
WVB = 53 * TROW
CHB = 2 * WVB
T2OFF = 2048

def role_kgen(k):
    W, CH, WP, D = 3, 12, 13, 14
    if OFF["k"]: k.i("s_sub_u32 s2, s2, %d" % OFF["k"])
    k.i("v_lshrrev_b32 v1, 6, v0")
    k.i("v_and_b32 v2, 63, v0")
    k.i("v_readfirstlane_b32 s3, v1")
    k.i("s_lshl_b32 s15, s2, 2")
    k.i("s_lshr_b32 s12, s3, 1")
    k.i("s_and_b32 s13, s3, 1")
    k.i("s_lshl_b32 s14, s2, 1")
    k.i("s_add_u32 s14, s14, s12")
    k.i("s_lshl_b32 s48, s14, 9")
    k.i("s_lshl_b32 s49, s13, 8")
    k.i("s_add_u32 s48, s48, s49")
    k.i("v_lshl_add_u32 v1, v2, 2, s48")
    k.i("s_waitcnt lgkmcnt(0)")
    stamp(k, 1)
    k.i("s_load_dword s50, %s, s15" % sp(P_LOGDT))
    for j, p in enumerate((P_ARE, P_AIM, P_BRE, P_BIM, P_CRE, P_CIM)):
        k.i("global_load_dword v%d, v1, %s" % (4 + j, sp(p)))
    ws_srd(k)
    k.i("s_mul_i32 s51, s12, %d" % CHB)
    k.i("s_mul_i32 s52, s3, %d" % WVB)
    k.i("s_add_u32 s51, s51, %d" % T2OFF)
    k.i("v_lshrrev_b32 v10, 2, v2")
    k.i("v_and_b32 v11, 3, v2")
    k.i("v_lshl_add_u32 v11, v11, 2, s52")
    for c in range(16):
        k.i("v_xor_b32 v12, %d, v10" % c)
        k.i("v_lshl_add_u32 v%d, v12, 4, v11" % (104 + c))
    k.i("v_and_b32 v10, 15, v2")
    k.i("v_lshrrev_b32 v11, 4, v2")
    k.i("v_lshl_add_u32 v13, v10, 8, s52")
    for q in range(4):
        k.i("v_or_b32 v12, %d, v11" % (4 * q))
        k.i("v_xor_b32 v12, v12, v10")
        k.i("v_lshl_add_u32 v%d, v12, 4, v13" % (100 + q))
    k.i("v_lshl_add_u32 v72, v2, 4, s52")
    k.i("s_xor_b32 s53, s3, 1"); k.i("s_mul_i32 s53, s53, %d" % WVB)
    k.i("v_lshl_add_u32 v73, v2, 4, s53")
    k.i("s_lshl_b32 s54, s13, 4")
    k.i("v_add_u32 v13, s54, v10")
    k.i("v_and_b32 v87, 3, v13")
    k.i("v_lshrrev_b32 v14, 2, v13")
    k.i("v_lshlrev_b32 v13, 5, v13")
    k.i("v_lshl_add_u32 v13, v14, 2, v13")
    k.i("v_add_u32 v13, s51, v13")
    k.i("v_max_u32 v14, 1, v11")
    k.i("v_lshlrev_b32_e64 v15, v14, 2")
    k.i("v_lshlrev_b32 v16, 4, v11")
    k.i("v_subrev_u32 v17, 1, v11")
    k.i("v_mul_u32_u24 v17, 1056, v17")
    k.i("v_cmp_gt_u32 vcc, 2, v11")
    k.i("v_cndmask_b32 v16, v17, v16, vcc")
    k.i("v_add_u32 v74, v13, v16")
    k.i("v_add_u32 v75, v74, v15")
    k.i("v_lshlrev_b32 v17, 1, v15")
    k.i("v_mov_b32 v18, 1056")
    k.i("v_cmp_eq_u32 vcc, 3, v11")
    k.i("v_cndmask_b32 v17, v17, v18, vcc")
    k.i("v_add_u32 v76, v74, v17")
    k.i("v_add_u32 v77, v76, v15")
    k.i("v_mul_u32_u24 v17, 4224, v11")
    k.i("v_add_u32 v78, v13, v17")
    k.i("v_cmp_eq_u32 vcc, 0, v87")
    k.i("v_cndmask_b32_e64 v87, 4, 8, vcc")
    k.i("v_sub_u32 v87, v74, v87")
    k.i("s_lshl_b32 s57, s13, 6")
    k.i("v_add_u32 v88, s57, v2")
    k.i("v_sub_u32 v89, 69, v88")
    k.i("v_lshlrev_b32 v89, 3, v89")
    k.i("v_mov_b32 v90, 1")
    k.i("v_mov_b32 v16, 2059")
    k.i("v_mov_b32 v17, 2056")
    k.i("v_cmp_eq_u32 vcc, 5, v88")
    k.i("v_cndmask_b32 v89, v89, v17, vcc")
    k.i("v_subrev_u32 v14, 74, v88")
    k.i("v_mul_u32_u24 v15, 43, v14")
    k.i("v_lshrrev_b32 v15, 8, v15")
    k.i("v_mul_u32_u24 v17, 6, v15")
    k.i("v_sub_u32 v17, v14, v17")
    k.i("v_lshlrev_b32 v18, 7, v17")
    k.i("v_sub_u32 v18, %d, v18" % (16 * 72 + 4))
    k.i("v_lshl_add_u32 v18, v15, 2, v18")
    k.i("v_cmp_le_u32 vcc, 74, v88")
    k.i("v_cndmask_b32 v89, v89, v18, vcc")
    k.i("v_mov_b32 v19, 16")
    k.i("v_cndmask_b32 v90, v90, v19, vcc")
    k.i("v_cmp_gt_u32 s[60:61], 2, v17")
    k.i("s_and_b64 s[60:61], s[60:61], vcc")
    k.i("v_subrev_u32 v14, 100, v88")
    k.i("v_cmp_le_u32 vcc, 110, v88")
    k.i("v_cndmask_b32_e64 v15, 0, 1, vcc")
    k.i("v_mul_u32_u24 v17, 10, v15")
    k.i("v_sub_u32 v17, v14, v17")
    k.i("v_lshlrev_b32 v18, 7, v17")
    k.i("v_sub_u32 v18, %d, v18" % (16 * 120 + 8))
    k.i("v_lshl_add_u32 v18, v15, 3, v18")
    k.i("v_cmp_le_u32 vcc, 100, v88")
    k.i("v_cndmask_b32 v89, v89, v18, vcc")
    k.i("s_andn2_b64 s[60:61], s[60:61], vcc")
    k.i("v_cmp_le_u32 s[62:63], 8, v17")
    k.i("s_and_b64 s[62:63], s[62:63], vcc")
    k.i("s_or_b64 s[60:61], s[60:61], s[62:63]")
    k.i("v_cmp_gt_u32 vcc, 5, v88"); k.i("s_or_b64 s[60:61], s[60:61], vcc")
    k.i("v_subrev_u32 v14, 70, v88"); k.i("v_cmp_gt_u32 vcc, 4, v14"); k.i("s_or_b64 s[60:61], s[60:61], vcc")
    k.i("v_subrev_u32 v14, 98, v88"); k.i("v_cmp_gt_u32 vcc, 2, v14"); k.i("s_or_b64 s[60:61], s[60:61], vcc")
    k.i("v_cmp_le_u32 vcc, 120, v88"); k.i("s_or_b64 s[60:61], s[60:61], vcc")
    k.i("v_cndmask_b32 v89, v89, v16, s[60:61]")
    k.i("v_cndmask_b32_e64 v90, v90, 0, s[60:61]")
    for i in range(8):
        k.i("v_mad_u32_u24 v14, v90, %d, v89" % (7 - i))
        k.i("v_lshrrev_b32 v15, 5, v14")
        k.i("v_add_u32 v14, v14, v15")
        k.i("v_lshl_add_u32 v%d, v14, 2, s51" % (92 + i))
    k.i("s_waitcnt lgkmcnt(0)")
    k.i("s_lshl_b32 s55, s12, 4")
    k.i("s_lshr_b32 s50, s50, s55")
    k.i("s_lshl_b32 s50, s50, 16")
    k.i("v_mov_b32 v86, s50")
    k.i("v_mul_f32 v86, 0x%x, v86" % LOG2E)
    k.i("v_exp_f32 v86, v86")
    k.i("v_cvt_pk_bf16_f32 v86, v86, v86")
    k.i("v_and_b32 v86, 0xffff0000, v86")
    k.i("s_waitcnt vmcnt(0)")
    stamp(k, 2)
    blk = Block()
    class W:
        def i(self, t): blk.i(t)
    w = W()
    ACC = {(0, 0): 40, (1, 0): 44, (0, 1): 120, (1, 1): 124}
    for rnd in range(2):
        z1, z2, z3, z4, z6, Z, cur, tmp = 12, 14, 16, 18, 20, 22, 24, 26
        b0, b1, wc, w16, tb0, tb1, Zp, cur2, tmp2 = 28, 30, 32, 48, 50, 52, 54, 56, 58
        U = 80 if rnd == 0 else 4
        for j in range(6):
            if rnd == 0: w.i("v_lshlrev_b32 v%d, 16, v%d" % (80 + j, 4 + j))
            else: w.i("v_and_b32 v%d, 0xffff0000, v%d" % (4 + j, 4 + j))
        are, aim, bre, bim, cre, cim = U, U + 1, U + 2, U + 3, U + 4, U + 5
        la, ph = (10, 11) if rnd == 0 else (34, 35)
        w.i("v_mul_f32 v%d, v86, v%d" % (la, are))
        w.i("v_mul_f32 v%d, v86, v%d" % (ph, aim))
        w.i("v_mul_f32 v%d, 0x%x, v%d" % (la, LOG2E, la))
        w.i("v_mul_f32 v%d, %s, v%d" % (ph, INV2PI, ph))
        w.i("v_mul_f32 v%d, v86, v%d" % (bre, bre))
        w.i("v_mul_f32 v%d, v86, v%d" % (bim, bim))
        cmul(w, b0, cre, bre, tb0, conj_out=True)
        def direct(dst, mult, conj, t):
            if mult == 1:
                w.i("v_exp_f32 v%d, v%d" % (t, la)); w.i("v_fract_f32 v%d, v%d" % (t + 1, ph))
            else:
                w.i("v_mul_f32 v%d, %s, v%d" % (t, f32(mult), la))
                w.i("v_mul_f32 v%d, %s, v%d" % (t + 1, f32(-mult if conj else mult), ph))
                w.i("v_exp_f32 v%d, v%d" % (t, t)); w.i("v_fract_f32 v%d, v%d" % (t + 1, t + 1))
            w.i("v_cos_f32 v%d, v%d" % (dst, t + 1))
            w.i("v_sin_f32 v%d, v%d" % (dst + 1, t + 1))
            w.i("v_pk_mul_f32 %s, %s, %s op_sel_hi:[1,0]" % (v(dst, 2), v(dst, 2), v(t, 2)))
        direct(wc, 8, True, 60)
        direct(w16, 128, True, 62)
        direct(z1, 1, False, 64)
        direct(Z, 256, False, 60)
        tcount = [0]
        def tmpreg():
            t = 66 + 2 * (tcount[0] % 3); tcount[0] += 1
            return t
        def put(row, cls, reg):
            t = tmpreg(); cvtpk(w, t, reg, reg + 1)
            w.i("ds_write_b32 v%d, v%d offset:%d" % (104 + cls, t, row * TROW))
        def put2(rowa, rega, rowb, regb, cls):
            t = tmpreg()
            if rega is None: w.i("v_mov_b32 v%d, 0x3f80" % t)
            else: cvtpk(w, t, rega, rega + 1)
            cvtpk(w, t + 1, regb, regb + 1)
            w.i("ds_write2st64_b32 v%d, v%d, v%d offset0:%d offset1:%d" % (104 + cls, t, t + 1, rowa, rowb))
        cmul(w, b1, b0, w16, tb1)
        A = []
        A.append(lambda: (cmul(w, z2, z1, z1, tmp), cmul(w, Zp, Z, Z, tmp2), put(8, 8, Z), put(12, 12, Zp)))
        A.append(lambda: (cmul(w, z4, z2, z2, tmp), cmul(w, cur2, Zp, Zp, tmp2), put2(0, None, 16, cur2, 0)))
        A.append(lambda: (cmul(w, cur, Zp, z4, tmp), put(13, 13, cur)))
        A.append(lambda: (cmul(w, Zp, Zp, Z, tmp2), put(14, 14, Zp)))
        A.append(lambda: (cmul(w, cur2, cur2, Z, tmp2), put2(1, z1, 17, cur2, 1)))
        A.append(lambda: (cmul(w, cur, Zp, z4, tmp), put(15, 15, cur)))
        A.append(lambda: (cmul(w, cur2, cur2, Z, tmp2), put2(2, z2, 18, cur2, 2)))
        A.append(lambda: (cmul(w, z3, z2, z1, tmp), cmul(w, cur2, cur2, Z, tmp2), put2(3, z3, 19, cur2, 3)))
        A.append(lambda: (cmul(w, cur2, cur2, Z, tmp2), put2(4, z4, 20, cur2, 4)))
        A.append(lambda: (cmul(w, cur, z4, z1, tmp), put(5, 5, cur)))
        A.append(lambda: (cmul(w, z6, z4, z2, tmp), put(6, 6, z6)))
        A.append(lambda: (cmul(w, cur, z4, z3, tmp), put(7, 7, cur)))
        A.append(lambda: (cmul(w, cur, Z, z2, tmp), put(9, 9, cur)))
        A.append(lambda: (cmul(w, cur, Z, z4, tmp), put(10, 10, cur)))
        A.append(lambda: (cmul(w, cur, Z, z6, tmp), put(11, 11, cur)))
        ai = 0
        for c in range(16):
            put2(21 + c, b0, 37 + c, b1, c)
            if c < 15:
                cmul(w, b0, b0, wc, tb0); cmul(w, b1, b1, wc, tb1)
            if ai < len(A): A[ai](); ai += 1
        assert ai == len(A)
        for q in range(4):
            f = (12, 48)[q & 1]
            for n, off in enumerate((0, 16, 21, 37)):
                w.i("ds_read_b128 %s, v%d offset:%d" % (v(f + 4 * n, 4), 100 + q, off * TROW))
            for M in range(2):
                for N in range(2):
                    a_ = ACC[(M, N)]
                    w.i("v_mfma_f32_16x16x32_bf16 %s, %s, %s, %s" % (v(a_, 4), v(f + 4 * M, 4), v(f + 8 + 4 * N, 4), "0" if (rnd == 0 and q == 0) else v(a_, 4)))
    est = blk.emit(k); k.c("kgen estimate %d" % est)
    stamp(k, 5)
    k.i("s_cmp_eq_u32 s13, 0")
    k.i("s_cbranch_scc1 L_kg_keep0")
    for j in range(4):
        k.i("v_swap_b32 v%d, v%d" % (40 + j, 120 + j)); k.i("v_swap_b32 v%d, v%d" % (44 + j, 124 + j))
    k.label("L_kg_keep0")
    k.i("ds_write_b128 v72, v[120:123]")
    k.i("ds_write_b128 v72, v[124:127] offset:1024")
    k.i("s_waitcnt lgkmcnt(0)")
    k.i("s_barrier")
    k.i("ds_read_b128 v[120:123], v73")
    k.i("ds_read_b128 v[124:127], v73 offset:1024")
    k.i("s_waitcnt lgkmcnt(1)")
    for j in range(0, 4, 2): k.i("v_pk_add_f32 %s, %s, %s" % (v(40 + j, 2), v(40 + j, 2), v(120 + j, 2)))
    k.i("s_waitcnt lgkmcnt(0)")
    for j in range(0, 4, 2): k.i("v_pk_add_f32 %s, %s, %s" % (v(44 + j, 2), v(44 + j, 2), v(124 + j, 2)))
    for j in range(4): k.i("ds_write_b32 v%d, v%d" % (74 + j, 40 + j))
    k.i("s_mov_b32 exec_hi, 0")
    k.i("ds_write_b32 v78, v44 offset:%d" % (1056 * 4))
    k.i("s_mov_b32 exec_lo, 0xffff")
    for j in range(1, 4): k.i("ds_write_b32 v78, v%d offset:%d" % (44 + j, 1056 * (4 + j)))
    k.i("s_mov_b32 exec_lo, 0"); k.i("s_mov_b32 exec_hi, 0xffff")
    k.i("ds_write_b32 v74, v40 offset:4")
    k.i("v_subrev_u32 v14, 4, v76")
    k.i("ds_write_b32 v76, v42 offset:4")
    k.i("ds_write_b32 v14, v42")
    k.i("s_cmp_eq_u32 s13, 0")
    k.i("s_cselect_b32 exec_hi, 0xfffe, exec_hi")
    k.i("ds_write_b32 v87, v40")
    k.i("s_mov_b64 exec, -1")
    k.i("v_mov_b32 v14, s51")
    k.i("v_mov_b32 v15, 0")
    k.i("s_cmp_eq_u32 s13, 0")
    k.i("s_cbranch_scc0 L_kg_nox")
    k.i("s_mov_b32 exec_lo, 0"); k.i("s_mov_b32 exec_hi, 0x10000")
    a511 = 4 * (511 + (511 >> 5)); ax = 4 * (2056 + (2056 >> 5))
    k.i("ds_write_b32 v14, v40 offset:%d" % a511)
    for e in range(3): k.i("ds_write_b32 v14, v40 offset:%d" % (ax + 4 * e))
    for e in range(3, 8): k.i("ds_write_b32 v14, v15 offset:%d" % (ax + 4 * e))
    k.i("s_mov_b64 exec, -1")
    k.label("L_kg_nox")
    k.i("s_mul_i32 s58, s14, %d" % KSTR)
    k.i("s_add_u32 s58, s58, 0x%x" % WS_KR)
    k.i("v_lshl_add_u32 v19, v88, 4, s58")
    k.i("v_cmp_gt_u32 vcc, 120, v88")
    k.i("s_waitcnt lgkmcnt(0)")
    k.i("s_barrier")
    stamp(k, 6)
    for i in range(8): k.i("ds_read_b32 v%d, v%d" % (24 + i, 92 + i))
    k.i("s_and_b64 exec, exec, vcc")
    for p in range(4):
        k.i("s_waitcnt lgkmcnt(%d)" % (6 - 2 * p))
        cvtpk(k, 56 + p, 24 + 2 * p, 25 + 2 * p)
    k.i("buffer_store_dwordx4 v[56:59], v19, s[8:11], 0 offen" + stf("KR", " sc1"))
    stamp(k, 4)
    endpgm(k, 0)

XROW = 928
GWB = 16 * XROW
XTB = GWB + 4 * 896
STF = os.environ.get('STF', ' sc1')

def sincos_neg(k, c, sn, ph):
    k.i("v_cos_f32 v%d, v%d" % (c, ph))
    k.i("v_sin_f32 v%d, v%d" % (sn, ph))

def role_row(k):
    if int(os.environ.get("PRIO_ROW", "0")): k.i("s_setprio %s" % os.environ["PRIO_ROW"])
    k.i("v_lshrrev_b32 v1, 6, v0")
    k.i("v_and_b32 v2, 63, v0")
    k.i("v_readfirstlane_b32 s3, v1")
    k.i("s_sub_u32 s12, s2, %d" % OFF["r"])
    k.i("s_lshl_b32 s12, s12, 4")
    k.i("s_lshl_b32 s13, s3, 2")
    k.i("s_add_u32 s14, s12, s13")
    k.i("s_mul_i32 s15, s14, 896")
    k.i("v_lshl_add_u32 v3, v2, 4, s15")
    k.i("v_lshlrev_b32 v4, 4, v2")
    k.i("s_waitcnt lgkmcnt(0)")
    stamp(k, 1)
    k.i("s_mov_b32 exec_hi, 0x00ffffff")
    for r in range(4):
        k.i("global_load_dwordx4 %s, v3, %s offset:%d" % (v(8 + 4 * r, 4), sp(P_U), 896 * r))
    k.i("global_load_dwordx4 v[24:27], v4, %s" % sp(P_GW))
    k.i("s_mov_b64 exec, -1")
    ws_srd(k)
    k.i("v_and_b32 v5, 15, v2")
    k.i("v_lshrrev_b32 v6, 4, v2")
    k.i("v_cvt_f32_u32 v28, v5")
    k.i("v_lshlrev_b32 v7, 2, v6")
    k.i("v_cvt_f32_u32 v29, v7")
    F28R, F28I = 32, 36
    k.i("v_mul_f32 v30, %s, v28" % f32(-1.0 / 28))
    for i in range(8):
        d = i if i < 4 else 16 + (i - 4)
        k.i("v_add_f32 v31, %s, v29" % (("%d.0" % d) if d in (1, 2, 4) else ("0" if d == 0 else f32(d))))
        k.i("v_mul_f32 v31, v31, v30")
        sincos_neg(k, 40 + i, 48 + i, 31)
    for i in range(4):
        cvtpk(k, F28R + i, 40 + 2 * i, 40 + 2 * i + 1)
        cvtpk(k, F28I + i, 48 + 2 * i, 48 + 2 * i + 1)
    k.i("v_cmp_gt_u32 vcc, 3, v6")
    for r in (F28R + 2, F28R + 3, F28I + 2, F28I + 3):
        k.i("v_cndmask_b32 v%d, 0, v%d, vcc" % (r, r))
    TC, TS = 40, 44
    k.i("v_mul_f32 v30, %s, v28" % f32(-1.0 / 448))
    for j in range(4):
        k.i("v_add_f32 v31, %s, v29" % (("%d.0" % j) if j in (1, 2) else ("0" if j == 0 else f32(j))))
        k.i("v_mul_f32 v31, v31, v30")
        sincos_neg(k, TC + j, TS + j, 31)
    F16R, F16I = 48, 52
    k.i("v_mul_f32 v30, %s, v28" % f32(-1.0 / 16))
    for j in range(4):
        k.i("v_add_f32 v31, %s, v29" % (("%d.0" % j) if j in (1, 2) else ("0" if j == 0 else f32(j))))
        k.i("v_mul_f32 v31, v31, v30")
        sincos_neg(k, 56, 57, 31)
        cvtpk(k, F16R + j, 56, 57, neg_hi=True)
        cvtpk(k, F16I + j, 57, 56)
    k.i("s_mul_i32 s48, s13, %d" % XROW)
    k.i("v_add_u32 v56, s48, v4")
    k.i("s_mul_i32 s49, s3, 896")
    k.i("s_add_u32 s49, s49, %d" % GWB)
    k.i("v_add_u32 v57, s49, v4")
    k.i("v_lshlrev_b32 v58, 3, v2")
    k.i("v_add_u32 v58, s48, v58")
    k.i("v_cmp_le_u32 vcc, 48, v2")
    k.i("v_cndmask_b32 v59, 0, -128, vcc" if False else "v_mov_b32 v59, 512")
    k.i("v_mov_b32 v60, 384")
    k.i("v_cndmask_b32 v59, v59, v60, vcc")
    k.i("v_add_u32 v59, v58, v59")
    k.i("v_and_b32 v60, 3, v2")
    k.i("v_mul_u32_u24 v60, %d, v60" % XROW)
    k.i("v_lshl_add_u32 v60, v6, 4, v60")
    k.i("v_add_u32 v60, s48, v60")
    k.i("v_lshlrev_b32 v61, 4, v6")
    k.i("v_add_u32 v61, s49, v61")
    k.i("v_mul_u32_u24 v62, 1040, v5")
    k.i("v_lshl_add_u32 v62, v6, 8, v62")
    k.i("s_lshl_b32 s51, s3, 4")
    k.i("s_add_u32 s51, s51, %d" % XTB)
    k.i("v_add_u32 v62, s51, v62")
    k.i("s_mul_i32 s51, s3, 1040"); k.i("s_add_u32 s51, s51, %d" % XTB)
    k.i("v_add_u32 v65, s51, v4")
    k.i("s_lshr_b32 s50, s12, 4"); k.i("s_mul_i32 s50, s50, %d" % SX1)
    k.i("s_lshl_b32 s51, s3, 10")
    k.i("s_add_u32 s50, s50, s51")
    k.i("s_add_u32 s50, s50, 0x%x" % WS_X1)
    k.i("v_add_u32 v66, s50, v4")
    k.i("v_lshrrev_b32 v63, 2, v5")
    k.i("v_add_u32 v63, v7, v63")
    k.i("v_mul_u32_u24 v63, %d, v63" % XROW)
    k.i("v_and_b32 v64, 3, v2")
    k.i("v_lshl_add_u32 v63, v64, 3, v63")
    k.i("s_lshl_b32 s51, s3, 5")
    k.i("v_add_u32 v63, s51, v63")
    k.i("s_lshl_b32 s51, s3, 4")
    k.i("v_add_u32 v64, s51, v5")
    k.i("v_lshlrev_b32 v64, 5, v64")
    k.i("v_lshl_add_u32 v64, v6, 3, v64")
    k.i("s_lshr_b32 s51, s12, 4"); k.i("s_mul_i32 s51, s51, %d" % SUT)
    k.i("s_add_u32 s51, s51, 0x%x" % WS_UT)
    k.i("v_add_u32 v64, s51, v64")
    stamp(k, 2)
    k.i("s_waitcnt vmcnt(0)")
    stamp(k, 3)
    k.i("s_mov_b32 exec_hi, 0x00ffffff")
    for r in range(4):
        k.i("ds_write_b128 v56, %s offset:%d" % (v(8 + 4 * r, 4), XROW * r))
    k.i("ds_write_b128 v57, v[24:27]")
    k.i("s_mov_b64 exec, -1")
    XA = 8
    for r in range(4):
        k.i("ds_read_b64_tr_b16 %s, v58 offset:%d" % (v(XA + 4 * r, 2), XROW * r))
        k.i("ds_read_b64_tr_b16 %s, v59 offset:%d" % (v(XA + 4 * r + 2, 2), XROW * r))
    k.i("s_waitcnt lgkmcnt(0)")
    k.i("s_barrier")
    stamp(k, 4)
    DR, DI = 68, 84
    blk = Block()
    class W:
        def i(self, t): blk.i(t)
    w = W()
    for it in range(7):
        w.i("ds_read_b64_tr_b16 %s, v63 offset:%d" % (v(100 + 2 * it, 2), 128 * it))
    for r in range(4):
        mfma(w, DR + 4 * r, XA + 4 * r, F28R, "0")
        mfma(w, DI + 4 * r, XA + 4 * r, F28I, "0")
    for it in range(7):
        w.i("s_mov_b32 s%d, %d" % (56 + it, 2048 * it))
        w.i("buffer_store_dwordx2 %s, v64, s[8:11], s%d offen%s" % (v(100 + 2 * it, 2), 56 + it, stf("UT", " sc1")))
    P = 8; O = 8
    for r in range(4):
        twiddle4(w, DR + 4 * r, DI + 4 * r, TC, TS, 28 + 92 * (r & 1), 30 + 92 * (r & 1))
        for j in range(4): cvtpk(w, P + 4 * r + j, DR + 4 * r + j, DI + 4 * r + j)
    for r in range(4):
        mfma(w, DR + 4 * r, F16R, P + 4 * r, "0")
        mfma(w, DI + 4 * r, F16I, P + 4 * r, "0")
    for r in range(4):
        for j in range(4): cvtpk(w, O + 4 * j + r, DR + 4 * r + j, DI + 4 * r + j)
    for j in range(4):
        w.i("ds_write_b128 v62, %s offset:%d" % (v(O + 4 * j, 4), 64 * j))
    est = blk.emit(k); k.c("row main estimate %d" % est)
    k.i("s_waitcnt lgkmcnt(0)")
    k.i("s_barrier")
    stamp(k, 5)
    for i in range(4):
        if i == 3:
            k.i("s_cmp_eq_u32 s3, 3"); k.i("s_cbranch_scc1 L_row_no15")
        k.i("ds_read_b128 %s, v65 offset:%d" % (v(8 + 4 * i, 4), 4160 * i))
    k.label("L_row_no15")
    blk = Block(); GA = 116
    k.i("s_mov_b32 s52, 4096"); k.i("s_mov_b32 s53, 8192"); k.i("s_mov_b32 s54, 12288")
    k.i("s_waitcnt lgkmcnt(0)")
    for i in range(4):
        if i == 3:
            k.i("s_cmp_eq_u32 s3, 3"); k.i("s_cbranch_scc1 L_row_no15s")
        k.i("buffer_store_dwordx4 %s, v66, s[8:11], %s offen%s" % (v(8 + 4 * i, 4), "0" if i == 0 else "s%d" % (51 + i), stf("X1", " sc1")))
    k.label("L_row_no15s")
    stamp(k, 6)
    for q in range(14):
        a_, b_ = 68 + 8 * (q % 4), 72 + 8 * (q % 4)
        blk.i("ds_read_b128 %s, v60 offset:%d" % (v(a_, 4), 64 * q))
        blk.i("ds_read_b128 %s, v61 offset:%d" % (v(b_, 4), 64 * q))
        blk.i("v_mfma_f32_16x16x32_bf16 %s, %s, %s, %s" % (v(GA, 4), v(a_, 4), v(b_, 4), "0" if q == 0 else v(GA, 4)))
    blk.emit(k)
    for j in range(4):
        k.i("v_mul_f32 v%d, %s, v%d" % (GA + j, f32(-1.4426950408889634), GA + j))
    for j in range(4): k.i("v_exp_f32 v%d, v%d" % (GA + j, GA + j))
    for j in range(4): k.i("v_add_f32 v%d, 1.0, v%d" % (GA + j, GA + j))
    for j in range(4): k.i("v_rcp_f32 v%d, v%d" % (GA + j, GA + j))
    k.i("s_lshl_b32 s50, s14, 2")
    k.i("s_add_u32 s50, s50, 0x%x" % WS_G)
    k.i("v_mov_b32 v28, s50")
    k.i("s_mov_b32 exec_hi, 0")
    k.i("s_mov_b32 exec_lo, 1")
    k.i("buffer_store_dwordx4 %s, v28, s[8:11], 0 offen" % v(GA, 4))
    endpgm(k, 0)

WROW = 480
WARR = 32 * WROW

def role_w(k):
    if int(os.environ.get("PRIO_W", "0")): k.i("s_setprio %s" % os.environ["PRIO_W"])
    k.i("v_lshrrev_b32 v1, 6, v0")
    k.i("v_and_b32 v2, 63, v0")
    k.i("v_readfirstlane_b32 s3, v1")
    k.i("s_sub_u32 s12, s2, %d" % OFF["w"])
    k.i("s_and_b32 s13, s12, 1")
    k.i("v_lshrrev_b32 v3, 5, v2")
    k.i("s_lshl_b32 s14, s3, 3")
    k.i("v_add_u32 v3, s14, v3")
    k.i("v_and_b32 v4, 31, v2")
    k.i("v_lshlrev_b32 v4, 4, v4")
    k.i("v_lshl_add_u32 v5, v3, 6, s12")
    k.i("v_mul_u32_u24 v5, 450, v5")
    k.i("s_lshl_b32 s15, s13, 1")
    k.i("v_subrev_u32 v5, s15, v5")
    k.i("v_add_u32 v5, v5, v4")
    k.i("v_mul_u32_u24 v6, %d, v3" % WROW)
    k.i("v_add_u32 v6, v6, v4")
    k.i("s_mov_b32 s48, 57600"); k.i("s_mov_b32 s49, 115200"); k.i("s_mov_b32 s50, 172800")
    k.i("s_waitcnt lgkmcnt(0)")
    stamp(k, 1)
    srd(k, 52, P_WR, 921600)
    srd(k, 56, P_WI, 921600)
    k.i("s_mov_b32 exec_lo, 0x1fffffff"); k.i("s_mov_b32 exec_hi, 0x1fffffff")
    for i in range(4):
        so = "0" if i == 0 else "s%d" % (47 + i)
        k.i("buffer_load_dwordx4 %s, v5, s[52:55], %s offen" % (v(8 + 4 * i, 4), so))
        k.i("buffer_load_dwordx4 %s, v5, s[56:59], %s offen" % (v(24 + 4 * i, 4), so))
    k.i("s_mov_b64 exec, -1")
    ws_srd(k, 8, WS_WT, 64 * SW2)
    k.i("s_mov_b32 s67, 224")
    k.i("v_and_b32 v40, 15, v2")
    k.i("v_lshrrev_b32 v41, 4, v2")
    k.i("v_lshrrev_b32 v42, 2, v40")
    k.i("v_lshl_add_u32 v42, v41, 2, v42")
    k.i("v_mul_u32_u24 v42, %d, v42" % WROW)
    k.i("v_and_b32 v43, 3, v2")
    k.i("v_lshl_add_u32 v42, v43, 3, v42")
    k.i("s_lshl_b32 s63, s3, 5")
    k.i("v_add_u32 v42, s63, v42")
    k.i("s_lshl_b32 s63, s3, 4")
    k.i("s_sub_u32 s63, s63, s13")
    k.i("v_and_b32 v43, 7, v40")
    k.i("v_add_u32 v43, s63, v43")
    k.i("s_mul_i32 s63, s12, %d" % SW2)
    k.i("v_lshl_add_u32 v45, v41, 4, s63")
    k.i("v_lshrrev_b32 v46, 3, v40")
    k.i("v_lshl_add_u32 v45, v46, 6, v45")
    k.i("v_lshl_add_u32 v44, v43, 7, v45")
    k.i("v_mov_b32 v47, 0x7ffffff0")
    k.i("s_mov_b32 s64, 0x05040100"); k.i("s_mov_b32 s65, 0x07060302")
    k.i("s_waitcnt vmcnt(0)")
    stamp(k, 3)
    k.i("s_mov_b32 exec_lo, 0x1fffffff"); k.i("s_mov_b32 exec_hi, 0x1fffffff")
    for i in range(4):
        k.i("ds_write_b128 v6, %s offset:%d" % (v(8 + 4 * i, 4), 2 * WROW * i))
        k.i("ds_write_b128 v6, %s offset:%d" % (v(24 + 4 * i, 4), WARR + 2 * WROW * i))
    k.i("s_mov_b64 exec, -1")
    k.i("s_waitcnt lgkmcnt(0)")
    k.i("s_barrier")
    stamp(k, 4)
    blk = Block()
    for it in range(4):
        RB = 8 + 8 * it
        for H in range(2):
            blk.i("ds_read_b64_tr_b16 %s, v42 offset:%d" % (v(RB + 4 * H, 2), 128 * it + 16 * WROW * H))
            blk.i("ds_read_b64_tr_b16 %s, v42 offset:%d" % (v(RB + 4 * H + 2, 2), WARR + 128 * it + 16 * WROW * H))
    for it in range(4):
        RB = 8 + 8 * it; o = 48 + 12 * it
        for H in range(2):
            R, I, d = RB + 4 * H, RB + 4 * H + 2, o + 4 * H
            blk.i("v_perm_b32 v%d, v%d, v%d, s64" % (d, I, R))
            blk.i("v_perm_b32 v%d, v%d, v%d, s65" % (d + 1, I, R))
            blk.i("v_perm_b32 v%d, v%d, v%d, s64" % (d + 2, I + 1, R + 1))
            blk.i("v_perm_b32 v%d, v%d, v%d, s65" % (d + 3, I + 1, R + 1))
        for j in range(4):
            blk.i("v_mov_b32 v%d, v%d" % (o + 8 + j, o + j))
            blk.i("v_mov_b32_dpp v%d, v%d row_ror:8 row_mask:0xf bank_mask:0xc" % (o + j, o + 4 + j))
            blk.i("v_mov_b32_dpp v%d, v%d row_ror:8 row_mask:0xf bank_mask:0x3" % (o + 4 + j, o + 8 + j))
        for h2 in range(2):
            a0 = 100 + 2 * it + h2; dk = 64 * it + 8 * h2
            blk.i("v_add_u32 v%d, %d, v43" % (108 + h2, dk))
            blk.i("v_cmp_ge_u32 s[%d:%d], 224, v%d" % (68 + 2 * h2, 69 + 2 * h2, 108 + h2) if False else "v_cmp_le_u32 s[%d:%d], v%d, s67" % (68 + 2 * h2, 69 + 2 * h2, 108 + h2))
            blk.i("v_add_u32 v%d, %d, v44" % (a0, 128 * dk))
            blk.i("v_cndmask_b32 v%d, v47, v%d, s[%d:%d]" % (a0, a0, 68 + 2 * h2, 69 + 2 * h2))
            blk.i("buffer_store_dwordx4 %s, v%d, s[8:11], 0 offen%s" % (v(o + 4 * h2, 4), a0, stf("WT", " sc1")))
    blk.emit(k)
    stamp(k, 5)
    endpgm(k, 0)

def gen_k1(k, name):
    kernel_header(k, name)
    diag_begin(k)
    load_kernargs(k)
    if PREFETCH:
        k.i("s_cmp_lt_u32 s2, %d" % PREFETCH)
        k.i("s_cbranch_scc0 L_k1_nopf")
        code_prefetch(k, 120, "L_k1_pc")
        k.label("L_k1_nopf")
    lab = {"k": "L_k1_kgen", "r": "L_k1_row", "w": "L_k1_w"}
    for c in ORDER:
        k.i("s_cmp_lt_u32 s2, %d" % (OFF[c] + _sz[c]))
        k.i("s_cbranch_scc1 %s" % lab[c])
    k.i("s_endpgm")
    k.label("L_k1_kgen"); role_kgen(k)
    k.label("L_k1_row"); role_row(k)
    k.label("L_k1_w"); role_w(k)
```

```python
from common import *

import os
from sched import Block
K2_NC, K2_NF = 224, 225
K2_GRID = K2_NC + K2_NF
COLFIRST = int(os.environ.get('COLFIRST', '1'))
NCOLP = 225 if COLFIRST else 0
if COLFIRST: K2_GRID = NCOLP + K2_NC
GUARD = 128
CSTR = 2112
UOFF = 4 * CSTR
UPAD = 1088
CHL = UOFF + UPAD + 4096 + 64
K2_LDS = GUARD + 2 * CHL
K2_VGPR = 168
B4 = lambda e: 592 + 48 * (e - 1)
B8 = lambda e: 800 + 80 * (e - 1)
TILES = {0: (0, 1, 6, 7), 1: (2, 3, 4, 5)}

def conv_main(k, h):
    ACC, H, VR, M1, M2, M3, M5, M6, MC, KF, AS = 16, 32, 104, 120, 124, 128, 132, 136, 140, 144, 160
    aH, aK, aV = 50, 51, 52
    aH, aK, aV = 10, 11, 12
    tiles = TILES[h]
    acc = {t: ACC + 4 * i for i, t in enumerate(tiles)}
    b = Block()
    first = set()
    def mf(t, A, B):
        c = acc[t] if t in first else "0"
        first.add(t)
        b.i("v_mfma_f32_16x16x32_bf16 %s, %s, %s, %s" % (v(acc[t], 4), v(A, 4), v(B, 4), v(c, 4) if c != "0" else "0"))
    uses = {}
    for t in tiles:
        for q in range(18):
            if q > 8 * t + 8: continue
            uses.setdefault(256 * t - 32 * q, []).append((t, q))
    hloaded = set(); nring = 0
    for x0 in sorted(uses, reverse=True):
        for (t, q) in uses[x0]:
            if q not in hloaded:
                hloaded.add(q)
                b.i("ds_read_b64 %s, v%d offset:%d" % (v(H + 4 * q, 2), aH, 1112 - 64 * q))
                b.i("ds_read_b64 %s, v%d offset:%d" % (v(H + 4 * q + 2, 2), aH, 1112 - 64 * q + 8))
        vr = VR + 4 * (nring & 3); nring += 1
        b.i("ds_read_b128 %s, v%d offset:%d" % (v(vr, 4), aV, UPAD + 2 * x0))
        for (t, q) in uses[x0]: mf(t, H + 4 * q, vr)
    PH, BX, PP = 32, 48, 96
    need4 = {tp: [t for t in tiles if t - tp in (2, 3, 4)] for tp in range(6)}
    need8 = {tp: [t for t in tiles if t - tp in (4, 5, 6, 7)] for tp in range(6)}
    corr = {tp: [t for t in tiles if t - tp == 4] for tp in range(6)}
    nbuf = 0; nk = 0
    for tp in range(6):
        if not (need4[tp] or need8[tp]): continue
        pa, pb = PH + 8 * (nbuf & 1), PH + 8 * (nbuf & 1) + 4
        bx, pp = BX + 24 * (nbuf & 1), PP + 12 * (nbuf & 1); nbuf += 1
        b.i("ds_read_b128 %s, v%d offset:%d" % (v(pa, 4), aV, UPAD + 512 * tp - 32))
        b.i("ds_read_b128 %s, v%d offset:%d" % (v(pb, 4), aV, UPAD + 512 * tp - 48))
        boxes = []
        if need4[tp]: boxes += [(0, pa, M1, pp), (1, pa, M2, pp + 2), (2, pa, M3, pp + 4), (3, pb, M2, pp + 6)]
        if need8[tp]: boxes += [(4, pa, M5, pp + 8), (5, pb, M6, pp + 10)]
        for (n, ph, m, dst) in boxes:
            b.i("v_mfma_f32_16x16x32_bf16 %s, %s, %s, 0" % (v(bx + 4 * n, 4), v(ph, 4), v(m, 4)))
        for (n, ph, m, dst) in boxes:
            b.i("v_cvt_pk_bf16_f32 v%d, v%d, v%d" % (dst, bx + 4 * n, bx + 4 * n + 1))
            b.i("v_cvt_pk_bf16_f32 v%d, v%d, v%d" % (dst + 1, bx + 4 * n + 2, bx + 4 * n + 3))
        for t in corr[tp]: mf(t, AS, pa)
        def kfrag(off0, off1):
            nonlocal nk
            kf = KF + 4 * (nk & 3); nk += 1
            b.i("ds_read_b64 %s, v%d offset:%d" % (v(kf, 2), aK, off0))
            b.i("ds_read_b64 %s, v%d offset:%d" % (v(kf + 2, 2), aK, off1))
            return kf
        for t in need4[tp]:
            D = t - tp
            for (e0, op) in ((1, pp), (3, pp + 4)):
                kf = kfrag(2 * (B4(e0) + 76 - 16 * D), 2 * (B4(e0 + 1) + 76 - 16 * D))
                mf(t, op, kf)
        for t in need8[tp]:
            D = t - tp
            kf = kfrag(2 * (B8(1) + 124 - 16 * D), 2 * (B8(2) + 124 - 16 * D))
            mf(t, pp + 8, kf)
    est = b.emit(k)
    k.c("scheduled estimate: %d cycles" % est)
    return acc

def conv_epilogue(k, h):
    tiles = TILES[h]; ACC = 16
    b = Block()
    for i, t in enumerate(tiles):
        b.i("ds_read_b64 %s, v13 offset:%d" % (v(56 + 2 * i, 2), UPAD + 512 * t))
    for i, t in enumerate(tiles):
        a = ACC + 4 * i; uu = 56 + 2 * i; x = 64 + 4 * i; o = 80 + 2 * i
        b.i("v_lshlrev_b32 v%d, 16, v%d" % (x, uu)); b.i("v_and_b32 v%d, 0xffff0000, v%d" % (x + 1, uu))
        b.i("v_lshlrev_b32 v%d, 16, v%d" % (x + 2, uu + 1)); b.i("v_and_b32 v%d, 0xffff0000, v%d" % (x + 3, uu + 1))
        b.i("v_pk_fma_f32 %s, %s, s[56:57], %s" % (v(a, 2), v(x, 2), v(a, 2)))
        b.i("v_pk_fma_f32 %s, %s, s[56:57], %s" % (v(a + 2, 2), v(x + 2, 2), v(a + 2, 2)))
        b.i("v_cvt_pk_bf16_f32 v%d, v%d, v%d" % (o, a, a + 1)); b.i("v_cvt_pk_bf16_f32 v%d, v%d, v%d" % (o + 1, a + 2, a + 3))
        b.i("buffer_store_dwordx2 %s, v14, s[8:11], 0 offen offset:%d%s" % (v(o, 2), 512 * t, stf("AT", " sc1")))
    b.emit(k)

def role_conv(k):
    if int(os.environ.get("PRIO_CONV", "0")): k.i("s_setprio %s" % os.environ["PRIO_CONV"])
    k.i("v_lshrrev_b32 v1, 6, v0")
    k.i("v_and_b32 v2, 63, v0")
    k.i("v_readfirstlane_b32 s3, v1")
    if COLFIRST: k.i("s_sub_u32 s2, s2, %d" % NCOLP)
    k.i("s_and_b32 s48, s2, 7"); k.i("s_lshl_b32 s48, s48, 1")
    k.i("s_bfe_u32 s49, s2, 0x10003"); k.i("s_add_u32 s48, s48, s49")
    k.i("s_and_b32 s49, s2, 0xf0"); k.i("s_add_u32 s48, s48, s49")
    k.i("s_lshl_b32 s15, s48, 2")
    k.i("s_lshr_b32 s12, s3, 1")
    k.i("s_and_b32 s13, s3, 1")
    k.i("s_lshl_b32 s14, s48, 1")
    k.i("s_add_u32 s14, s14, s12")
    k.i("s_lshl_b32 s48, s13, 6")
    k.i("v_add_u32 v3, s48, v2")
    k.i("s_mul_i32 s49, s14, %d" % KSTR)
    k.i("s_add_u32 s49, s49, 0x%x" % WS_KR)
    k.i("v_lshl_add_u32 v4, v3, 4, s49")
    k.i("s_lshl_b32 s50, s14, 5")
    k.i("s_add_u32 s50, s50, 0x%x" % WS_UT)
    k.i("v_lshrrev_b32 v5, 1, v3")
    k.i("v_mul_u32_u24 v5, %d, v5" % SUT)
    k.i("v_and_b32 v6, 1, v3")
    k.i("v_lshl_add_u32 v5, v6, 4, v5")
    k.i("v_add_u32 v5, s50, v5")
    k.i("s_mov_b32 s50, %d" % (64 * SUT))
    k.i("s_waitcnt lgkmcnt(0)")
    stamp(k, 1)
    ws_srd(k)
    k.i("s_load_dword s51, %s, s15" % sp(P_DSKIP))
    for e in range(3):
        k.i("buffer_load_dwordx4 %s, v4, s[8:11], 0 offen offset:%d" % (v(16 + 4 * e, 4), 4 * e))
    k.i("buffer_load_dwordx4 v[40:43], v5, s[8:11], 0 offen")
    k.i("buffer_load_dwordx4 v[44:47], v5, s[8:11], s50 offen")
    k.i("s_mul_i32 s52, s12, %d" % CHL)
    k.i("s_add_u32 s52, s52, %d" % GUARD)
    k.i("s_add_u32 s53, s52, %d" % UOFF)
    k.i("v_lshl_add_u32 v6, v3, 4, s52")
    k.i("v_lshl_add_u32 v7, v3, 4, s53")
    for j in range(4): k.i("v_mov_b32 v%d, 0" % (32 + j))
    k.i("v_cmp_gt_u32 vcc, %d, v3" % (UPAD // 16))
    k.i("s_and_saveexec_b64 s[60:61], vcc")
    k.i("ds_write_b128 v7, v[32:35]")
    k.i("v_cmp_gt_u32 vcc, 4, v3")
    k.i("s_and_b64 exec, exec, vcc")
    k.i("s_cbranch_execz L_cv_nopad")
    k.i("ds_write_b128 v7, v[32:35] offset:%d" % (UPAD + 4096))
    k.label("L_cv_nopad")
    k.i("s_mov_b64 exec, s[60:61]")
    k.i("v_and_b32 v48, 15, v2")
    k.i("v_lshrrev_b32 v49, 4, v2")
    k.i("v_and_b32 v50, 3, v48")
    k.i("v_lshrrev_b32 v51, 2, v48")
    k.i("v_mul_u32_u24 v50, %d, v50" % CSTR)
    k.i("v_lshlrev_b32 v51, 3, v51")
    k.i("v_sub_u32 v50, v50, v51")
    k.i("v_add_u32 v50, s52, v50")
    k.i("v_lshl_add_u32 v10, v49, 4, v50")
    k.i("v_lshl_add_u32 v11, v49, 3, v50")
    k.i("v_lshlrev_b32 v51, 5, v48")
    k.i("v_add_u32 v51, s53, v51")
    k.i("v_lshl_add_u32 v12, v49, 4, v51")
    k.i("v_lshl_add_u32 v13, v49, 3, v51")
    k.i("v_lshlrev_b32 v14, 5, v48")
    k.i("v_lshl_add_u32 v14, v49, 3, v14")
    k.i("s_mul_i32 s59, s14, %d" % SAT)
    k.i("s_add_u32 s59, s59, 0x%x" % WS_AT)
    k.i("v_add_u32 v14, s59, v14")
    k.i("v_lshlrev_b32 v52, 3, v49")
    k.i("v_sub_u32 v52, v52, v48")
    k.i("s_mov_b32 s54, 0x8001"); k.i("s_mov_b32 s55, 0x10001")
    for (reg, lo, hi, val) in ((120, 11, 13, 0x3f80), (124, 6, 10, 0x3f80), (128, 3, 5, 0x3f80), (132, 5, 11, 0x3f80), (136, 4, 12, 0x3f80), (140, 12, 13, 0xffff)):
        n = hi - lo + 1
        k.i("v_add_u32 v53, %d, v52" % (20 - lo))
        k.i("v_med3_i32 v53, v53, 0, 31")
        k.i("s_mov_b32 s56, 0x%x" % (((1 << n) - 1) << 20))
        k.i("v_lshrrev_b32_e64 v53, v53, s56")
        for p in range(4):
            k.i("v_bfe_u32 v54, v53, %d, 2" % (2 * p))
            k.i("v_mul_u32_u24 v54, 0x8001, v54")
            k.i("v_and_b32 v54, s55, v54")
            k.i("v_mul_u32_u24 v%d, 0x%x, v54" % (reg + p, val))
    k.i("s_waitcnt vmcnt(2)")
    stamp(k, 2)
    L0, L1, LX = 16, 20, 24
    k.i("ds_write_b128 v6, %s offset:%d" % (v(L0, 4), 3 * CSTR))
    k.i("ds_write_b128 v6, %s offset:%d" % (v(L1, 4), 1 * CSTR))
    for j in range(4): k.i("v_alignbit_b32 v%d, v%d, v%d, 16" % (28 + j, L1 + j, L0 + j))
    for j in range(4): k.i("v_alignbit_b32 v%d, v%d, v%d, 16" % (36 + j, LX + j, L1 + j))
    k.i("ds_write_b128 v6, v[28:31] offset:%d" % (2 * CSTR))
    k.i("ds_write_b128 v6, v[36:39] offset:%d" % (0 * CSTR))
    k.i("s_waitcnt vmcnt(0)")
    k.i("ds_write_b128 v7, v[40:43] offset:%d" % UPAD)
    k.i("ds_write_b128 v7, v[44:47] offset:%d" % (UPAD + 2048))
    k.i("s_lshl_b32 s58, s12, 4")
    k.i("v_mov_b32 v53, s52")
    k.i("s_waitcnt lgkmcnt(0)")
    k.i("s_lshr_b32 s51, s51, s58")
    k.i("s_lshl_b32 s56, s51, 16")
    k.i("s_mov_b32 s57, s56")
    k.i("s_barrier")
    stamp(k, 3)
    k.i("ds_read_u16 v54, v53 offset:%d" % (3 * CSTR + 2 * 752))
    k.i("s_waitcnt lgkmcnt(0)")
    k.i("v_lshl_or_b32 v54, v54, 16, v54")
    for p in range(4): k.i("v_and_b32 v%d, v54, v%d" % (160 + p, 140 + p))
    k.i("s_cmp_eq_u32 s13, 0")
    k.i("s_cbranch_scc0 L_cv_h1")
    conv_main(k, 0)
    stamp(k, 5)
    conv_epilogue(k, 0)
    endpgm(k, 1)
    k.label("L_cv_h1")
    conv_main(k, 1)
    stamp(k, 5)
    conv_epilogue(k, 1)
    endpgm(k, 1)

INB, EXB = 0, 9216

def fi(x):
    return {0: "0", 1: "1.0", 2: "2.0", 4: "4.0"}.get(x, f32(x))

def role_col(k):
    BR, BI, AR, AI, TC, TS, DA, ACR, ACI, P, WW = 16, 32, 48, 64, 80, 88, 96, 128, 136, 144, 152
    if int(os.environ.get("PRIO_COL", "0")): k.i("s_setprio %s" % os.environ["PRIO_COL"])
    k.i("v_lshrrev_b32 v1, 6, v0")
    k.i("v_and_b32 v2, 63, v0")
    k.i("v_readfirstlane_b32 s3, v1")
    k.i("s_sub_u32 s48, s2, %d" % (0 if COLFIRST else K2_NC))
    k.i("s_and_b32 s12, s48, 7"); k.i("s_lshl_b32 s12, s12, 1")
    k.i("s_bfe_u32 s49, s48, 0x10003"); k.i("s_add_u32 s12, s12, s49")
    k.i("s_and_b32 s49, s48, 0xf0"); k.i("s_add_u32 s12, s12, s49")
    k.i("s_lshr_b32 s13, s12, 4"); k.i("s_add_u32 s13, s13, 1")
    k.i("s_and_b32 s14, s12, 15")
    k.i("s_cmp_ge_u32 s12, 208")
    k.i("s_cselect_b32 s13, 14, s13")
    k.i("s_sub_u32 s48, s12, 216")
    k.i("s_cmp_ge_u32 s12, 216")
    k.i("s_cselect_b32 s13, 0, s13"); k.i("s_cselect_b32 s14, s48, s14")
    k.i("s_lshl_b32 s15, s13, 4"); k.i("s_add_u32 s15, s15, s14")
    k.i("s_mul_i32 s48, s14, 28"); k.i("s_add_u32 s48, s48, s13")
    k.i("s_sub_u32 s49, 448, s48")
    k.i("s_cmp_gt_u32 s48, 224")
    k.i("s_cselect_b32 s50, 1, 0")
    k.i("s_cselect_b32 s49, s49, s48")
    k.i("s_lshl_b32 s51, s15, 6")
    k.i("s_add_u32 s51, s51, 0x%x" % WS_X1)
    k.i("v_lshrrev_b32 v3, 2, v0")
    k.i("v_mul_u32_u24 v3, %d, v3" % SX1)
    k.i("v_and_b32 v4, 3, v0")
    k.i("v_lshl_add_u32 v3, v4, 4, v3")
    k.i("v_add_u32 v3, s51, v3")
    k.i("v_and_b32 v4, 15, v2")
    k.i("v_lshrrev_b32 v5, 4, v2")
    k.i("s_lshl_b32 s52, s3, 4")
    k.i("v_add_u32 v6, s52, v4")
    k.i("v_lshlrev_b32 v7, 2, v5")
    k.i("v_sub_u32 v9, 64, v6"); k.i("v_and_b32 v9, 63, v9")
    k.i("v_sub_u32 v8, 12, v7")
    k.i("v_cmp_eq_u32 vcc, 0, v6")
    k.i("v_addc_co_u32 v8, vcc, 0, v8, vcc")
    k.i("s_cmp_eq_u32 s50, 1")
    k.i("s_cselect_b64 vcc, -1, 0")
    k.i("v_cndmask_b32 v9, v6, v9, vcc")
    k.i("v_cndmask_b32 v8, v7, v8, vcc")
    k.i("v_mul_u32_u24 v9, %d, v9" % SW2)
    k.i("v_lshl_add_u32 v8, v8, 2, v9")
    k.i("s_lshl_b32 s53, s49, 7")
    k.i("s_add_u32 s53, s53, 0x%x" % WS_WT)
    k.i("v_add_u32 v8, s53, v8")
    k.i("s_waitcnt lgkmcnt(0)")
    stamp(k, 1)
    ws_srd(k)
    k.i("buffer_load_dwordx4 %s, v3, s[8:11], 0 offen" % v(DA, 4))
    k.i("s_mov_b32 s54, %d" % (64 * SX1))
    k.i("buffer_load_dwordx4 %s, v3, s[8:11], s54 offen" % v(DA + 4, 4))
    k.i("buffer_load_dwordx4 %s, v8, s[8:11], 0 offen" % v(WW, 4))
    k.i("buffer_load_dwordx4 %s, v8, s[8:11], 0 offen offset:64" % v(WW + 4, 4))
    k.i("s_load_dword s55, %s, s53" % sp(P_WS))
    sc2 = 2.0 / (2048 * 448); sc1 = 1.0 / (2048 * 448)
    k.i("s_mov_b32 s56, %s" % f32(sc2))
    k.i("s_cmp_eq_u32 s48, 0"); k.i("s_cselect_b32 s56, %s, s56" % f32(sc1))
    k.i("s_cmp_eq_u32 s48, 224"); k.i("s_cselect_b32 s56, %s, s56" % f32(sc1))
    k.i("s_mov_b32 s57, s56")
    k.i("s_lshl_b32 s58, s50, 31"); k.i("s_xor_b32 s58, s58, s56"); k.i("s_mov_b32 s59, s58")
    k.i("v_and_b32 v9, 7, v0")
    k.i("v_lshlrev_b32 v9, 2, v9")
    k.i("v_lshrrev_b32 v10, 3, v0")
    k.i("v_xor_b32 v10, v10, v9")
    k.i("v_lshlrev_b32 v10, 2, v10")
    k.i("v_mul_u32_u24 v9, 288, v9")
    k.i("v_add_u32 v9, v9, v10")
    k.i("v_lshrrev_b32 v10, 2, v4")
    k.i("v_xor_b32 v10, v10, v5")
    k.i("v_lshlrev_b32 v10, 4, v10")
    k.i("v_mul_u32_u24 v11, 288, v4")
    k.i("v_add_u32 v10, v10, v11")
    k.i("v_xor_b32 v11, v4, v7")
    k.i("v_lshlrev_b32 v11, 2, v11")
    k.i("v_mul_u32_u24 v12, 288, v7")
    k.i("v_add_u32 v11, v11, v12")
    k.i("s_lshl_b32 s60, s3, 6"); k.i("s_add_u32 s60, s60, %d" % EXB)
    k.i("s_xor_b32 s61, s3, 1"); k.i("s_lshl_b32 s61, s61, 6"); k.i("s_add_u32 s61, s61, %d" % (EXB + 4608))
    k.i("v_add_u32 v12, s61, v11")
    k.i("v_add_u32 v11, s60, v11")
    k.i("v_and_b32 v13, 7, v4")
    k.i("v_add_u32 v13, s52, v13")
    k.i("v_lshlrev_b32 v13, 7, v13")
    k.i("v_lshrrev_b32 v14, 3, v4")
    k.i("v_lshl_add_u32 v13, v14, 6, v13")
    k.i("v_lshl_add_u32 v13, v5, 4, v13")
    k.i("s_mul_i32 s62, s15, %d" % SZ); k.i("s_add_u32 s62, s62, 0x%x" % WS_Z)
    k.i("v_add_u32 v13, s62, v13")
    k.i("v_cvt_f32_u32 v14, v6")
    k.i("v_cvt_f32_u32 v15, v7")
    t0, t1, t2, t3 = 160, 161, 162, 163
    k.i("v_mul_f32 v%d, %s, v14" % (t3, f32(-1.0 / 64)))
    for q in range(2):
        for i in range(4):
            k.i("v_add_f32 v%d, %s, v15" % (t0, fi(16 * q + i)))
            k.i("v_mul_f32 v%d, v%d, v%d" % (t0, t0, t3))
            k.i("v_cos_f32 v%d, v%d" % (t1, t0)); k.i("v_sin_f32 v%d, v%d" % (t2, t0))
            cvtpk(k, BR + 4 * q + i, t1, t2, neg_hi=True)
            cvtpk(k, BI + 4 * q + i, t2, t1)
    k.i("v_and_b32 v%d, 1, v4" % t0)
    k.i("v_mul_u32_u24 v%d, 0x8000, v%d" % (t0, t0))
    k.i("v_lshl_or_b32 v164, v%d, 16, v%d" % (t0, t0))
    for j in range(8):
        k.i("v_xor_b32 v%d, v164, v%d" % (BR + 8 + j, BR + j))
        k.i("v_xor_b32 v%d, v164, v%d" % (BI + 8 + j, BI + j))
    k.i("v_cvt_f32_u32 v%d, v4" % t3)
    k.i("v_mul_f32 v%d, %s, v%d" % (t3, f32(-1.0 / 32), t3))
    for j in range(4):
        k.i("v_add_f32 v%d, %s, v15" % (t0, fi(j)))
        k.i("v_mul_f32 v%d, v%d, v%d" % (t0, t0, t3))
        k.i("v_cos_f32 v%d, v%d" % (t1, t0)); k.i("v_sin_f32 v%d, v%d" % (t2, t0))
        cvtpk(k, AR + j, t1, t2, neg_hi=True)
        cvtpk(k, AI + j, t2, t1)
    k.i("s_mov_b32 s63, 0x80008000")
    for X in (AR, AI):
        for j in range(4):
            k.i("v_xor_b32 v%d, v164, v%d" % (X + 4 + j, X + j))
        for Tk in range(2):
            for j in range(4):
                src = X + 4 * Tk + j
                if j & 1: k.i("v_xor_b32 v%d, s63, v%d" % (X + 8 + 4 * Tk + j, src))
                else: k.i("v_mov_b32 v%d, v%d" % (X + 8 + 4 * Tk + j, src))
    k.i("v_mul_f32 v%d, %s, v14" % (t3, f32(-1.0 / 2048)))
    for T in range(2):
        for j in range(4):
            k.i("v_add_f32 v%d, %s, v15" % (t0, fi(16 * T + j)))
            k.i("v_mul_f32 v%d, v%d, v%d" % (t0, t0, t3))
            k.i("v_cos_f32 v%d, v%d" % (TC + 4 * T + j, t0)); k.i("v_sin_f32 v%d, v%d" % (TS + 4 * T + j, t0))
    stamp(k, 2)
    stamp(k, 2)
    k.i("s_waitcnt vmcnt(2)")
    stamp(k, 3)
    for i in range(2):
        for e in range(4):
            k.i("ds_write_b32 v9, v%d offset:%d" % (DA + 4 * i + e, INB + 128 * i + 288 * e))
    k.i("s_waitcnt vmcnt(0)")
    k.i("s_cmp_eq_u32 s50, 0")
    k.i("s_cbranch_scc1 L_col_norev")
    for j in range(4): k.i("v_swap_b32 v%d, v%d" % (WW + j, WW + 7 - j))
    k.i("s_waitcnt lgkmcnt(0)")
    k.i("s_cmp_eq_u32 s3, 0")
    k.i("s_cbranch_scc0 L_col_norev")
    k.i("v_writelane_b32 v%d, s55, 0" % WW)
    k.label("L_col_norev")
    k.i("s_waitcnt lgkmcnt(0)")
    k.i("s_barrier")
    stamp(k, 4)
    blk = Block()
    class W_:
        def i(self, t): blk.i(t)
    w = W_()
    def big_stage(region):
        for T in range(2):
            for q in range(4):
                w.i("ds_read_b128 %s, v10 offset:%d" % (v(DA + 16 * T + 4 * q, 4), region + 4608 * T + 64 * (q ^ T)))
        for q in range(4):
            for T in range(2):
                a = DA + 16 * T + 4 * q
                mfma(w, ACR + 4 * T, a, BR + 4 * q, "0" if q == 0 else ACR + 4 * T)
                mfma(w, ACI + 4 * T, a, BI + 4 * q, "0" if q == 0 else ACI + 4 * T)
    def small_stage(outr, outi):
        for Tk in range(2):
            for To in range(2):
                mfma(w, outr + 4 * To, AR + 4 * (2 * To + Tk), P + 4 * Tk, "0" if Tk == 0 else outr + 4 * To)
                mfma(w, outi + 4 * To, AI + 4 * (2 * To + Tk), P + 4 * Tk, "0" if Tk == 0 else outi + 4 * To)
    tmps = [(160, 162), (164 + 0, 166)]
    WR, WI = 0, 0
    big_stage(INB)
    for T in range(2):
        twiddle4(w, ACR + 4 * T, ACI + 4 * T, TC + 4 * T, TS + 4 * T, *tmps[T])
        for j in range(4): cvtpk(w, P + 4 * T + j, ACR + 4 * T + j, ACI + 4 * T + j)
    XR, XI = DA, DA + 8
    WR, WI = DA + 16, DA + 24
    for j in range(8):
        w.i("v_lshlrev_b32 v%d, 16, v%d" % (WR + j, WW + j))
        w.i("v_and_b32 v%d, 0xffff0000, v%d" % (WI + j, WW + j))
    for j in range(0, 8, 2):
        w.i("v_pk_mul_f32 %s, %s, s[56:57]" % (v(WR + j, 2), v(WR + j, 2)))
        w.i("v_pk_mul_f32 %s, %s, s[58:59]" % (v(WI + j, 2), v(WI + j, 2)))
    small_stage(XR, XI)
    for T in range(2):
        twiddle4(w, XR + 4 * T, XI + 4 * T, WR + 4 * T, WI + 4 * T, *tmps[T])
        for j in range(4): cvtpk(w, P + 4 * T + j, XI + 4 * T + j, XR + 4 * T + j)
    small_stage(ACR, ACI)
    for T in range(2):
        twiddle4(w, ACR + 4 * T, ACI + 4 * T, TC + 4 * T, TS + 4 * T, *tmps[T])
        for j in range(4): cvtpk(w, P + 4 * T + j, ACR + 4 * T + j, ACI + 4 * T + j)
    for T in range(2):
        for j in range(4):
            w.i("ds_write_b32 v%d, v%d offset:%d" % (11 + T, P + 4 * T + j, 288 * j))
    est = blk.emit(k); k.c("col block 1 estimate %d" % est)
    k.i("s_waitcnt lgkmcnt(0)")
    k.i("s_barrier")
    stamp(k, 6)
    blk = Block()
    big_stage(EXB)
    for T in range(2):
        for j in range(4): cvtpk(w, P + 4 * T + j, ACI + 4 * T + j, ACR + 4 * T + j)
    for j in range(4):
        w.i("v_mov_b32 v%d, v%d" % (WW + j, P + j))
        w.i("v_mov_b32_dpp v%d, v%d row_ror:8 row_mask:0xf bank_mask:0xc" % (P + j, P + 4 + j))
        w.i("v_mov_b32_dpp v%d, v%d row_ror:8 row_mask:0xf bank_mask:0x3" % (P + 4 + j, WW + j))
    for T in range(2):
        w.i("buffer_store_dwordx4 %s, v13, s[8:11], 0 offen offset:%d%s" % (v(P + 4 * T, 4), 1024 * T, stf("Z", " sc1")))
    est = blk.emit(k); k.c("col block 2 estimate %d" % est)
    endpgm(k, 1)

def gen_k2(k, name):
    kernel_header(k, name)
    diag_begin(k)
    load_kernargs(k)
    if COLFIRST:
        k.i("s_cmp_lt_u32 s2, %d" % K2_NF)
        k.i("s_cbranch_scc1 L_k2_col")
        k.i("s_cmp_lt_u32 s2, %d" % K2_GRID)
        k.i("s_cbranch_scc1 L_k2_conv")
    else:
        k.i("s_cmp_lt_u32 s2, %d" % K2_NC)
        k.i("s_cbranch_scc1 L_k2_conv")
        k.i("s_cmp_lt_u32 s2, %d" % K2_GRID)
        k.i("s_cbranch_scc1 L_k2_col")
    k.i("s_endpgm")
    k.label("L_k2_conv"); role_conv(k)
    k.label("L_k2_col"); role_col(k)
```

```python
from common import *
from sched import Block

K3_GRID = 256
K3_BLOCK = 256
ZRS = 1040
ZI = 0
A1 = 8 * ZRS
K3_LDS = A1 + 28 * 272 + 1024
K3_VGPR = 104

def fi(x):
    return {0: "0", 1: "1.0", 2: "2.0", 4: "4.0"}.get(x, f32(x))

def gen_k3(k, name):
    kernel_header(k, name)
    diag_begin(k)
    load_kernargs(k)
    k.i("s_cmp_lt_u32 s2, %d" % K3_GRID)
    k.i("s_cbranch_scc1 L_k3_go")
    k.i("s_endpgm")
    k.label("L_k3_go")
    k.i("v_lshrrev_b32 v1, 6, v0")
    k.i("v_and_b32 v2, 63, v0")
    k.i("v_readfirstlane_b32 s3, v1")
    k.i("s_and_b32 s4, s2, 7"); k.i("s_lshl_b32 s4, s4, 5"); k.i("s_lshr_b32 s5, s2, 3"); k.i("s_add_u32 s4, s4, s5")
    k.i("s_lshl_b32 s4, s4, 3")
    k.i("s_lshl_b32 s12, s4, 2"); k.i("s_add_u32 s12, s12, 0x%x" % WS_Z)
    k.i("v_lshrrev_b32 v3, 1, v0"); k.i("v_mul_u32_u24 v3, %d, v3" % SZ)
    k.i("v_and_b32 v4, 1, v0"); k.i("v_lshl_add_u32 v3, v4, 4, v3")
    k.i("v_add_u32 v3, s12, v3")
    k.i("s_lshl_b32 s13, s4, 1"); k.i("s_add_u32 s13, s13, 0x%x" % WS_AT)
    k.i("v_mul_u32_u24 v5, %d, v0" % SAT)
    k.i("v_add_u32 v5, s13, v5")
    k.i("v_lshrrev_b32 v6, 5, v0")
    k.i("v_bfe_u32 v7, v0, 1, 4")
    k.i("v_mov_b32 v8, 0x7ffffff0")
    k.i("v_cmp_eq_u32 vcc, 0, v6"); k.i("v_cndmask_b32_e64 v9, 16, 9, vcc")
    k.i("v_cmp_gt_u32 vcc, v9, v7"); k.i("v_cndmask_b32 v10, v8, v3, vcc")
    k.i("v_cmp_eq_u32 vcc, 6, v6"); k.i("v_cndmask_b32_e64 v9, 16, 8, vcc")
    k.i("v_cmp_eq_u32 vcc, 7, v6"); k.i("v_cndmask_b32_e64 v9, v9, 0, vcc")
    k.i("v_add_u32 v11, %d, v3" % (128 * SZ))
    k.i("v_cmp_gt_u32 vcc, v9, v7"); k.i("v_cndmask_b32 v11, v8, v11, vcc")
    k.i("v_add_u32 v12, %d, v5" % (256 * SAT))
    k.i("v_cmp_gt_u32 vcc, 192, v0"); k.i("v_cndmask_b32 v12, v8, v12, vcc")
    k.i("s_lshl_b32 s49, s3, 1"); k.i("s_add_u32 s48, s4, s49")
    k.i("s_lshl_b32 s50, s48, 2"); k.i("s_add_u32 s50, s50, 0x%x" % WS_G)
    k.i("s_waitcnt lgkmcnt(0)")
    stamp(k, 1)
    ws_srd(k)
    k.i("s_load_dwordx2 s[60:61], %s, s50" % sp(P_WS))
    ZL, AL = 16, 24
    k.i("buffer_load_dwordx4 %s, v10, s[8:11], 0 offen" % v(ZL, 4))
    k.i("buffer_load_dwordx4 %s, v11, s[8:11], 0 offen" % v(ZL + 4, 4))
    k.i("buffer_load_dwordx4 %s, v5, s[8:11], 0 offen" % v(AL, 4))
    k.i("buffer_load_dwordx4 %s, v12, s[8:11], 0 offen" % v(AL + 4, 4))
    srd(k, 56, P_OUT, 2048 * 896)
    k.i("v_mul_u32_u24 v9, %d, v4" % (4 * ZRS))
    k.i("v_lshrrev_b32 v13, 2, v6"); k.i("v_and_b32 v13, 1, v13"); k.i("v_lshlrev_b32 v13, 3, v13")
    k.i("v_xor_b32 v13, v13, v7")
    k.i("v_lshl_add_u32 v13, v6, 4, v13")
    k.i("v_lshl_add_u32 v13, v13, 2, v9")
    k.i("v_lshrrev_b32 v14, 4, v0")
    k.i("v_add_u32 v14, v14, v0")
    k.i("v_lshlrev_b32 v14, 4, v14")
    k.i("v_add_u32 v14, %d, v14" % A1)
    k.i("v_and_b32 v15, 15, v2")
    k.i("v_lshrrev_b32 v32, 4, v2")
    k.i("v_lshrrev_b32 v33, 2, v15"); k.i("v_and_b32 v33, 1, v33"); k.i("v_lshlrev_b32 v33, 1, v33")
    k.i("v_xor_b32 v33, v33, v32")
    k.i("v_lshlrev_b32 v33, 4, v33")
    k.i("v_lshl_add_u32 v33, v15, 6, v33")
    k.i("s_mul_i32 s54, s3, %d" % (2 * ZRS))
    k.i("v_add_u32 v33, s54, v33")
    k.i("v_mul_u32_u24 v34, 272, v15")
    k.i("v_lshl_add_u32 v34, v32, 6, v34")
    k.i("s_lshl_b32 s54, s3, 2"); k.i("s_add_u32 s54, s54, %d" % A1)
    k.i("v_add_u32 v34, s54, v34")
    k.i("v_lshlrev_b32 v35, 3, v32")
    k.i("v_lshl_add_u32 v35, v15, 5, v35")
    k.i("s_mul_i32 s54, s48, 896")
    k.i("v_add_u32 v35, s54, v35")
    GR, GI, TC, TS, H0, H1 = 36, 40, 44, 48, 52, 56
    t0, t1, t2, t3 = 60, 61, 62, 63
    k.i("v_cvt_f32_u32 v64, v15")
    k.i("v_lshlrev_b32 v65, 2, v32"); k.i("v_cvt_f32_u32 v65, v65")
    k.i("v_mul_f32 v%d, %s, v64" % (t3, f32(1.0 / 16)))
    for j in range(4):
        k.i("v_add_f32 v%d, %s, v65" % (t0, fi(j))); k.i("v_mul_f32 v%d, v%d, v%d" % (t0, t0, t3))
        k.i("v_cos_f32 v%d, v%d" % (t1, t0)); k.i("v_sin_f32 v%d, v%d" % (t2, t0))
        cvtpk(k, GR + j, t1, t2, neg_hi=True); cvtpk(k, GI + j, t2, t1)
    k.i("v_mul_f32 v%d, %s, v64" % (t3, f32(1.0 / 448)))
    for j in range(4):
        k.i("v_add_f32 v%d, %s, v65" % (t0, fi(j))); k.i("v_mul_f32 v%d, v%d, v%d" % (t0, t0, t3))
        k.i("v_cos_f32 v%d, v%d" % (TC + j, t0)); k.i("v_sin_f32 v%d, v%d" % (TS + j, t0))
    for tile, H in ((0, H0), (1, H1)):
        k.i("v_add_f32 v%d, %s, v64" % (t3, fi(16 * tile)))
        k.i("v_mul_f32 v%d, %s, v%d" % (t3, f32(1.0 / 28), t3))
        for j in range(4):
            k.i("v_add_f32 v%d, %s, v65" % (t0, fi(j))); k.i("v_mul_f32 v%d, v%d, v%d" % (t0, t0, t3))
            k.i("v_cos_f32 v%d, v%d" % (t1, t0)); k.i("v_sin_f32 v%d, v%d" % (t2, t0))
            cvtpk(k, H + j, t1, t2, neg_hi=True)
    k.i("v_cmp_gt_u32 vcc, 3, v32")
    k.i("v_cndmask_b32 v%d, 0, v%d, vcc" % (H0 + 3, H0 + 3))
    k.i("v_cndmask_b32 v%d, 0, v%d, vcc" % (H1 + 3, H1 + 3))
    stamp(k, 2)
    k.i("s_waitcnt vmcnt(2) lgkmcnt(0)")
    stamp(k, 3)
    for rr in range(2):
        k.i("s_mov_b32 s%d, s%d" % (64 + 2 * rr, 60 + rr)); k.i("s_mov_b32 s%d, s%d" % (65 + 2 * rr, 60 + rr))
    for i in range(2):
        for e in range(4):
            k.i("ds_write_b32 v13, v%d offset:%d" % (ZL + 4 * i + e, ZI + 512 * i + ZRS * e))
    k.i("s_waitcnt lgkmcnt(0)")
    k.i("s_barrier")
    stamp(k, 4)
    blk = Block()
    class W_:
        def i(self, t): blk.i(t)
    w = W_()
    ZA, AV = 16, 68
    DR, DI = 96, 84
    for rr in range(2):
        w.i("ds_read_b128 %s, v33 offset:%d" % (v(ZA + 4 * rr, 4), ZI + ZRS * rr))
    for rr in range(2):
        mfma(w, DR + 4 * rr, ZA + 4 * rr, GR, "0")
        mfma(w, DI + 4 * rr, ZA + 4 * rr, GI, "0")
    for rr in range(2):
        twiddle4(w, DR + 4 * rr, DI + 4 * rr, TC, TS, 60 + 32 * rr, 62 + 32 * rr)
        for j in range(4): cvtpk(w, ZA + 4 * rr + j, DR + 4 * rr + j, DI + 4 * rr + j)
    for rr in range(2):
        mfma(w, DR + 4 * rr, ZA + 4 * rr, H0, "0")
        mfma(w, DI + 4 * rr, ZA + 4 * rr, H1, "0")
    blk.emit(k)
    k.i("s_waitcnt vmcnt(0)")
    k.i("ds_write_b128 v14, %s" % v(AL, 4))
    k.i("s_cmp_lt_u32 s3, 3")
    k.i("s_cbranch_scc0 L_k3_noa1")
    k.i("ds_write_b128 v14, %s offset:%d" % (v(AL + 4, 4), 16 * 272))
    k.label("L_k3_noa1")
    k.i("s_waitcnt lgkmcnt(0)")
    k.i("s_barrier")
    stamp(k, 5)
    blk = Block()
    for rr in range(2):
        for tile in range(2):
            for j in range(4):
                w.i("ds_read_u16 v%d, v34 offset:%d" % (AV + 8 * rr + 4 * tile + j, 16 * 272 * tile + 16 * j + 2 * rr))
    outs = []
    for rr in range(2):
        for tile in range(2):
            b = (DR if tile == 0 else DI) + 4 * rr; a = AV + 8 * rr + 4 * tile
            for j in range(4): w.i("v_lshlrev_b32 v%d, 16, v%d" % (a + j, a + j))
            w.i("v_pk_add_f32 %s, %s, %s neg_lo:[0,1] neg_hi:[0,1]" % (v(a, 2), v(a, 2), v(b, 2)))
            w.i("v_pk_add_f32 %s, %s, %s neg_lo:[0,1] neg_hi:[0,1]" % (v(a + 2, 2), v(a + 2, 2), v(b + 2, 2)))
            g = 64 + 2 * rr
            w.i("v_pk_fma_f32 %s, %s, s[%d:%d], %s" % (v(a, 2), v(a, 2), g, g + 1, v(b, 2)))
            w.i("v_pk_fma_f32 %s, %s, s[%d:%d], %s" % (v(a + 2, 2), v(a + 2, 2), g, g + 1, v(b + 2, 2)))
            o = 4 + 2 * (2 * rr + tile)
            cvtpk(w, o, a, a + 1); cvtpk(w, o + 1, a + 2, a + 3)
            if tile == 0:
                w.i("buffer_store_dwordx2 %s, v35, s[56:59], 0 offen offset:%d%s" % (v(o, 2), 896 * rr, stf("OUT", " sc1")))
            else: outs.append((o, rr))
    est = blk.emit(k); k.c("k3 estimate %d" % est)
    k.i("s_mov_b32 exec_lo, 0x0fff0fff"); k.i("s_mov_b32 exec_hi, 0x0fff0fff")
    for (o, rr) in outs:
        k.i("buffer_store_dwordx2 %s, v35, s[56:59], 0 offen offset:%d%s" % (v(o, 2), 896 * rr + 512, stf("OUT", " sc1")))
    endpgm(k, 2)
```

```python
from asmlib import *
PADB = int(__import__('os').environ.get('PADB', '256'))
SW2 = 225 * 128 + 128
SX1, SUT, SWT, SZ, SAT = 16384 + PADB, 14336 + PADB, 8192 + PADB, 8192 + PADB, 4096 + PADB
WS_X1 = 0x000000
WS_UT = 0x300000
WS_G  = 0x5F0000
WS_KR = 0x600000
KSTR  = 2048
WS_WT = 0x800000
WS_Z  = 0xB00000
WS_AT = 0xE00000
WS_SIZE = 0x1200000
LOG2E = 0x3FB8AA3B
INV2PI = "0.15915494"
P_U, P_ARE, P_AIM, P_BRE, P_BIM, P_CRE, P_CIM, P_LOGDT = 16, 18, 20, 22, 24, 26, 28, 30
P_DSKIP, P_BX, P_WR, P_WI, P_GW, P_OUT, P_DBG, P_WS = 32, 34, 36, 38, 40, 42, 44, 46
def sp(n): return s(n, 2)

def f32(x):
    import struct
    return "0x%08x" % struct.unpack("<I", struct.pack("<f", x))[0]

def load_kernargs(k):
    k.i("s_load_dwordx16 s[16:31], s[0:1], 0")
    k.i("s_load_dwordx16 s[32:47], s[0:1], 64")

def ws_srd(k, base=8, off=0, size=WS_SIZE):
    if off:
        k.i("s_add_u32 s%d, s%d, 0x%x" % (base, P_WS, off))
        k.i("s_addc_u32 s%d, s%d, 0" % (base + 1, P_WS + 1))
    else:
        k.i("s_mov_b32 s%d, s%d" % (base, P_WS))
        k.i("s_mov_b32 s%d, s%d" % (base + 1, P_WS + 1))
    k.i("s_mov_b32 s%d, 0x%x" % (base + 2, size))
    k.i("s_mov_b32 s%d, 0x20000" % (base + 3))

def srd(k, base, ptr, size):
    k.i("s_mov_b32 s%d, s%d" % (base, ptr))
    k.i("s_mov_b32 s%d, s%d" % (base + 1, ptr + 1))
    k.i("s_mov_b32 s%d, 0x%x" % (base + 2, size))
    k.i("s_mov_b32 s%d, 0x20000" % (base + 3))

def cmul(k, dst, x, y, tmp, conj_out=False):
    k.i("v_pk_mul_f32 %s, %s, %s op_sel:[0,0] op_sel_hi:[0,1]" % (v(tmp, 2), v(x, 2), v(y, 2)))
    if conj_out:
        k.i("v_pk_fma_f32 %s, %s, %s, %s op_sel:[1,1,0] op_sel_hi:[1,0,1] neg_lo:[0,1,0] neg_hi:[1,0,1]" % (v(dst, 2), v(x, 2), v(y, 2), v(tmp, 2)))
    else:
        k.i("v_pk_fma_f32 %s, %s, %s, %s op_sel:[1,1,0] op_sel_hi:[1,0,1] neg_lo:[0,1,0]" % (v(dst, 2), v(x, 2), v(y, 2), v(tmp, 2)))

def mfma(k, d, a, b, c):
    cs = v(c, 4) if isinstance(c, int) else c
    k.i("v_mfma_f32_16x16x32_bf16 %s, %s, %s, %s" % (v(d, 4), v(a, 4), v(b, 4), cs))

def cvtpk(k, d, lo, hi, neg_lo=False, neg_hi=False):
    k.i("v_cvt_pk_bf16_f32 %s, %s%s, %s%s" % (v(d), "-" if neg_lo else "", v(lo), "-" if neg_hi else "", v(hi)))

def twiddle4(k, re, im, c, sn, t0, t1):
    for h in (0, 2):
        k.i("v_pk_mul_f32 %s, %s, %s" % (v(t0, 2), v(re + h, 2), v(c + h, 2)))
        k.i("v_pk_mul_f32 %s, %s, %s" % (v(t1, 2), v(re + h, 2), v(sn + h, 2)))
        k.i("v_pk_fma_f32 %s, %s, %s, %s neg_lo:[0,1,0] neg_hi:[0,1,0]" % (v(re + h, 2), v(im + h, 2), v(sn + h, 2), v(t0, 2)))
        k.i("v_pk_fma_f32 %s, %s, %s, %s" % (v(im + h, 2), v(im + h, 2), v(c + h, 2), v(t1, 2)))

def kernel_header(k, name):
    k.raw(".globl %s" % name)
    k.raw(".p2align 8")
    k.raw(".type %s,@function" % name)
    k.raw(name + ":")

def kernel_desc(name, vgpr, sgpr=96):
    acc = (vgpr + 3) // 4 * 4
    return """.amdhsa_kernel %s
  .amdhsa_next_free_vgpr %d
  .amdhsa_next_free_sgpr %d
  .amdhsa_accum_offset %d
  .amdhsa_group_segment_fixed_size 0
  .amdhsa_kernarg_size 128
  .amdhsa_user_sgpr_count 2
  .amdhsa_user_sgpr_kernarg_segment_ptr 1
  .amdhsa_system_sgpr_workgroup_id_x 1
  .amdhsa_float_denorm_mode_32 3
.end_amdhsa_kernel
""" % (name, vgpr, sgpr, acc)

import os
DIAG = os.environ.get("DIAG") == "1"
WS_DIAG = 0x1400000
def stamp(k, i):
    if DIAG: k.i("s_memtime s[%d:%d]" % (72 + 2 * i, 73 + 2 * i))
def diag_begin(k):
    if DIAG:
        k.i("s_memrealtime s[88:89]")
        k.i("s_memtime s[72:73]")
        k.i("s_mov_b32 s95, s2")
_dn = [0]
def endpgm(k, kidx):
    if DIAG:
        k.i("s_mov_b64 exec, -1")
        k.i("s_waitcnt vmcnt(0) lgkmcnt(0)")
        k.i("s_memtime s[86:87]")
        k.i("s_memrealtime s[90:91]")
        k.i("s_load_dwordx2 s[92:93], s[0:1], 120")
        k.i("s_waitcnt lgkmcnt(0)")
        k.i("s_lshl_b32 s94, s95, 2"); k.i("s_add_u32 s94, s94, s3"); k.i("s_add_u32 s94, s94, %d" % (kidx * 2048))
        k.i("s_lshl_b32 s94, s94, 6"); k.i("s_add_u32 s94, s94, 0x%x" % WS_DIAG)
        k.i("s_add_u32 s92, s92, s94"); k.i("s_addc_u32 s93, s93, 0")
        k.i("s_mov_b64 exec, 1")
        vals = ["s88", "s90"] + ["s%d" % (72 + 2 * i) for i in range(8)]
        for n, r in enumerate(vals):
            k.i("v_mov_b32 v1, %s" % r); k.i("v_mov_b32 v0, %d" % (4 * n))
            k.i("global_store_dword v0, v1, s[92:93]")
            k.i("s_nop 1")
    k.i("s_endpgm")

def code_prefetch(k, vbase, label):
    k.i("s_getpc_b64 s[66:67]")
    k.raw(label + ":")
    k.raw("    s_sub_u32 s66, s66, (%s - code_begin)" % label)
    k.i("s_subb_u32 s67, s67, 0")
    for h in range(2):
        k.i("v_lshlrev_b32 v%d, 6, v0" % (vbase + 2 * h))
        if h: k.i("v_add_u32 v%d, 0x4000, v%d" % (vbase + 2 * h, vbase + 2 * h))
        k.raw("    v_min_u32 v%d, (code_end - code_begin - 4), v%d" % (vbase + 2 * h, vbase + 2 * h))
        k.i("v_mov_b32 v%d, s67" % (vbase + 2 * h + 1))
        k.i("v_add_co_u32 v%d, vcc, s66, v%d" % (vbase + 2 * h, vbase + 2 * h))
        k.i("v_addc_co_u32 v%d, vcc, 0, v%d, vcc" % (vbase + 2 * h + 1, vbase + 2 * h + 1))
        k.i("global_load_dword v%d, %s, off" % (vbase + 4 + h, v(vbase + 2 * h, 2)))

def stf(name, default=""):
    return os.environ.get("STF_" + name, default)

def grid_arrive(k, lab):
    k.i("s_waitcnt vmcnt(0)")
    k.i("s_barrier")
    k.i("s_cmp_eq_u32 s3, 0")
    k.i("s_cbranch_scc0 %s" % lab)
    k.i("s_mov_b64 exec, 1")
    k.i("v_mov_b32 v1, 0"); k.i("v_mov_b32 v2, 1")
    k.i("global_atomic_add v1, v2, %s" % sp(P_DBG))
    k.i("s_mov_b64 exec, -1")
    k.label(lab)

def grid_arrive_and_wait(k, target):
    grid_arrive(k, "L_arr_w")
    k.i("s_cmp_eq_u32 s3, 0")
    k.i("s_cbranch_scc0 L_poll_done")
    k.i("s_mov_b32 s70, 0")
    k.i("v_mov_b32 v1, 0")
    k.label("L_poll", loop=True)
    k.i("global_load_dword v2, v1, %s sc1" % sp(P_DBG))
    k.i("s_waitcnt vmcnt(0)")
    k.i("v_readfirstlane_b32 s71, v2")
    k.i("s_add_u32 s70, s70, 1")
    k.i("s_cmp_ge_u32 s71, %d" % target)
    k.i("s_cbranch_scc1 L_poll_done")
    k.i("s_sleep %d" % int(os.environ.get("POLL_SLEEP", "1")))
    k.i("s_cmp_lt_u32 s70, 0x40000")
    k.i("s_cbranch_scc1 L_poll")
    k.label("L_poll_done")
    k.i("s_barrier")
```

```python
from common import *
from sched import Block

import os
PREFETCH = int(os.environ.get('PREFETCH', '16'))
K1_NK, K1_NR, K1_NW = 224, 128, 128
K1_GRID = K1_NK + K1_NR + K1_NW
ORDER = os.environ.get("K1_ORDER", "krw")
_sz = {"k": K1_NK, "r": K1_NR, "w": K1_NW}
OFF = {}
_o = 0
for _c in ORDER:
    OFF[_c] = _o; _o += _sz[_c]
K1_LDS = 4 * 13568
TROW = 256
WVB = 53 * TROW
CHB = 2 * WVB
T2OFF = 2048

def role_kgen(k):
    W, CH, WP, D = 3, 12, 13, 14
    if OFF["k"]: k.i("s_sub_u32 s2, s2, %d" % OFF["k"])
    k.i("v_lshrrev_b32 v1, 6, v0")
    k.i("v_and_b32 v2, 63, v0")
    k.i("v_readfirstlane_b32 s3, v1")
    k.i("s_lshl_b32 s15, s2, 2")
    k.i("s_lshr_b32 s12, s3, 1")
    k.i("s_and_b32 s13, s3, 1")
    k.i("s_lshl_b32 s14, s2, 1")
    k.i("s_add_u32 s14, s14, s12")
    k.i("s_lshl_b32 s48, s14, 9")
    k.i("s_lshl_b32 s49, s13, 8")
    k.i("s_add_u32 s48, s48, s49")
    k.i("v_lshl_add_u32 v1, v2, 2, s48")
    k.i("s_waitcnt lgkmcnt(0)")
    stamp(k, 1)
    k.i("s_load_dword s50, %s, s15" % sp(P_LOGDT))
    for j, p in enumerate((P_ARE, P_AIM, P_BRE, P_BIM, P_CRE, P_CIM)):
        k.i("global_load_dword v%d, v1, %s" % (4 + j, sp(p)))
    ws_srd(k)
    k.i("s_mul_i32 s51, s12, %d" % CHB)
    k.i("s_mul_i32 s52, s3, %d" % WVB)
    k.i("s_add_u32 s51, s51, %d" % T2OFF)
    k.i("v_lshrrev_b32 v10, 2, v2")
    k.i("v_and_b32 v11, 3, v2")
    k.i("v_lshl_add_u32 v11, v11, 2, s52")
    for c in range(16):
        k.i("v_xor_b32 v12, %d, v10" % c)
        k.i("v_lshl_add_u32 v%d, v12, 4, v11" % (104 + c))
    k.i("v_and_b32 v10, 15, v2")
    k.i("v_lshrrev_b32 v11, 4, v2")
    k.i("v_lshl_add_u32 v13, v10, 8, s52")
    for q in range(4):
        k.i("v_or_b32 v12, %d, v11" % (4 * q))
        k.i("v_xor_b32 v12, v12, v10")
        k.i("v_lshl_add_u32 v%d, v12, 4, v13" % (100 + q))
    k.i("v_lshl_add_u32 v72, v2, 4, s52")
    k.i("s_xor_b32 s53, s3, 1"); k.i("s_mul_i32 s53, s53, %d" % WVB)
    k.i("v_lshl_add_u32 v73, v2, 4, s53")
    k.i("s_lshl_b32 s54, s13, 4")
    k.i("v_add_u32 v13, s54, v10")
    k.i("v_and_b32 v87, 3, v13")
    k.i("v_lshrrev_b32 v14, 2, v13")
    k.i("v_lshlrev_b32 v13, 5, v13")
    k.i("v_lshl_add_u32 v13, v14, 2, v13")
    k.i("v_add_u32 v13, s51, v13")
    k.i("v_max_u32 v14, 1, v11")
    k.i("v_lshlrev_b32_e64 v15, v14, 2")
    k.i("v_lshlrev_b32 v16, 4, v11")
    k.i("v_subrev_u32 v17, 1, v11")
    k.i("v_mul_u32_u24 v17, 1056, v17")
    k.i("v_cmp_gt_u32 vcc, 2, v11")
    k.i("v_cndmask_b32 v16, v17, v16, vcc")
    k.i("v_add_u32 v74, v13, v16")
    k.i("v_add_u32 v75, v74, v15")
    k.i("v_lshlrev_b32 v17, 1, v15")
    k.i("v_mov_b32 v18, 1056")
    k.i("v_cmp_eq_u32 vcc, 3, v11")
    k.i("v_cndmask_b32 v17, v17, v18, vcc")
    k.i("v_add_u32 v76, v74, v17")
    k.i("v_add_u32 v77, v76, v15")
    k.i("v_mul_u32_u24 v17, 4224, v11")
    k.i("v_add_u32 v78, v13, v17")
    k.i("v_cmp_eq_u32 vcc, 0, v87")
    k.i("v_cndmask_b32_e64 v87, 4, 8, vcc")
    k.i("v_sub_u32 v87, v74, v87")
    k.i("s_lshl_b32 s57, s13, 6")
    k.i("v_add_u32 v88, s57, v2")
    k.i("v_sub_u32 v89, 69, v88")
    k.i("v_lshlrev_b32 v89, 3, v89")
    k.i("v_mov_b32 v90, 1")
    k.i("v_mov_b32 v16, 2059")
    k.i("v_mov_b32 v17, 2056")
    k.i("v_cmp_eq_u32 vcc, 5, v88")
    k.i("v_cndmask_b32 v89, v89, v17, vcc")
    k.i("v_subrev_u32 v14, 74, v88")
    k.i("v_mul_u32_u24 v15, 43, v14")
    k.i("v_lshrrev_b32 v15, 8, v15")
    k.i("v_mul_u32_u24 v17, 6, v15")
    k.i("v_sub_u32 v17, v14, v17")
    k.i("v_lshlrev_b32 v18, 7, v17")
    k.i("v_sub_u32 v18, %d, v18" % (16 * 72 + 4))
    k.i("v_lshl_add_u32 v18, v15, 2, v18")
    k.i("v_cmp_le_u32 vcc, 74, v88")
    k.i("v_cndmask_b32 v89, v89, v18, vcc")
    k.i("v_mov_b32 v19, 16")
    k.i("v_cndmask_b32 v90, v90, v19, vcc")
    k.i("v_cmp_gt_u32 s[60:61], 2, v17")
    k.i("s_and_b64 s[60:61], s[60:61], vcc")
    k.i("v_subrev_u32 v14, 100, v88")
    k.i("v_cmp_le_u32 vcc, 110, v88")
    k.i("v_cndmask_b32_e64 v15, 0, 1, vcc")
    k.i("v_mul_u32_u24 v17, 10, v15")
    k.i("v_sub_u32 v17, v14, v17")
    k.i("v_lshlrev_b32 v18, 7, v17")
    k.i("v_sub_u32 v18, %d, v18" % (16 * 120 + 8))
    k.i("v_lshl_add_u32 v18, v15, 3, v18")
    k.i("v_cmp_le_u32 vcc, 100, v88")
    k.i("v_cndmask_b32 v89, v89, v18, vcc")
    k.i("s_andn2_b64 s[60:61], s[60:61], vcc")
    k.i("v_cmp_le_u32 s[62:63], 8, v17")
    k.i("s_and_b64 s[62:63], s[62:63], vcc")
    k.i("s_or_b64 s[60:61], s[60:61], s[62:63]")
    k.i("v_cmp_gt_u32 vcc, 5, v88"); k.i("s_or_b64 s[60:61], s[60:61], vcc")
    k.i("v_subrev_u32 v14, 70, v88"); k.i("v_cmp_gt_u32 vcc, 4, v14"); k.i("s_or_b64 s[60:61], s[60:61], vcc")
    k.i("v_subrev_u32 v14, 98, v88"); k.i("v_cmp_gt_u32 vcc, 2, v14"); k.i("s_or_b64 s[60:61], s[60:61], vcc")
    k.i("v_cmp_le_u32 vcc, 120, v88"); k.i("s_or_b64 s[60:61], s[60:61], vcc")
    k.i("v_cndmask_b32 v89, v89, v16, s[60:61]")
    k.i("v_cndmask_b32_e64 v90, v90, 0, s[60:61]")
    for i in range(8):
        k.i("v_mad_u32_u24 v14, v90, %d, v89" % (7 - i))
        k.i("v_lshrrev_b32 v15, 5, v14")
        k.i("v_add_u32 v14, v14, v15")
        k.i("v_lshl_add_u32 v%d, v14, 2, s51" % (92 + i))
    k.i("s_waitcnt lgkmcnt(0)")
    k.i("s_lshl_b32 s55, s12, 4")
    k.i("s_lshr_b32 s50, s50, s55")
    k.i("s_lshl_b32 s50, s50, 16")
    k.i("v_mov_b32 v86, s50")
    k.i("v_mul_f32 v86, 0x%x, v86" % LOG2E)
    k.i("v_exp_f32 v86, v86")
    k.i("v_cvt_pk_bf16_f32 v86, v86, v86")
    k.i("v_and_b32 v86, 0xffff0000, v86")
    k.i("s_waitcnt vmcnt(0)")
    stamp(k, 2)
    blk = Block()
    class W:
        def i(self, t): blk.i(t)
    w = W()
    ACC = {(0, 0): 40, (1, 0): 44, (0, 1): 120, (1, 1): 124}
    for rnd in range(2):
        z1, z2, z3, z4, z6, Z, cur, tmp = 12, 14, 16, 18, 20, 22, 24, 26
        b0, b1, wc, w16, tb0, tb1, Zp, cur2, tmp2 = 28, 30, 32, 48, 50, 52, 54, 56, 58
        U = 80 if rnd == 0 else 4
        for j in range(6):
            if rnd == 0: w.i("v_lshlrev_b32 v%d, 16, v%d" % (80 + j, 4 + j))
            else: w.i("v_and_b32 v%d, 0xffff0000, v%d" % (4 + j, 4 + j))
        are, aim, bre, bim, cre, cim = U, U + 1, U + 2, U + 3, U + 4, U + 5
        la, ph = (10, 11) if rnd == 0 else (34, 35)
        w.i("v_mul_f32 v%d, v86, v%d" % (la, are))
        w.i("v_mul_f32 v%d, v86, v%d" % (ph, aim))
        w.i("v_mul_f32 v%d, 0x%x, v%d" % (la, LOG2E, la))
        w.i("v_mul_f32 v%d, %s, v%d" % (ph, INV2PI, ph))
        w.i("v_mul_f32 v%d, v86, v%d" % (bre, bre))
        w.i("v_mul_f32 v%d, v86, v%d" % (bim, bim))
        cmul(w, b0, cre, bre, tb0, conj_out=True)
        def direct(dst, mult, conj, t):
            if mult == 1:
                w.i("v_exp_f32 v%d, v%d" % (t, la)); w.i("v_fract_f32 v%d, v%d" % (t + 1, ph))
            else:
                w.i("v_mul_f32 v%d, %s, v%d" % (t, f32(mult), la))
                w.i("v_mul_f32 v%d, %s, v%d" % (t + 1, f32(-mult if conj else mult), ph))
                w.i("v_exp_f32 v%d, v%d" % (t, t)); w.i("v_fract_f32 v%d, v%d" % (t + 1, t + 1))
            w.i("v_cos_f32 v%d, v%d" % (dst, t + 1))
            w.i("v_sin_f32 v%d, v%d" % (dst + 1, t + 1))
            w.i("v_pk_mul_f32 %s, %s, %s op_sel_hi:[1,0]" % (v(dst, 2), v(dst, 2), v(t, 2)))
        direct(wc, 8, True, 60)
        direct(w16, 128, True, 62)
        direct(z1, 1, False, 64)
        direct(Z, 256, False, 60)
        tcount = [0]
        def tmpreg():
            t = 66 + 2 * (tcount[0] % 3); tcount[0] += 1
            return t
        def put(row, cls, reg):
            t = tmpreg(); cvtpk(w, t, reg, reg + 1)
            w.i("ds_write_b32 v%d, v%d offset:%d" % (104 + cls, t, row * TROW))
        def put2(rowa, rega, rowb, regb, cls):
            t = tmpreg()
            if rega is None: w.i("v_mov_b32 v%d, 0x3f80" % t)
            else: cvtpk(w, t, rega, rega + 1)
            cvtpk(w, t + 1, regb, regb + 1)
            w.i("ds_write2st64_b32 v%d, v%d, v%d offset0:%d offset1:%d" % (104 + cls, t, t + 1, rowa, rowb))
        cmul(w, b1, b0, w16, tb1)
        A = []
        A.append(lambda: (cmul(w, z2, z1, z1, tmp), cmul(w, Zp, Z, Z, tmp2), put(8, 8, Z), put(12, 12, Zp)))
        A.append(lambda: (cmul(w, z4, z2, z2, tmp), cmul(w, cur2, Zp, Zp, tmp2), put2(0, None, 16, cur2, 0)))
        A.append(lambda: (cmul(w, cur, Zp, z4, tmp), put(13, 13, cur)))
        A.append(lambda: (cmul(w, Zp, Zp, Z, tmp2), put(14, 14, Zp)))
        A.append(lambda: (cmul(w, cur2, cur2, Z, tmp2), put2(1, z1, 17, cur2, 1)))
        A.append(lambda: (cmul(w, cur, Zp, z4, tmp), put(15, 15, cur)))
        A.append(lambda: (cmul(w, cur2, cur2, Z, tmp2), put2(2, z2, 18, cur2, 2)))
        A.append(lambda: (cmul(w, z3, z2, z1, tmp), cmul(w, cur2, cur2, Z, tmp2), put2(3, z3, 19, cur2, 3)))
        A.append(lambda: (cmul(w, cur2, cur2, Z, tmp2), put2(4, z4, 20, cur2, 4)))
        A.append(lambda: (cmul(w, cur, z4, z1, tmp), put(5, 5, cur)))
        A.append(lambda: (cmul(w, z6, z4, z2, tmp), put(6, 6, z6)))
        A.append(lambda: (cmul(w, cur, z4, z3, tmp), put(7, 7, cur)))
        A.append(lambda: (cmul(w, cur, Z, z2, tmp), put(9, 9, cur)))
        A.append(lambda: (cmul(w, cur, Z, z4, tmp), put(10, 10, cur)))
        A.append(lambda: (cmul(w, cur, Z, z6, tmp), put(11, 11, cur)))
        ai = 0
        for c in range(16):
            put2(21 + c, b0, 37 + c, b1, c)
            if c < 15:
                cmul(w, b0, b0, wc, tb0); cmul(w, b1, b1, wc, tb1)
            if ai < len(A): A[ai](); ai += 1
        assert ai == len(A)
        for q in range(4):
            f = (12, 48)[q & 1]
            for n, off in enumerate((0, 16, 21, 37)):
                w.i("ds_read_b128 %s, v%d offset:%d" % (v(f + 4 * n, 4), 100 + q, off * TROW))
            for M in range(2):
                for N in range(2):
                    a_ = ACC[(M, N)]
                    w.i("v_mfma_f32_16x16x32_bf16 %s, %s, %s, %s" % (v(a_, 4), v(f + 4 * M, 4), v(f + 8 + 4 * N, 4), "0" if (rnd == 0 and q == 0) else v(a_, 4)))
    est = blk.emit(k); k.c("kgen estimate %d" % est)
    stamp(k, 5)
    k.i("s_cmp_eq_u32 s13, 0")
    k.i("s_cbranch_scc1 L_kg_keep0")
    for j in range(4):
        k.i("v_swap_b32 v%d, v%d" % (40 + j, 120 + j)); k.i("v_swap_b32 v%d, v%d" % (44 + j, 124 + j))
    k.label("L_kg_keep0")
    k.i("ds_write_b128 v72, v[120:123]")
    k.i("ds_write_b128 v72, v[124:127] offset:1024")
    k.i("s_waitcnt lgkmcnt(0)")
    k.i("s_barrier")
    k.i("ds_read_b128 v[120:123], v73")
    k.i("ds_read_b128 v[124:127], v73 offset:1024")
    k.i("s_waitcnt lgkmcnt(1)")
    for j in range(0, 4, 2): k.i("v_pk_add_f32 %s, %s, %s" % (v(40 + j, 2), v(40 + j, 2), v(120 + j, 2)))
    k.i("s_waitcnt lgkmcnt(0)")
    for j in range(0, 4, 2): k.i("v_pk_add_f32 %s, %s, %s" % (v(44 + j, 2), v(44 + j, 2), v(124 + j, 2)))
    for j in range(4): k.i("ds_write_b32 v%d, v%d" % (74 + j, 40 + j))
    k.i("s_mov_b32 exec_hi, 0")
    k.i("ds_write_b32 v78, v44 offset:%d" % (1056 * 4))
    k.i("s_mov_b32 exec_lo, 0xffff")
    for j in range(1, 4): k.i("ds_write_b32 v78, v%d offset:%d" % (44 + j, 1056 * (4 + j)))
    k.i("s_mov_b32 exec_lo, 0"); k.i("s_mov_b32 exec_hi, 0xffff")
    k.i("ds_write_b32 v74, v40 offset:4")
    k.i("v_subrev_u32 v14, 4, v76")
    k.i("ds_write_b32 v76, v42 offset:4")
    k.i("ds_write_b32 v14, v42")
    k.i("s_cmp_eq_u32 s13, 0")
    k.i("s_cselect_b32 exec_hi, 0xfffe, exec_hi")
    k.i("ds_write_b32 v87, v40")
    k.i("s_mov_b64 exec, -1")
    k.i("v_mov_b32 v14, s51")
    k.i("v_mov_b32 v15, 0")
    k.i("s_cmp_eq_u32 s13, 0")
    k.i("s_cbranch_scc0 L_kg_nox")
    k.i("s_mov_b32 exec_lo, 0"); k.i("s_mov_b32 exec_hi, 0x10000")
    a511 = 4 * (511 + (511 >> 5)); ax = 4 * (2056 + (2056 >> 5))
    k.i("ds_write_b32 v14, v40 offset:%d" % a511)
    for e in range(3): k.i("ds_write_b32 v14, v40 offset:%d" % (ax + 4 * e))
    for e in range(3, 8): k.i("ds_write_b32 v14, v15 offset:%d" % (ax + 4 * e))
    k.i("s_mov_b64 exec, -1")
    k.label("L_kg_nox")
    k.i("s_mul_i32 s58, s14, %d" % KSTR)
    k.i("s_add_u32 s58, s58, 0x%x" % WS_KR)
    k.i("v_lshl_add_u32 v19, v88, 4, s58")
    k.i("v_cmp_gt_u32 vcc, 120, v88")
    k.i("s_waitcnt lgkmcnt(0)")
    k.i("s_barrier")
    stamp(k, 6)
    for i in range(8): k.i("ds_read_b32 v%d, v%d" % (24 + i, 92 + i))
    k.i("s_and_b64 exec, exec, vcc")
    for p in range(4):
        k.i("s_waitcnt lgkmcnt(%d)" % (6 - 2 * p))
        cvtpk(k, 56 + p, 24 + 2 * p, 25 + 2 * p)
    k.i("buffer_store_dwordx4 v[56:59], v19, s[8:11], 0 offen" + stf("KR", " sc1"))
    stamp(k, 4)
    endpgm(k, 0)

XROW = 928
GWB = 16 * XROW
XTB = GWB + 4 * 896
STF = os.environ.get('STF', ' sc1')

def sincos_neg(k, c, sn, ph):
    k.i("v_cos_f32 v%d, v%d" % (c, ph))
    k.i("v_sin_f32 v%d, v%d" % (sn, ph))

def role_row(k):
    if int(os.environ.get("PRIO_ROW", "0")): k.i("s_setprio %s" % os.environ["PRIO_ROW"])
    k.i("v_lshrrev_b32 v1, 6, v0")
    k.i("v_and_b32 v2, 63, v0")
    k.i("v_readfirstlane_b32 s3, v1")
    k.i("s_sub_u32 s12, s2, %d" % OFF["r"])
    k.i("s_lshl_b32 s12, s12, 4")
    k.i("s_lshl_b32 s13, s3, 2")
    k.i("s_add_u32 s14, s12, s13")
    k.i("s_mul_i32 s15, s14, 896")
    k.i("v_lshl_add_u32 v3, v2, 4, s15")
    k.i("v_lshlrev_b32 v4, 4, v2")
    k.i("s_waitcnt lgkmcnt(0)")
    stamp(k, 1)
    k.i("s_mov_b32 exec_hi, 0x00ffffff")
    for r in range(4):
        k.i("global_load_dwordx4 %s, v3, %s offset:%d" % (v(8 + 4 * r, 4), sp(P_U), 896 * r))
    k.i("global_load_dwordx4 v[24:27], v4, %s" % sp(P_GW))
    k.i("s_mov_b64 exec, -1")
    ws_srd(k)
    k.i("v_and_b32 v5, 15, v2")
    k.i("v_lshrrev_b32 v6, 4, v2")
    k.i("v_cvt_f32_u32 v28, v5")
    k.i("v_lshlrev_b32 v7, 2, v6")
    k.i("v_cvt_f32_u32 v29, v7")
    F28R, F28I = 32, 36
    k.i("v_mul_f32 v30, %s, v28" % f32(-1.0 / 28))
    for i in range(8):
        d = i if i < 4 else 16 + (i - 4)
        k.i("v_add_f32 v31, %s, v29" % (("%d.0" % d) if d in (1, 2, 4) else ("0" if d == 0 else f32(d))))
        k.i("v_mul_f32 v31, v31, v30")
        sincos_neg(k, 40 + i, 48 + i, 31)
    for i in range(4):
        cvtpk(k, F28R + i, 40 + 2 * i, 40 + 2 * i + 1)
        cvtpk(k, F28I + i, 48 + 2 * i, 48 + 2 * i + 1)
    k.i("v_cmp_gt_u32 vcc, 3, v6")
    for r in (F28R + 2, F28R + 3, F28I + 2, F28I + 3):
        k.i("v_cndmask_b32 v%d, 0, v%d, vcc" % (r, r))
    TC, TS = 40, 44
    k.i("v_mul_f32 v30, %s, v28" % f32(-1.0 / 448))
    for j in range(4):
        k.i("v_add_f32 v31, %s, v29" % (("%d.0" % j) if j in (1, 2) else ("0" if j == 0 else f32(j))))
        k.i("v_mul_f32 v31, v31, v30")
        sincos_neg(k, TC + j, TS + j, 31)
    F16R, F16I = 48, 52
    k.i("v_mul_f32 v30, %s, v28" % f32(-1.0 / 16))
    for j in range(4):
        k.i("v_add_f32 v31, %s, v29" % (("%d.0" % j) if j in (1, 2) else ("0" if j == 0 else f32(j))))
        k.i("v_mul_f32 v31, v31, v30")
        sincos_neg(k, 56, 57, 31)
        cvtpk(k, F16R + j, 56, 57, neg_hi=True)
        cvtpk(k, F16I + j, 57, 56)
    k.i("s_mul_i32 s48, s13, %d" % XROW)
    k.i("v_add_u32 v56, s48, v4")
    k.i("s_mul_i32 s49, s3, 896")
    k.i("s_add_u32 s49, s49, %d" % GWB)
    k.i("v_add_u32 v57, s49, v4")
    k.i("v_lshlrev_b32 v58, 3, v2")
    k.i("v_add_u32 v58, s48, v58")
    k.i("v_cmp_le_u32 vcc, 48, v2")
    k.i("v_cndmask_b32 v59, 0, -128, vcc" if False else "v_mov_b32 v59, 512")
    k.i("v_mov_b32 v60, 384")
    k.i("v_cndmask_b32 v59, v59, v60, vcc")
    k.i("v_add_u32 v59, v58, v59")
    k.i("v_and_b32 v60, 3, v2")
    k.i("v_mul_u32_u24 v60, %d, v60" % XROW)
    k.i("v_lshl_add_u32 v60, v6, 4, v60")
    k.i("v_add_u32 v60, s48, v60")
    k.i("v_lshlrev_b32 v61, 4, v6")
    k.i("v_add_u32 v61, s49, v61")
    k.i("v_mul_u32_u24 v62, 1040, v5")
    k.i("v_lshl_add_u32 v62, v6, 8, v62")
    k.i("s_lshl_b32 s51, s3, 4")
    k.i("s_add_u32 s51, s51, %d" % XTB)
    k.i("v_add_u32 v62, s51, v62")
    k.i("s_mul_i32 s51, s3, 1040"); k.i("s_add_u32 s51, s51, %d" % XTB)
    k.i("v_add_u32 v65, s51, v4")
    k.i("s_lshr_b32 s50, s12, 4"); k.i("s_mul_i32 s50, s50, %d" % SX1)
    k.i("s_lshl_b32 s51, s3, 10")
    k.i("s_add_u32 s50, s50, s51")
    k.i("s_add_u32 s50, s50, 0x%x" % WS_X1)
    k.i("v_add_u32 v66, s50, v4")
    k.i("v_lshrrev_b32 v63, 2, v5")
    k.i("v_add_u32 v63, v7, v63")
    k.i("v_mul_u32_u24 v63, %d, v63" % XROW)
    k.i("v_and_b32 v64, 3, v2")
    k.i("v_lshl_add_u32 v63, v64, 3, v63")
    k.i("s_lshl_b32 s51, s3, 5")
    k.i("v_add_u32 v63, s51, v63")
    k.i("s_lshl_b32 s51, s3, 4")
    k.i("v_add_u32 v64, s51, v5")
    k.i("v_lshlrev_b32 v64, 5, v64")
    k.i("v_lshl_add_u32 v64, v6, 3, v64")
    k.i("s_lshr_b32 s51, s12, 4"); k.i("s_mul_i32 s51, s51, %d" % SUT)
    k.i("s_add_u32 s51, s51, 0x%x" % WS_UT)
    k.i("v_add_u32 v64, s51, v64")
    stamp(k, 2)
    k.i("s_waitcnt vmcnt(0)")
    stamp(k, 3)
    k.i("s_mov_b32 exec_hi, 0x00ffffff")
    for r in range(4):
        k.i("ds_write_b128 v56, %s offset:%d" % (v(8 + 4 * r, 4), XROW * r))
    k.i("ds_write_b128 v57, v[24:27]")
    k.i("s_mov_b64 exec, -1")
    XA = 8
    for r in range(4):
        k.i("ds_read_b64_tr_b16 %s, v58 offset:%d" % (v(XA + 4 * r, 2), XROW * r))
        k.i("ds_read_b64_tr_b16 %s, v59 offset:%d" % (v(XA + 4 * r + 2, 2), XROW * r))
    k.i("s_waitcnt lgkmcnt(0)")
    k.i("s_barrier")
    stamp(k, 4)
    DR, DI = 68, 84
    blk = Block()
    class W:
        def i(self, t): blk.i(t)
    w = W()
    for it in range(7):
        w.i("ds_read_b64_tr_b16 %s, v63 offset:%d" % (v(100 + 2 * it, 2), 128 * it))
    for r in range(4):
        mfma(w, DR + 4 * r, XA + 4 * r, F28R, "0")
        mfma(w, DI + 4 * r, XA + 4 * r, F28I, "0")
    for it in range(7):
        w.i("s_mov_b32 s%d, %d" % (56 + it, 2048 * it))
        w.i("buffer_store_dwordx2 %s, v64, s[8:11], s%d offen%s" % (v(100 + 2 * it, 2), 56 + it, stf("UT", " sc1")))
    P = 8; O = 8
    for r in range(4):
        twiddle4(w, DR + 4 * r, DI + 4 * r, TC, TS, 28 + 92 * (r & 1), 30 + 92 * (r & 1))
        for j in range(4): cvtpk(w, P + 4 * r + j, DR + 4 * r + j, DI + 4 * r + j)
    for r in range(4):
        mfma(w, DR + 4 * r, F16R, P + 4 * r, "0")
        mfma(w, DI + 4 * r, F16I, P + 4 * r, "0")
    for r in range(4):
        for j in range(4): cvtpk(w, O + 4 * j + r, DR + 4 * r + j, DI + 4 * r + j)
    for j in range(4):
        w.i("ds_write_b128 v62, %s offset:%d" % (v(O + 4 * j, 4), 64 * j))
    est = blk.emit(k); k.c("row main estimate %d" % est)
    k.i("s_waitcnt lgkmcnt(0)")
    k.i("s_barrier")
    stamp(k, 5)
    for i in range(4):
        if i == 3:
            k.i("s_cmp_eq_u32 s3, 3"); k.i("s_cbranch_scc1 L_row_no15")
        k.i("ds_read_b128 %s, v65 offset:%d" % (v(8 + 4 * i, 4), 4160 * i))
    k.label("L_row_no15")
    blk = Block(); GA = 116
    k.i("s_mov_b32 s52, 4096"); k.i("s_mov_b32 s53, 8192"); k.i("s_mov_b32 s54, 12288")
    k.i("s_waitcnt lgkmcnt(0)")
    for i in range(4):
        if i == 3:
            k.i("s_cmp_eq_u32 s3, 3"); k.i("s_cbranch_scc1 L_row_no15s")
        k.i("buffer_store_dwordx4 %s, v66, s[8:11], %s offen%s" % (v(8 + 4 * i, 4), "0" if i == 0 else "s%d" % (51 + i), stf("X1", " sc1")))
    k.label("L_row_no15s")
    stamp(k, 6)
    for q in range(14):
        a_, b_ = 68 + 8 * (q % 4), 72 + 8 * (q % 4)
        blk.i("ds_read_b128 %s, v60 offset:%d" % (v(a_, 4), 64 * q))
        blk.i("ds_read_b128 %s, v61 offset:%d" % (v(b_, 4), 64 * q))
        blk.i("v_mfma_f32_16x16x32_bf16 %s, %s, %s, %s" % (v(GA, 4), v(a_, 4), v(b_, 4), "0" if q == 0 else v(GA, 4)))
    blk.emit(k)
    for j in range(4):
        k.i("v_mul_f32 v%d, %s, v%d" % (GA + j, f32(-1.4426950408889634), GA + j))
    for j in range(4): k.i("v_exp_f32 v%d, v%d" % (GA + j, GA + j))
    for j in range(4): k.i("v_add_f32 v%d, 1.0, v%d" % (GA + j, GA + j))
    for j in range(4): k.i("v_rcp_f32 v%d, v%d" % (GA + j, GA + j))
    k.i("s_lshl_b32 s50, s14, 2")
    k.i("s_add_u32 s50, s50, 0x%x" % WS_G)
    k.i("v_mov_b32 v28, s50")
    k.i("s_mov_b32 exec_hi, 0")
    k.i("s_mov_b32 exec_lo, 1")
    k.i("buffer_store_dwordx4 %s, v28, s[8:11], 0 offen" % v(GA, 4))
    endpgm(k, 0)

WROW = 288
WARR = 32 * WROW

def role_w(k):
    if int(os.environ.get("PRIO_W", "0")): k.i("s_setprio %s" % os.environ["PRIO_W"])
    k.i("v_lshrrev_b32 v1, 6, v0")
    k.i("v_and_b32 v2, 63, v0")
    k.i("v_readfirstlane_b32 s3, v1")
    k.i("s_sub_u32 s14, s2, %d" % OFF["w"])
    k.i("s_lshr_b32 s12, s14, 1")
    k.i("s_and_b32 s14, s14, 1")
    k.i("s_and_b32 s13, s12, 1")
    k.i("v_lshrrev_b32 v3, 4, v2")
    k.i("s_lshl_b32 s15, s3, 3")
    k.i("v_add_u32 v3, s15, v3")
    k.i("v_and_b32 v4, 15, v2")
    k.i("v_lshlrev_b32 v4, 4, v4")
    k.i("v_lshl_add_u32 v5, v3, 6, s12")
    k.i("v_mul_u32_u24 v5, 450, v5")
    k.i("s_mul_i32 s15, s14, 240"); k.i("s_lshl_b32 s48, s13, 1"); k.i("s_sub_u32 s15, s15, s48")
    k.i("v_add_u32 v5, s15, v5")
    k.i("v_add_u32 v5, v5, v4")
    k.i("v_mul_u32_u24 v6, %d, v3" % WROW)
    k.i("v_add_u32 v6, v6, v4")
    k.i("s_lshr_b32 s48, s3, 1"); k.i("s_lshl_b32 s48, s48, 4")
    k.i("v_add_u32 v6, s48, v6")
    k.i("s_mov_b32 s48, %d" % (4 * 64 * 450))
    k.i("s_waitcnt lgkmcnt(0)")
    stamp(k, 1)
    srd(k, 52, P_WR, 921600)
    srd(k, 56, P_WI, 921600)
    for i in range(2):
        so = "0" if i == 0 else "s48"
        k.i("buffer_load_dwordx4 %s, v5, s[52:55], %s offen" % (v(8 + 4 * i, 4), so))
        k.i("buffer_load_dwordx4 %s, v5, s[56:59], %s offen" % (v(16 + 4 * i, 4), so))
    ws_srd(k, 8, WS_WT, 64 * SW2)
    k.i("s_mov_b32 s67, 224")
    k.i("v_lshrrev_b32 v41, 4, v2")
    k.i("v_bfe_u32 v42, v2, 2, 2")
    k.i("v_lshl_add_u32 v42, v41, 2, v42")
    k.i("v_bfe_u32 v43, v2, 1, 1")
    k.i("v_lshl_add_u32 v42, v43, 4, v42")
    k.i("v_mul_u32_u24 v42, %d, v42" % WROW)
    k.i("v_lshl_add_u32 v42, v43, 4, v42")
    k.i("v_and_b32 v43, 1, v2")
    k.i("v_lshl_add_u32 v42, v43, 3, v42")
    k.i("s_lshl_b32 s63, s3, 4")
    k.i("v_add_u32 v42, s63, v42")
    k.i("v_and_b32 v40, 15, v2")
    k.i("s_mul_i32 s63, s14, 120"); k.i("s_lshl_b32 s62, s3, 3"); k.i("s_add_u32 s63, s63, s62"); k.i("s_sub_u32 s63, s63, s13")
    k.i("v_and_b32 v43, 7, v40")
    k.i("v_add_u32 v43, s63, v43")
    k.i("s_mul_i32 s63, s12, %d" % SW2)
    k.i("v_lshl_add_u32 v45, v41, 4, s63")
    k.i("v_lshrrev_b32 v46, 3, v40")
    k.i("v_lshl_add_u32 v45, v46, 6, v45")
    k.i("v_lshl_add_u32 v44, v43, 7, v45")
    k.i("v_mov_b32 v47, 0x7ffffff0")
    k.i("s_sub_u32 s62, 119, s13")
    k.i("s_cmp_eq_u32 s14, 0"); k.i("s_cselect_b32 s66, s62, s67")
    k.i("s_mov_b32 s64, 0x05040100"); k.i("s_mov_b32 s65, 0x07060302")
    k.i("s_waitcnt vmcnt(0)")
    stamp(k, 3)
    for i in range(2):
        k.i("ds_write_b128 v6, %s offset:%d" % (v(8 + 4 * i, 4), 4 * WROW * i))
        k.i("ds_write_b128 v6, %s offset:%d" % (v(16 + 4 * i, 4), WARR + 4 * WROW * i))
    k.i("s_waitcnt lgkmcnt(0)")
    k.i("s_barrier")
    stamp(k, 4)
    blk = Block()
    for it in range(4):
        RB = 8 + 4 * it
        blk.i("ds_read_b64_tr_b16 %s, v42 offset:%d" % (v(RB, 2), 64 * it))
        blk.i("ds_read_b64_tr_b16 %s, v42 offset:%d" % (v(RB + 2, 2), WARR + 64 * it))
    for it in range(4):
        R, I, d = 8 + 4 * it, 8 + 4 * it + 2, 48 + 4 * it
        blk.i("v_perm_b32 v%d, v%d, v%d, s64" % (d, I, R))
        blk.i("v_perm_b32 v%d, v%d, v%d, s65" % (d + 1, I, R))
        blk.i("v_perm_b32 v%d, v%d, v%d, s64" % (d + 2, I + 1, R + 1))
        blk.i("v_perm_b32 v%d, v%d, v%d, s65" % (d + 3, I + 1, R + 1))
        a0 = 100 + it
        blk.i("v_add_u32 v%d, %d, v43" % (108 + (it & 1), 32 * it))
        blk.i("v_cmp_le_u32 s[%d:%d], v%d, s66" % (68 + 2 * (it & 1), 69 + 2 * (it & 1), 108 + (it & 1)))
        blk.i("v_add_u32 v%d, %d, v44" % (a0, 128 * 32 * it))
        blk.i("v_cndmask_b32 v%d, v47, v%d, s[%d:%d]" % (a0, a0, 68 + 2 * (it & 1), 69 + 2 * (it & 1)))
        blk.i("buffer_store_dwordx4 %s, v%d, s[8:11], 0 offen%s" % (v(d, 4), a0, stf("WT", " sc1")))
    blk.emit(k)
    stamp(k, 5)
    endpgm(k, 0)

def gen_k1(k, name):
    kernel_header(k, name)
    diag_begin(k)
    load_kernargs(k)
    if PREFETCH:
        k.i("s_cmp_lt_u32 s2, %d" % PREFETCH)
        k.i("s_cbranch_scc0 L_k1_nopf")
        code_prefetch(k, 120, "L_k1_pc")
        k.label("L_k1_nopf")
    lab = {"k": "L_k1_kgen", "r": "L_k1_row", "w": "L_k1_w"}
    for c in ORDER:
        k.i("s_cmp_lt_u32 s2, %d" % (OFF[c] + _sz[c]))
        k.i("s_cbranch_scc1 %s" % lab[c])
    k.i("s_endpgm")
    k.label("L_k1_kgen"); role_kgen(k)
    k.label("L_k1_row"); role_row(k)
    k.label("L_k1_w"); role_w(k)
```

```python
from common import *

import os
from sched import Block
K2_NC, K2_NF = 224, 225
K2_GRID = K2_NC + K2_NF
COLFIRST = int(os.environ.get('COLFIRST', '1'))
NCOLP = 225 if COLFIRST else 0
if COLFIRST: K2_GRID = NCOLP + K2_NC
GUARD = 128
CSTR = 2112
UOFF = 4 * CSTR
UPAD = 1088
CHL = UOFF + UPAD + 4096 + 64
K2_LDS = GUARD + 2 * CHL
K2_VGPR = 168
FUSE23 = int(os.environ.get('FUSE23', '0'))
B4 = lambda e: 592 + 48 * (e - 1)
B8 = lambda e: 800 + 80 * (e - 1)
TILES = {0: (0, 1, 6, 7), 1: (2, 3, 4, 5)}

def conv_main(k, h):
    ACC, H, VR, M1, M2, M3, M5, M6, MC, KF, AS = 16, 32, 104, 120, 124, 128, 132, 136, 140, 144, 160
    aH, aK, aV = 50, 51, 52
    aH, aK, aV = 10, 11, 12
    tiles = TILES[h]
    acc = {t: ACC + 4 * i for i, t in enumerate(tiles)}
    b = Block()
    first = set()
    def mf(t, A, B):
        c = acc[t] if t in first else "0"
        first.add(t)
        b.i("v_mfma_f32_16x16x32_bf16 %s, %s, %s, %s" % (v(acc[t], 4), v(A, 4), v(B, 4), v(c, 4) if c != "0" else "0"))
    uses = {}
    for t in tiles:
        for q in range(18):
            if q > 8 * t + 8: continue
            uses.setdefault(256 * t - 32 * q, []).append((t, q))
    hloaded = set(); nring = 0
    for x0 in sorted(uses, reverse=True):
        for (t, q) in uses[x0]:
            if q not in hloaded:
                hloaded.add(q)
                b.i("ds_read_b64 %s, v%d offset:%d" % (v(H + 4 * q, 2), aH, 1112 - 64 * q))
                b.i("ds_read_b64 %s, v%d offset:%d" % (v(H + 4 * q + 2, 2), aH, 1112 - 64 * q + 8))
        vr = VR + 4 * (nring & 3); nring += 1
        b.i("ds_read_b128 %s, v%d offset:%d" % (v(vr, 4), aV, UPAD + 2 * x0))
        for (t, q) in uses[x0]: mf(t, H + 4 * q, vr)
    PH, BX, PP = 32, 48, 96
    need4 = {tp: [t for t in tiles if t - tp in (2, 3, 4)] for tp in range(6)}
    need8 = {tp: [t for t in tiles if t - tp in (4, 5, 6, 7)] for tp in range(6)}
    corr = {tp: [t for t in tiles if t - tp == 4] for tp in range(6)}
    nbuf = 0; nk = 0
    for tp in range(6):
        if not (need4[tp] or need8[tp]): continue
        pa, pb = PH + 8 * (nbuf & 1), PH + 8 * (nbuf & 1) + 4
        bx, pp = BX + 24 * (nbuf & 1), PP + 12 * (nbuf & 1); nbuf += 1
        b.i("ds_read_b128 %s, v%d offset:%d" % (v(pa, 4), aV, UPAD + 512 * tp - 32))
        b.i("ds_read_b128 %s, v%d offset:%d" % (v(pb, 4), aV, UPAD + 512 * tp - 48))
        boxes = []
        if need4[tp]: boxes += [(0, pa, M1, pp), (1, pa, M2, pp + 2), (2, pa, M3, pp + 4), (3, pb, M2, pp + 6)]
        if need8[tp]: boxes += [(4, pa, M5, pp + 8), (5, pb, M6, pp + 10)]
        for (n, ph, m, dst) in boxes:
            b.i("v_mfma_f32_16x16x32_bf16 %s, %s, %s, 0" % (v(bx + 4 * n, 4), v(ph, 4), v(m, 4)))
        for (n, ph, m, dst) in boxes:
            b.i("v_cvt_pk_bf16_f32 v%d, v%d, v%d" % (dst, bx + 4 * n, bx + 4 * n + 1))
            b.i("v_cvt_pk_bf16_f32 v%d, v%d, v%d" % (dst + 1, bx + 4 * n + 2, bx + 4 * n + 3))
        for t in corr[tp]: mf(t, AS, pa)
        def kfrag(off0, off1):
            nonlocal nk
            kf = KF + 4 * (nk & 3); nk += 1
            b.i("ds_read_b64 %s, v%d offset:%d" % (v(kf, 2), aK, off0))
            b.i("ds_read_b64 %s, v%d offset:%d" % (v(kf + 2, 2), aK, off1))
            return kf
        for t in need4[tp]:
            D = t - tp
            for (e0, op) in ((1, pp), (3, pp + 4)):
                kf = kfrag(2 * (B4(e0) + 76 - 16 * D), 2 * (B4(e0 + 1) + 76 - 16 * D))
                mf(t, op, kf)
        for t in need8[tp]:
            D = t - tp
            kf = kfrag(2 * (B8(1) + 124 - 16 * D), 2 * (B8(2) + 124 - 16 * D))
            mf(t, pp + 8, kf)
    est = b.emit(k)
    k.c("scheduled estimate: %d cycles" % est)
    return acc

def role_end(k):
    if FUSE23: k.i("s_branch L_k2_next")
    else: endpgm(k, 1)

def conv_epilogue(k, h):
    tiles = TILES[h]; ACC = 16
    b = Block()
    for i, t in enumerate(tiles):
        b.i("ds_read_b64 %s, v13 offset:%d" % (v(56 + 2 * i, 2), UPAD + 512 * t))
    for i, t in enumerate(tiles):
        a = ACC + 4 * i; uu = 56 + 2 * i; x = 64 + 4 * i; o = 80 + 2 * i
        b.i("v_lshlrev_b32 v%d, 16, v%d" % (x, uu)); b.i("v_and_b32 v%d, 0xffff0000, v%d" % (x + 1, uu))
        b.i("v_lshlrev_b32 v%d, 16, v%d" % (x + 2, uu + 1)); b.i("v_and_b32 v%d, 0xffff0000, v%d" % (x + 3, uu + 1))
        b.i("v_pk_fma_f32 %s, %s, s[56:57], %s" % (v(a, 2), v(x, 2), v(a, 2)))
        b.i("v_pk_fma_f32 %s, %s, s[56:57], %s" % (v(a + 2, 2), v(x + 2, 2), v(a + 2, 2)))
        b.i("v_cvt_pk_bf16_f32 v%d, v%d, v%d" % (o, a, a + 1)); b.i("v_cvt_pk_bf16_f32 v%d, v%d, v%d" % (o + 1, a + 2, a + 3))
        b.i("buffer_store_dwordx2 %s, v14, s[8:11], 0 offen offset:%d%s" % (v(o, 2), 512 * t, stf("AT", " sc1")))
    b.emit(k)

def role_conv(k):
    if int(os.environ.get("PRIO_CONV", "0")): k.i("s_setprio %s" % os.environ["PRIO_CONV"])
    k.i("v_lshrrev_b32 v1, 6, v0")
    k.i("v_and_b32 v2, 63, v0")
    k.i("v_readfirstlane_b32 s3, v1")
    if COLFIRST: k.i("s_sub_u32 s2, s2, %d" % NCOLP)
    k.i("s_and_b32 s48, s2, 7"); k.i("s_lshl_b32 s48, s48, 1")
    k.i("s_bfe_u32 s49, s2, 0x10003"); k.i("s_add_u32 s48, s48, s49")
    k.i("s_and_b32 s49, s2, 0xf0"); k.i("s_add_u32 s48, s48, s49")
    k.i("s_lshl_b32 s15, s48, 2")
    k.i("s_lshr_b32 s12, s3, 1")
    k.i("s_and_b32 s13, s3, 1")
    k.i("s_lshl_b32 s14, s48, 1")
    k.i("s_add_u32 s14, s14, s12")
    k.i("s_lshl_b32 s48, s13, 6")
    k.i("v_add_u32 v3, s48, v2")
    k.i("s_mul_i32 s49, s14, %d" % KSTR)
    k.i("s_add_u32 s49, s49, 0x%x" % WS_KR)
    k.i("v_lshl_add_u32 v4, v3, 4, s49")
    k.i("s_lshl_b32 s50, s14, 5")
    k.i("s_add_u32 s50, s50, 0x%x" % WS_UT)
    k.i("v_lshrrev_b32 v5, 1, v3")
    k.i("v_mul_u32_u24 v5, %d, v5" % SUT)
    k.i("v_and_b32 v6, 1, v3")
    k.i("v_lshl_add_u32 v5, v6, 4, v5")
    k.i("v_add_u32 v5, s50, v5")
    k.i("s_mov_b32 s50, %d" % (64 * SUT))
    k.i("s_waitcnt lgkmcnt(0)")
    stamp(k, 1)
    ws_srd(k)
    k.i("s_load_dword s51, %s, s15" % sp(P_DSKIP))
    for e in range(3):
        k.i("buffer_load_dwordx4 %s, v4, s[8:11], 0 offen offset:%d" % (v(16 + 4 * e, 4), 4 * e))
    k.i("buffer_load_dwordx4 v[40:43], v5, s[8:11], 0 offen")
    k.i("buffer_load_dwordx4 v[44:47], v5, s[8:11], s50 offen")
    k.i("s_mul_i32 s52, s12, %d" % CHL)
    k.i("s_add_u32 s52, s52, %d" % GUARD)
    k.i("s_add_u32 s53, s52, %d" % UOFF)
    k.i("v_lshl_add_u32 v6, v3, 4, s52")
    k.i("v_lshl_add_u32 v7, v3, 4, s53")
    for j in range(4): k.i("v_mov_b32 v%d, 0" % (32 + j))
    k.i("v_cmp_gt_u32 vcc, %d, v3" % (UPAD // 16))
    k.i("s_and_saveexec_b64 s[60:61], vcc")
    k.i("ds_write_b128 v7, v[32:35]")
    k.i("v_cmp_gt_u32 vcc, 4, v3")
    k.i("s_and_b64 exec, exec, vcc")
    k.i("s_cbranch_execz L_cv_nopad")
    k.i("ds_write_b128 v7, v[32:35] offset:%d" % (UPAD + 4096))
    k.label("L_cv_nopad")
    k.i("s_mov_b64 exec, s[60:61]")
    k.i("v_and_b32 v48, 15, v2")
    k.i("v_lshrrev_b32 v49, 4, v2")
    k.i("v_and_b32 v50, 3, v48")
    k.i("v_lshrrev_b32 v51, 2, v48")
    k.i("v_mul_u32_u24 v50, %d, v50" % CSTR)
    k.i("v_lshlrev_b32 v51, 3, v51")
    k.i("v_sub_u32 v50, v50, v51")
    k.i("v_add_u32 v50, s52, v50")
    k.i("v_lshl_add_u32 v10, v49, 4, v50")
    k.i("v_lshl_add_u32 v11, v49, 3, v50")
    k.i("v_lshlrev_b32 v51, 5, v48")
    k.i("v_add_u32 v51, s53, v51")
    k.i("v_lshl_add_u32 v12, v49, 4, v51")
    k.i("v_lshl_add_u32 v13, v49, 3, v51")
    k.i("v_lshlrev_b32 v14, 5, v48")
    k.i("v_lshl_add_u32 v14, v49, 3, v14")
    k.i("s_mul_i32 s59, s14, %d" % SAT)
    k.i("s_add_u32 s59, s59, 0x%x" % WS_AT)
    k.i("v_add_u32 v14, s59, v14")
    k.i("v_lshlrev_b32 v52, 3, v49")
    k.i("v_sub_u32 v52, v52, v48")
    k.i("s_mov_b32 s54, 0x8001"); k.i("s_mov_b32 s55, 0x10001")
    for (reg, lo, hi, val) in ((120, 11, 13, 0x3f80), (124, 6, 10, 0x3f80), (128, 3, 5, 0x3f80), (132, 5, 11, 0x3f80), (136, 4, 12, 0x3f80), (140, 12, 13, 0xffff)):
        n = hi - lo + 1
        k.i("v_add_u32 v53, %d, v52" % (20 - lo))
        k.i("v_med3_i32 v53, v53, 0, 31")
        k.i("s_mov_b32 s56, 0x%x" % (((1 << n) - 1) << 20))
        k.i("v_lshrrev_b32_e64 v53, v53, s56")
        for p in range(4):
            k.i("v_bfe_u32 v54, v53, %d, 2" % (2 * p))
            k.i("v_mul_u32_u24 v54, 0x8001, v54")
            k.i("v_and_b32 v54, s55, v54")
            k.i("v_mul_u32_u24 v%d, 0x%x, v54" % (reg + p, val))
    k.i("s_waitcnt vmcnt(2)")
    stamp(k, 2)
    L0, L1, LX = 16, 20, 24
    k.i("ds_write_b128 v6, %s offset:%d" % (v(L0, 4), 3 * CSTR))
    k.i("ds_write_b128 v6, %s offset:%d" % (v(L1, 4), 1 * CSTR))
    for j in range(4): k.i("v_alignbit_b32 v%d, v%d, v%d, 16" % (28 + j, L1 + j, L0 + j))
    for j in range(4): k.i("v_alignbit_b32 v%d, v%d, v%d, 16" % (36 + j, LX + j, L1 + j))
    k.i("ds_write_b128 v6, v[28:31] offset:%d" % (2 * CSTR))
    k.i("ds_write_b128 v6, v[36:39] offset:%d" % (0 * CSTR))
    k.i("s_waitcnt vmcnt(0)")
    k.i("ds_write_b128 v7, v[40:43] offset:%d" % UPAD)
    k.i("ds_write_b128 v7, v[44:47] offset:%d" % (UPAD + 2048))
    k.i("s_lshl_b32 s58, s12, 4")
    k.i("v_mov_b32 v53, s52")
    k.i("s_waitcnt lgkmcnt(0)")
    k.i("s_lshr_b32 s51, s51, s58")
    k.i("s_lshl_b32 s56, s51, 16")
    k.i("s_mov_b32 s57, s56")
    k.i("s_barrier")
    stamp(k, 3)
    k.i("ds_read_u16 v54, v53 offset:%d" % (3 * CSTR + 2 * 752))
    k.i("s_waitcnt lgkmcnt(0)")
    k.i("v_lshl_or_b32 v54, v54, 16, v54")
    for p in range(4): k.i("v_and_b32 v%d, v54, v%d" % (160 + p, 140 + p))
    k.i("s_cmp_eq_u32 s13, 0")
    k.i("s_cbranch_scc0 L_cv_h1")
    conv_main(k, 0)
    stamp(k, 5)
    conv_epilogue(k, 0)
    role_end(k)
    k.label("L_cv_h1")
    conv_main(k, 1)
    stamp(k, 5)
    conv_epilogue(k, 1)
    role_end(k)

INB, EXB = 0, 9216

def fi(x):
    return {0: "0", 1: "1.0", 2: "2.0", 4: "4.0"}.get(x, f32(x))

def role_col(k):
    BR, BI, AR, AI, TC, TS, DA, ACR, ACI, P, WW = 16, 32, 48, 64, 80, 88, 96, 128, 136, 144, 152
    if int(os.environ.get("PRIO_COL", "1")): k.i("s_setprio %s" % os.environ.get("PRIO_COL", "1"))
    k.i("v_lshrrev_b32 v1, 6, v0")
    k.i("v_and_b32 v2, 63, v0")
    k.i("v_readfirstlane_b32 s3, v1")
    k.i("s_sub_u32 s48, s2, %d" % (0 if COLFIRST else K2_NC))
    k.i("s_and_b32 s12, s48, 7"); k.i("s_lshl_b32 s12, s12, 1")
    k.i("s_bfe_u32 s49, s48, 0x10003"); k.i("s_add_u32 s12, s12, s49")
    k.i("s_and_b32 s49, s48, 0xf0"); k.i("s_add_u32 s12, s12, s49")
    k.i("s_lshr_b32 s13, s12, 4"); k.i("s_add_u32 s13, s13, 1")
    k.i("s_and_b32 s14, s12, 15")
    k.i("s_cmp_ge_u32 s12, 208")
    k.i("s_cselect_b32 s13, 14, s13")
    k.i("s_sub_u32 s48, s12, 216")
    k.i("s_cmp_ge_u32 s12, 216")
    k.i("s_cselect_b32 s13, 0, s13"); k.i("s_cselect_b32 s14, s48, s14")
    k.i("s_lshl_b32 s15, s13, 4"); k.i("s_add_u32 s15, s15, s14")
    k.i("s_mul_i32 s48, s14, 28"); k.i("s_add_u32 s48, s48, s13")
    k.i("s_sub_u32 s49, 448, s48")
    k.i("s_cmp_gt_u32 s48, 224")
    k.i("s_cselect_b32 s50, 1, 0")
    k.i("s_cselect_b32 s49, s49, s48")
    k.i("s_lshl_b32 s51, s15, 6")
    k.i("s_add_u32 s51, s51, 0x%x" % WS_X1)
    k.i("v_lshrrev_b32 v3, 2, v0")
    k.i("v_mul_u32_u24 v3, %d, v3" % SX1)
    k.i("v_and_b32 v4, 3, v0")
    k.i("v_lshl_add_u32 v3, v4, 4, v3")
    k.i("v_add_u32 v3, s51, v3")
    k.i("v_and_b32 v4, 15, v2")
    k.i("v_lshrrev_b32 v5, 4, v2")
    k.i("s_lshl_b32 s52, s3, 4")
    k.i("v_add_u32 v6, s52, v4")
    k.i("v_lshlrev_b32 v7, 2, v5")
    k.i("v_sub_u32 v9, 64, v6"); k.i("v_and_b32 v9, 63, v9")
    k.i("v_sub_u32 v8, 12, v7")
    k.i("v_cmp_eq_u32 vcc, 0, v6")
    k.i("v_addc_co_u32 v8, vcc, 0, v8, vcc")
    k.i("s_cmp_eq_u32 s50, 1")
    k.i("s_cselect_b64 vcc, -1, 0")
    k.i("v_cndmask_b32 v9, v6, v9, vcc")
    k.i("v_cndmask_b32 v8, v7, v8, vcc")
    k.i("v_mul_u32_u24 v9, %d, v9" % SW2)
    k.i("v_lshl_add_u32 v8, v8, 2, v9")
    k.i("s_lshl_b32 s53, s49, 7")
    k.i("s_add_u32 s53, s53, 0x%x" % WS_WT)
    k.i("v_add_u32 v8, s53, v8")
    k.i("s_waitcnt lgkmcnt(0)")
    stamp(k, 1)
    ws_srd(k)
    k.i("buffer_load_dwordx4 %s, v3, s[8:11], 0 offen" % v(DA, 4))
    k.i("s_mov_b32 s54, %d" % (64 * SX1))
    k.i("buffer_load_dwordx4 %s, v3, s[8:11], s54 offen" % v(DA + 4, 4))
    LATEW = int(os.environ.get("LATEW", "1"))
    def wloads():
        k.i("buffer_load_dwordx4 %s, v8, s[8:11], 0 offen" % v(WW, 4))
        k.i("buffer_load_dwordx4 %s, v8, s[8:11], 0 offen offset:64" % v(WW + 4, 4))
    if not LATEW: wloads()
    k.i("s_load_dword s55, %s, s53" % sp(P_WS))
    sc2 = 2.0 / (2048 * 448); sc1 = 1.0 / (2048 * 448)
    k.i("s_mov_b32 s56, %s" % f32(sc2))
    k.i("s_cmp_eq_u32 s48, 0"); k.i("s_cselect_b32 s56, %s, s56" % f32(sc1))
    k.i("s_cmp_eq_u32 s48, 224"); k.i("s_cselect_b32 s56, %s, s56" % f32(sc1))
    k.i("s_mov_b32 s57, s56")
    k.i("s_lshl_b32 s58, s50, 31"); k.i("s_xor_b32 s58, s58, s56"); k.i("s_mov_b32 s59, s58")
    k.i("v_and_b32 v9, 7, v0")
    k.i("v_lshlrev_b32 v9, 2, v9")
    k.i("v_lshrrev_b32 v10, 3, v0")
    k.i("v_xor_b32 v10, v10, v9")
    k.i("v_lshlrev_b32 v10, 2, v10")
    k.i("v_mul_u32_u24 v9, 288, v9")
    k.i("v_add_u32 v9, v9, v10")
    k.i("v_lshrrev_b32 v10, 2, v4")
    k.i("v_xor_b32 v10, v10, v5")
    k.i("v_lshlrev_b32 v10, 4, v10")
    k.i("v_mul_u32_u24 v11, 288, v4")
    k.i("v_add_u32 v10, v10, v11")
    k.i("v_xor_b32 v11, v4, v7")
    k.i("v_lshlrev_b32 v11, 2, v11")
    k.i("v_mul_u32_u24 v12, 288, v7")
    k.i("v_add_u32 v11, v11, v12")
    k.i("s_lshl_b32 s60, s3, 6"); k.i("s_add_u32 s60, s60, %d" % EXB)
    k.i("s_xor_b32 s61, s3, 1"); k.i("s_lshl_b32 s61, s61, 6"); k.i("s_add_u32 s61, s61, %d" % (EXB + 4608))
    k.i("v_add_u32 v12, s61, v11")
    k.i("v_add_u32 v11, s60, v11")
    k.i("v_and_b32 v13, 7, v4")
    k.i("v_add_u32 v13, s52, v13")
    k.i("v_lshlrev_b32 v13, 7, v13")
    k.i("v_lshrrev_b32 v14, 3, v4")
    k.i("v_lshl_add_u32 v13, v14, 6, v13")
    k.i("v_lshl_add_u32 v13, v5, 4, v13")
    k.i("s_mul_i32 s62, s15, %d" % SZ); k.i("s_add_u32 s62, s62, 0x%x" % WS_Z)
    k.i("v_add_u32 v13, s62, v13")
    k.i("v_cvt_f32_u32 v14, v6")
    k.i("v_cvt_f32_u32 v15, v7")
    t0, t1, t2, t3 = 160, 161, 162, 163
    k.i("v_mul_f32 v%d, %s, v14" % (t3, f32(-1.0 / 64)))
    for q in range(2):
        for i in range(4):
            k.i("v_add_f32 v%d, %s, v15" % (t0, fi(16 * q + i)))
            k.i("v_mul_f32 v%d, v%d, v%d" % (t0, t0, t3))
            k.i("v_cos_f32 v%d, v%d" % (t1, t0)); k.i("v_sin_f32 v%d, v%d" % (t2, t0))
            cvtpk(k, BR + 4 * q + i, t1, t2, neg_hi=True)
            cvtpk(k, BI + 4 * q + i, t2, t1)
    k.i("v_and_b32 v%d, 1, v4" % t0)
    k.i("v_mul_u32_u24 v%d, 0x8000, v%d" % (t0, t0))
    k.i("v_lshl_or_b32 v164, v%d, 16, v%d" % (t0, t0))
    for j in range(8):
        k.i("v_xor_b32 v%d, v164, v%d" % (BR + 8 + j, BR + j))
        k.i("v_xor_b32 v%d, v164, v%d" % (BI + 8 + j, BI + j))
    k.i("v_cvt_f32_u32 v%d, v4" % t3)
    k.i("v_mul_f32 v%d, %s, v%d" % (t3, f32(-1.0 / 32), t3))
    for j in range(4):
        k.i("v_add_f32 v%d, %s, v15" % (t0, fi(j)))
        k.i("v_mul_f32 v%d, v%d, v%d" % (t0, t0, t3))
        k.i("v_cos_f32 v%d, v%d" % (t1, t0)); k.i("v_sin_f32 v%d, v%d" % (t2, t0))
        cvtpk(k, AR + j, t1, t2, neg_hi=True)
        cvtpk(k, AI + j, t2, t1)
    k.i("s_mov_b32 s63, 0x80008000")
    for X in (AR, AI):
        for j in range(4):
            k.i("v_xor_b32 v%d, v164, v%d" % (X + 4 + j, X + j))
        for Tk in range(2):
            for j in range(4):
                src = X + 4 * Tk + j
                if j & 1: k.i("v_xor_b32 v%d, s63, v%d" % (X + 8 + 4 * Tk + j, src))
                else: k.i("v_mov_b32 v%d, v%d" % (X + 8 + 4 * Tk + j, src))
    k.i("v_mul_f32 v%d, %s, v14" % (t3, f32(-1.0 / 2048)))
    for T in range(2):
        for j in range(4):
            k.i("v_add_f32 v%d, %s, v15" % (t0, fi(16 * T + j)))
            k.i("v_mul_f32 v%d, v%d, v%d" % (t0, t0, t3))
            k.i("v_cos_f32 v%d, v%d" % (TC + 4 * T + j, t0)); k.i("v_sin_f32 v%d, v%d" % (TS + 4 * T + j, t0))
    stamp(k, 2)
    stamp(k, 2)
    k.i("s_waitcnt vmcnt(%d)" % (0 if LATEW else 2))
    stamp(k, 3)
    if LATEW: wloads()
    for i in range(2):
        for e in range(4):
            k.i("ds_write_b32 v9, v%d offset:%d" % (DA + 4 * i + e, INB + 128 * i + 288 * e))
    k.i("s_waitcnt lgkmcnt(0)")
    k.i("s_barrier")
    stamp(k, 4)
    blk = Block()
    class W_:
        def i(self, t): blk.i(t)
    w = W_()
    def big_stage(region):
        for T in range(2):
            for q in range(4):
                w.i("ds_read_b128 %s, v10 offset:%d" % (v(DA + 16 * T + 4 * q, 4), region + 4608 * T + 64 * (q ^ T)))
        for q in range(4):
            for T in range(2):
                a = DA + 16 * T + 4 * q
                mfma(w, ACR + 4 * T, a, BR + 4 * q, "0" if q == 0 else ACR + 4 * T)
                mfma(w, ACI + 4 * T, a, BI + 4 * q, "0" if q == 0 else ACI + 4 * T)
    def small_stage(outr, outi):
        for Tk in range(2):
            for To in range(2):
                mfma(w, outr + 4 * To, AR + 4 * (2 * To + Tk), P + 4 * Tk, "0" if Tk == 0 else outr + 4 * To)
                mfma(w, outi + 4 * To, AI + 4 * (2 * To + Tk), P + 4 * Tk, "0" if Tk == 0 else outi + 4 * To)
    tmps = [(160, 162), (164 + 0, 166)]
    WR, WI = 0, 0
    big_stage(INB)
    for T in range(2):
        twiddle4(w, ACR + 4 * T, ACI + 4 * T, TC + 4 * T, TS + 4 * T, *tmps[T])
        for j in range(4): cvtpk(w, P + 4 * T + j, ACR + 4 * T + j, ACI + 4 * T + j)
    XR, XI = DA, DA + 8
    WR, WI = DA + 16, DA + 24
    small_stage(XR, XI)
    est = blk.emit(k); k.c("col block 1a estimate %d" % est)
    k.i("s_waitcnt vmcnt(0)")
    k.i("s_cmp_eq_u32 s50, 0")
    k.i("s_cbranch_scc1 L_col_norev")
    for j in range(4): k.i("v_swap_b32 v%d, v%d" % (WW + j, WW + 7 - j))
    k.i("s_cmp_eq_u32 s3, 0")
    k.i("s_cbranch_scc0 L_col_norev")
    k.i("v_writelane_b32 v%d, s55, 0" % WW)
    k.label("L_col_norev")
    stamp(k, 5)
    blk = Block()
    for j in range(8):
        w.i("v_lshlrev_b32 v%d, 16, v%d" % (WR + j, WW + j))
        w.i("v_and_b32 v%d, 0xffff0000, v%d" % (WI + j, WW + j))
    for j in range(0, 8, 2):
        w.i("v_pk_mul_f32 %s, %s, s[56:57]" % (v(WR + j, 2), v(WR + j, 2)))
        w.i("v_pk_mul_f32 %s, %s, s[58:59]" % (v(WI + j, 2), v(WI + j, 2)))
    for T in range(2):
        twiddle4(w, XR + 4 * T, XI + 4 * T, WR + 4 * T, WI + 4 * T, *tmps[T])
        for j in range(4): cvtpk(w, P + 4 * T + j, XI + 4 * T + j, XR + 4 * T + j)
    small_stage(ACR, ACI)
    for T in range(2):
        twiddle4(w, ACR + 4 * T, ACI + 4 * T, TC + 4 * T, TS + 4 * T, *tmps[T])
        for j in range(4): cvtpk(w, P + 4 * T + j, ACR + 4 * T + j, ACI + 4 * T + j)
    for T in range(2):
        for j in range(4):
            w.i("ds_write_b32 v%d, v%d offset:%d" % (11 + T, P + 4 * T + j, 288 * j))
    est = blk.emit(k); k.c("col block 1 estimate %d" % est)
    k.i("s_waitcnt lgkmcnt(0)")
    k.i("s_barrier")
    stamp(k, 6)
    blk = Block()
    big_stage(EXB)
    for T in range(2):
        for j in range(4): cvtpk(w, P + 4 * T + j, ACI + 4 * T + j, ACR + 4 * T + j)
    for j in range(4):
        w.i("v_mov_b32 v%d, v%d" % (WW + j, P + j))
        w.i("v_mov_b32_dpp v%d, v%d row_ror:8 row_mask:0xf bank_mask:0xc" % (P + j, P + 4 + j))
        w.i("v_mov_b32_dpp v%d, v%d row_ror:8 row_mask:0xf bank_mask:0x3" % (P + 4 + j, WW + j))
    for T in range(2):
        w.i("buffer_store_dwordx4 %s, v13, s[8:11], 0 offen offset:%d%s" % (v(P + 4 * T, 4), 1024 * T, stf("Z", " sc1")))
    est = blk.emit(k); k.c("col block 2 estimate %d" % est)
    role_end(k)

def gen_k2(k, name):
    kernel_header(k, name)
    diag_begin(k)
    load_kernargs(k)
    if COLFIRST:
        k.i("s_cmp_lt_u32 s2, %d" % K2_NF)
        k.i("s_cbranch_scc1 L_k2_col")
        k.i("s_cmp_lt_u32 s2, %d" % K2_GRID)
        k.i("s_cbranch_scc1 L_k2_conv")
    else:
        k.i("s_cmp_lt_u32 s2, %d" % K2_NC)
        k.i("s_cbranch_scc1 L_k2_conv")
        k.i("s_cmp_lt_u32 s2, %d" % K2_GRID)
        k.i("s_cbranch_scc1 L_k2_col")
    k.i("s_endpgm")
    k.label("L_k2_conv"); role_conv(k)
    k.label("L_k2_col"); role_col(k)
    if FUSE23:
        import k3
        k.label("L_k2_next")
        k.i("s_mov_b64 exec, -1")
        k.i("s_cmp_lt_u32 s2, %d" % k3.K3_GRID)
        k.i("s_cbranch_scc1 L_k2_rows")
        grid_arrive(k, "L_arr_x")
        endpgm(k, 1)
        k.label("L_k2_rows")
        k3.k3_body(k, K2_GRID)
```

```python
from common import *
from sched import Block

K3_GRID = 256
K3_BLOCK = 256
ZRS = 1040
ZI = 0
A1 = 8 * ZRS
K3_LDS = A1 + 28 * 272 + 1024
K3_VGPR = 104

def fi(x):
    return {0: "0", 1: "1.0", 2: "2.0", 4: "4.0"}.get(x, f32(x))

def gen_k3(k, name):
    kernel_header(k, name)
    diag_begin(k)
    load_kernargs(k)
    k.i("s_cmp_lt_u32 s2, %d" % K3_GRID)
    k.i("s_cbranch_scc1 L_k3_go")
    k.i("s_endpgm")
    k.label("L_k3_go")
    k3_body(k, False)

def k3_body(k, fused):
    LF = " sc1" if fused else ""
    k.i("v_lshrrev_b32 v1, 6, v0")
    k.i("v_and_b32 v2, 63, v0")
    k.i("v_readfirstlane_b32 s3, v1")
    k.i("s_and_b32 s4, s2, 7"); k.i("s_lshl_b32 s4, s4, 5"); k.i("s_lshr_b32 s5, s2, 3"); k.i("s_add_u32 s4, s4, s5")
    k.i("s_lshl_b32 s4, s4, 3")
    k.i("s_lshl_b32 s12, s4, 2"); k.i("s_add_u32 s12, s12, 0x%x" % WS_Z)
    k.i("v_lshrrev_b32 v3, 1, v0"); k.i("v_mul_u32_u24 v3, %d, v3" % SZ)
    k.i("v_and_b32 v4, 1, v0"); k.i("v_lshl_add_u32 v3, v4, 4, v3")
    k.i("v_add_u32 v3, s12, v3")
    k.i("s_lshl_b32 s13, s4, 1"); k.i("s_add_u32 s13, s13, 0x%x" % WS_AT)
    k.i("v_mul_u32_u24 v5, %d, v0" % SAT)
    k.i("v_add_u32 v5, s13, v5")
    k.i("v_lshrrev_b32 v6, 5, v0")
    k.i("v_bfe_u32 v7, v0, 1, 4")
    k.i("v_mov_b32 v8, 0x7ffffff0")
    k.i("v_cmp_eq_u32 vcc, 0, v6"); k.i("v_cndmask_b32_e64 v9, 16, 9, vcc")
    k.i("v_cmp_gt_u32 vcc, v9, v7"); k.i("v_cndmask_b32 v10, v8, v3, vcc")
    k.i("v_cmp_eq_u32 vcc, 6, v6"); k.i("v_cndmask_b32_e64 v9, 16, 8, vcc")
    k.i("v_cmp_eq_u32 vcc, 7, v6"); k.i("v_cndmask_b32_e64 v9, v9, 0, vcc")
    k.i("v_add_u32 v11, %d, v3" % (128 * SZ))
    k.i("v_cmp_gt_u32 vcc, v9, v7"); k.i("v_cndmask_b32 v11, v8, v11, vcc")
    k.i("v_add_u32 v12, %d, v5" % (256 * SAT))
    k.i("v_cmp_gt_u32 vcc, 192, v0"); k.i("v_cndmask_b32 v12, v8, v12, vcc")
    k.i("s_lshl_b32 s49, s3, 1"); k.i("s_add_u32 s48, s4, s49")
    k.i("s_lshl_b32 s50, s48, 2"); k.i("s_add_u32 s50, s50, 0x%x" % WS_G)
    ZL, AL = 16, 24
    def loads():
        k.i("buffer_load_dwordx4 %s, v10, s[8:11], 0 offen%s" % (v(ZL, 4), LF))
        k.i("buffer_load_dwordx4 %s, v11, s[8:11], 0 offen%s" % (v(ZL + 4, 4), LF))
        k.i("buffer_load_dwordx4 %s, v5, s[8:11], 0 offen%s" % (v(AL, 4), LF))
        k.i("buffer_load_dwordx4 %s, v12, s[8:11], 0 offen%s" % (v(AL + 4, 4), LF))
    if not fused:
        k.i("s_waitcnt lgkmcnt(0)")
        stamp(k, 1)
        ws_srd(k)
    k.i("s_load_dwordx2 s[60:61], %s, s50" % sp(P_WS))
    if not fused: loads()
    srd(k, 56, P_OUT, 2048 * 896)
    k.i("v_mul_u32_u24 v9, %d, v4" % (4 * ZRS))
    k.i("v_lshrrev_b32 v13, 2, v6"); k.i("v_and_b32 v13, 1, v13"); k.i("v_lshlrev_b32 v13, 3, v13")
    k.i("v_xor_b32 v13, v13, v7")
    k.i("v_lshl_add_u32 v13, v6, 4, v13")
    k.i("v_lshl_add_u32 v13, v13, 2, v9")
    k.i("v_lshrrev_b32 v14, 4, v0")
    k.i("v_add_u32 v14, v14, v0")
    k.i("v_lshlrev_b32 v14, 4, v14")
    k.i("v_add_u32 v14, %d, v14" % A1)
    k.i("v_and_b32 v15, 15, v2")
    k.i("v_lshrrev_b32 v32, 4, v2")
    k.i("v_lshrrev_b32 v33, 2, v15"); k.i("v_and_b32 v33, 1, v33"); k.i("v_lshlrev_b32 v33, 1, v33")
    k.i("v_xor_b32 v33, v33, v32")
    k.i("v_lshlrev_b32 v33, 4, v33")
    k.i("v_lshl_add_u32 v33, v15, 6, v33")
    k.i("s_mul_i32 s54, s3, %d" % (2 * ZRS))
    k.i("v_add_u32 v33, s54, v33")
    k.i("v_mul_u32_u24 v34, 272, v15")
    k.i("v_lshl_add_u32 v34, v32, 6, v34")
    k.i("s_lshl_b32 s54, s3, 2"); k.i("s_add_u32 s54, s54, %d" % A1)
    k.i("v_add_u32 v34, s54, v34")
    k.i("v_lshlrev_b32 v35, 3, v32")
    k.i("v_lshl_add_u32 v35, v15, 5, v35")
    k.i("s_mul_i32 s54, s48, 896")
    k.i("v_add_u32 v35, s54, v35")
    GR, GI, TC, TS, H0, H1 = 36, 40, 44, 48, 52, 56
    t0, t1, t2, t3 = 60, 61, 62, 63
    k.i("v_cvt_f32_u32 v64, v15")
    k.i("v_lshlrev_b32 v65, 2, v32"); k.i("v_cvt_f32_u32 v65, v65")
    k.i("v_mul_f32 v%d, %s, v64" % (t3, f32(1.0 / 16)))
    for j in range(4):
        k.i("v_add_f32 v%d, %s, v65" % (t0, fi(j))); k.i("v_mul_f32 v%d, v%d, v%d" % (t0, t0, t3))
        k.i("v_cos_f32 v%d, v%d" % (t1, t0)); k.i("v_sin_f32 v%d, v%d" % (t2, t0))
        cvtpk(k, GR + j, t1, t2, neg_hi=True); cvtpk(k, GI + j, t2, t1)
    k.i("v_mul_f32 v%d, %s, v64" % (t3, f32(1.0 / 448)))
    for j in range(4):
        k.i("v_add_f32 v%d, %s, v65" % (t0, fi(j))); k.i("v_mul_f32 v%d, v%d, v%d" % (t0, t0, t3))
        k.i("v_cos_f32 v%d, v%d" % (TC + j, t0)); k.i("v_sin_f32 v%d, v%d" % (TS + j, t0))
    for tile, H in ((0, H0), (1, H1)):
        k.i("v_add_f32 v%d, %s, v64" % (t3, fi(16 * tile)))
        k.i("v_mul_f32 v%d, %s, v%d" % (t3, f32(1.0 / 28), t3))
        for j in range(4):
            k.i("v_add_f32 v%d, %s, v65" % (t0, fi(j))); k.i("v_mul_f32 v%d, v%d, v%d" % (t0, t0, t3))
            k.i("v_cos_f32 v%d, v%d" % (t1, t0)); k.i("v_sin_f32 v%d, v%d" % (t2, t0))
            cvtpk(k, H + j, t1, t2, neg_hi=True)
    k.i("v_cmp_gt_u32 vcc, 3, v32")
    k.i("v_cndmask_b32 v%d, 0, v%d, vcc" % (H0 + 3, H0 + 3))
    k.i("v_cndmask_b32 v%d, 0, v%d, vcc" % (H1 + 3, H1 + 3))
    stamp(k, 2)
    if fused:
        grid_arrive_and_wait(k, fused)
        loads()
    k.i("s_waitcnt vmcnt(2) lgkmcnt(0)")
    stamp(k, 3)
    for rr in range(2):
        k.i("s_mov_b32 s%d, s%d" % (64 + 2 * rr, 60 + rr)); k.i("s_mov_b32 s%d, s%d" % (65 + 2 * rr, 60 + rr))
    for i in range(2):
        for e in range(4):
            k.i("ds_write_b32 v13, v%d offset:%d" % (ZL + 4 * i + e, ZI + 512 * i + ZRS * e))
    k.i("s_waitcnt lgkmcnt(0)")
    k.i("s_barrier")
    stamp(k, 4)
    blk = Block()
    class W_:
        def i(self, t): blk.i(t)
    w = W_()
    ZA, AV = 16, 68
    DR, DI = 96, 84
    for rr in range(2):
        w.i("ds_read_b128 %s, v33 offset:%d" % (v(ZA + 4 * rr, 4), ZI + ZRS * rr))
    for rr in range(2):
        mfma(w, DR + 4 * rr, ZA + 4 * rr, GR, "0")
        mfma(w, DI + 4 * rr, ZA + 4 * rr, GI, "0")
    for rr in range(2):
        twiddle4(w, DR + 4 * rr, DI + 4 * rr, TC, TS, 60 + 32 * rr, 62 + 32 * rr)
        for j in range(4): cvtpk(w, ZA + 4 * rr + j, DR + 4 * rr + j, DI + 4 * rr + j)
    for rr in range(2):
        mfma(w, DR + 4 * rr, ZA + 4 * rr, H0, "0")
        mfma(w, DI + 4 * rr, ZA + 4 * rr, H1, "0")
    blk.emit(k)
    k.i("s_waitcnt vmcnt(0)")
    k.i("ds_write_b128 v14, %s" % v(AL, 4))
    k.i("s_cmp_lt_u32 s3, 3")
    k.i("s_cbranch_scc0 L_k3_noa1")
    k.i("ds_write_b128 v14, %s offset:%d" % (v(AL + 4, 4), 16 * 272))
    k.label("L_k3_noa1")
    k.i("s_waitcnt lgkmcnt(0)")
    k.i("s_barrier")
    stamp(k, 5)
    blk = Block()
    for rr in range(2):
        for tile in range(2):
            for j in range(4):
                w.i("ds_read_u16 v%d, v34 offset:%d" % (AV + 8 * rr + 4 * tile + j, 16 * 272 * tile + 16 * j + 2 * rr))
    outs = []
    for rr in range(2):
        for tile in range(2):
            b = (DR if tile == 0 else DI) + 4 * rr; a = AV + 8 * rr + 4 * tile
            for j in range(4): w.i("v_lshlrev_b32 v%d, 16, v%d" % (a + j, a + j))
            w.i("v_pk_add_f32 %s, %s, %s neg_lo:[0,1] neg_hi:[0,1]" % (v(a, 2), v(a, 2), v(b, 2)))
            w.i("v_pk_add_f32 %s, %s, %s neg_lo:[0,1] neg_hi:[0,1]" % (v(a + 2, 2), v(a + 2, 2), v(b + 2, 2)))
            g = 64 + 2 * rr
            w.i("v_pk_fma_f32 %s, %s, s[%d:%d], %s" % (v(a, 2), v(a, 2), g, g + 1, v(b, 2)))
            w.i("v_pk_fma_f32 %s, %s, s[%d:%d], %s" % (v(a + 2, 2), v(a + 2, 2), g, g + 1, v(b + 2, 2)))
            o = 4 + 2 * (2 * rr + tile)
            cvtpk(w, o, a, a + 1); cvtpk(w, o + 1, a + 2, a + 3)
            if tile == 0:
                w.i("buffer_store_dwordx2 %s, v35, s[56:59], 0 offen offset:%d%s" % (v(o, 2), 896 * rr, stf("OUT", " sc1")))
            else: outs.append((o, rr))
    est = blk.emit(k); k.c("k3 estimate %d" % est)
    k.i("s_mov_b32 exec_lo, 0x0fff0fff"); k.i("s_mov_b32 exec_hi, 0x0fff0fff")
    for (o, rr) in outs:
        k.i("buffer_store_dwordx2 %s, v35, s[56:59], 0 offen offset:%d%s" % (v(o, 2), 896 * rr + 512, stf("OUT", " sc1")))
    endpgm(k, 1 if fused else 2)
```

```python
from asmlib import *
PADB = int(__import__('os').environ.get('PADB', '256'))
SW2 = 225 * 128 + 128
SX1, SUT, SWT, SZ, SAT = 16384 + PADB, 14336 + PADB, 8192 + PADB, 8192 + PADB, 4096 + PADB
WS_X1 = 0x000000
WS_UT = 0x300000
WS_G  = 0x5F0000
WS_KR = 0x600000
KSTR  = 2048
WS_WT = 0x800000
WS_Z  = 0xB00000
WS_AT = 0xE00000
WS_SIZE = 0x1200000
LOG2E = 0x3FB8AA3B
INV2PI = "0.15915494"
P_U, P_ARE, P_AIM, P_BRE, P_BIM, P_CRE, P_CIM, P_LOGDT = 16, 18, 20, 22, 24, 26, 28, 30
P_DSKIP, P_BX, P_WR, P_WI, P_GW, P_OUT, P_DBG, P_WS = 32, 34, 36, 38, 40, 42, 44, 46
def sp(n): return s(n, 2)

def f32(x):
    import struct
    return "0x%08x" % struct.unpack("<I", struct.pack("<f", x))[0]

def load_kernargs(k):
    k.i("s_load_dwordx16 s[16:31], s[0:1], 0")
    k.i("s_load_dwordx16 s[32:47], s[0:1], 64")

def ws_srd(k, base=8, off=0, size=WS_SIZE):
    if off:
        k.i("s_add_u32 s%d, s%d, 0x%x" % (base, P_WS, off))
        k.i("s_addc_u32 s%d, s%d, 0" % (base + 1, P_WS + 1))
    else:
        k.i("s_mov_b32 s%d, s%d" % (base, P_WS))
        k.i("s_mov_b32 s%d, s%d" % (base + 1, P_WS + 1))
    k.i("s_mov_b32 s%d, 0x%x" % (base + 2, size))
    k.i("s_mov_b32 s%d, 0x20000" % (base + 3))

def srd(k, base, ptr, size):
    k.i("s_mov_b32 s%d, s%d" % (base, ptr))
    k.i("s_mov_b32 s%d, s%d" % (base + 1, ptr + 1))
    k.i("s_mov_b32 s%d, 0x%x" % (base + 2, size))
    k.i("s_mov_b32 s%d, 0x20000" % (base + 3))

def cmul(k, dst, x, y, tmp, conj_out=False):
    k.i("v_pk_mul_f32 %s, %s, %s op_sel:[0,0] op_sel_hi:[0,1]" % (v(tmp, 2), v(x, 2), v(y, 2)))
    if conj_out:
        k.i("v_pk_fma_f32 %s, %s, %s, %s op_sel:[1,1,0] op_sel_hi:[1,0,1] neg_lo:[0,1,0] neg_hi:[1,0,1]" % (v(dst, 2), v(x, 2), v(y, 2), v(tmp, 2)))
    else:
        k.i("v_pk_fma_f32 %s, %s, %s, %s op_sel:[1,1,0] op_sel_hi:[1,0,1] neg_lo:[0,1,0]" % (v(dst, 2), v(x, 2), v(y, 2), v(tmp, 2)))

def mfma(k, d, a, b, c):
    cs = v(c, 4) if isinstance(c, int) else c
    k.i("v_mfma_f32_16x16x32_bf16 %s, %s, %s, %s" % (v(d, 4), v(a, 4), v(b, 4), cs))

def cvtpk(k, d, lo, hi, neg_lo=False, neg_hi=False):
    k.i("v_cvt_pk_bf16_f32 %s, %s%s, %s%s" % (v(d), "-" if neg_lo else "", v(lo), "-" if neg_hi else "", v(hi)))

def twiddle4(k, re, im, c, sn, t0, t1):
    for h in (0, 2):
        k.i("v_pk_mul_f32 %s, %s, %s" % (v(t0, 2), v(re + h, 2), v(c + h, 2)))
        k.i("v_pk_mul_f32 %s, %s, %s" % (v(t1, 2), v(re + h, 2), v(sn + h, 2)))
        k.i("v_pk_fma_f32 %s, %s, %s, %s neg_lo:[0,1,0] neg_hi:[0,1,0]" % (v(re + h, 2), v(im + h, 2), v(sn + h, 2), v(t0, 2)))
        k.i("v_pk_fma_f32 %s, %s, %s, %s" % (v(im + h, 2), v(im + h, 2), v(c + h, 2), v(t1, 2)))

def twiddle4s(k, re, im, c, sn, t0, t1):
    for j in range(4):
        a, b = (t0, t0 + 1) if j & 1 == 0 else (t1, t1 + 1)
        k.i("v_mul_f32 v%d, v%d, v%d" % (a, re + j, c + j))
        k.i("v_mul_f32 v%d, v%d, v%d" % (b, re + j, sn + j))
        k.i("v_fma_f32 v%d, -v%d, v%d, v%d" % (re + j, im + j, sn + j, a))
        k.i("v_fma_f32 v%d, v%d, v%d, v%d" % (im + j, im + j, c + j, b))

def kernel_header(k, name):
    k.raw(".globl %s" % name)
    k.raw(".p2align 8")
    k.raw(".type %s,@function" % name)
    k.raw(name + ":")

def kernel_desc(name, vgpr, sgpr=96):
    acc = (vgpr + 3) // 4 * 4
    return """.amdhsa_kernel %s
  .amdhsa_next_free_vgpr %d
  .amdhsa_next_free_sgpr %d
  .amdhsa_accum_offset %d
  .amdhsa_group_segment_fixed_size 0
  .amdhsa_kernarg_size 128
  .amdhsa_user_sgpr_count 2
  .amdhsa_user_sgpr_kernarg_segment_ptr 1
  .amdhsa_system_sgpr_workgroup_id_x 1
  .amdhsa_float_denorm_mode_32 3
.end_amdhsa_kernel
""" % (name, vgpr, sgpr, acc)

import os
DIAG = os.environ.get("DIAG") == "1"
WS_DIAG = 0x1400000
def stamp(k, i):
    if DIAG: k.i("s_memtime s[%d:%d]" % (72 + 2 * i, 73 + 2 * i))
def diag_begin(k):
    if DIAG:
        k.i("s_memrealtime s[88:89]")
        k.i("s_memtime s[72:73]")
        k.i("s_mov_b32 s95, s2")
_dn = [0]
def endpgm(k, kidx):
    if DIAG:
        k.i("s_mov_b64 exec, -1")
        k.i("s_waitcnt vmcnt(0) lgkmcnt(0)")
        k.i("s_memtime s[86:87]")
        k.i("s_memrealtime s[90:91]")
        k.i("s_waitcnt lgkmcnt(0)")
        k.i("s_lshl_b32 s94, s95, 2"); k.i("s_and_b32 s93, s3, 3"); k.i("s_add_u32 s94, s94, s93"); k.i("s_add_u32 s94, s94, %d" % (kidx * 2048))
        k.i("s_lshl_b32 s94, s94, 6"); k.i("s_add_u32 s94, s94, 0x%x" % WS_DIAG)
        k.i("s_load_dwordx2 s[92:93], s[0:1], 120"); k.i("s_waitcnt lgkmcnt(0)")
        k.i("s_add_u32 s92, s92, s94"); k.i("s_addc_u32 s93, s93, 0")
        k.i("s_mov_b64 exec, 1")
        vals = ["s88", "s90"] + ["s%d" % (72 + 2 * i) for i in range(8)]
        for n, r in enumerate(vals):
            k.i("v_mov_b32 v1, %s" % r); k.i("v_mov_b32 v0, %d" % (4 * n))
            k.i("global_store_dword v0, v1, s[92:93]")
            k.i("s_nop 1")
    k.i("s_endpgm")

def code_prefetch(k, vbase, label):
    k.i("s_getpc_b64 s[66:67]")
    k.raw(label + ":")
    k.raw("    s_sub_u32 s66, s66, (%s - code_begin)" % label)
    k.i("s_subb_u32 s67, s67, 0")
    for h in range(2):
        k.i("v_lshlrev_b32 v%d, 6, v0" % (vbase + 2 * h))
        if h: k.i("v_add_u32 v%d, 0x4000, v%d" % (vbase + 2 * h, vbase + 2 * h))
        k.raw("    v_min_u32 v%d, (code_end - code_begin - 4), v%d" % (vbase + 2 * h, vbase + 2 * h))
        k.i("v_mov_b32 v%d, s67" % (vbase + 2 * h + 1))
        k.i("v_add_co_u32 v%d, vcc, s66, v%d" % (vbase + 2 * h, vbase + 2 * h))
        k.i("v_addc_co_u32 v%d, vcc, 0, v%d, vcc" % (vbase + 2 * h + 1, vbase + 2 * h + 1))
        k.i("global_load_dword v%d, %s, off" % (vbase + 4 + h, v(vbase + 2 * h, 2)))

def stf(name, default=""):
    return os.environ.get("STF_" + name, default)

def grid_arrive(k, lab):
    k.i("s_waitcnt vmcnt(0)")
    k.i("s_barrier")
    k.i("s_cmp_eq_u32 s3, 0")
    k.i("s_cbranch_scc0 %s" % lab)
    k.i("s_mov_b64 exec, 1")
    k.i("v_mov_b32 v1, 0"); k.i("v_mov_b32 v2, 1")
    k.i("global_atomic_add v1, v2, %s" % sp(P_DBG))
    k.i("s_mov_b64 exec, -1")
    k.label(lab)

def grid_arrive_and_wait(k, target):
    grid_arrive(k, "L_arr_w")
    k.i("s_cmp_eq_u32 s3, 0")
    k.i("s_cbranch_scc0 L_poll_done")
    k.i("s_mov_b32 s70, 0")
    k.i("v_mov_b32 v1, 0")
    k.label("L_poll", loop=True)
    k.i("global_load_dword v2, v1, %s sc1" % sp(P_DBG))
    k.i("s_waitcnt vmcnt(0)")
    k.i("v_readfirstlane_b32 s71, v2")
    k.i("s_add_u32 s70, s70, 1")
    k.i("s_cmp_ge_u32 s71, %d" % target)
    k.i("s_cbranch_scc1 L_poll_done")
    k.i("s_sleep %d" % int(os.environ.get("POLL_SLEEP", "1")))
    k.i("s_cmp_lt_u32 s70, 0x40000")
    k.i("s_cbranch_scc1 L_poll")
    k.label("L_poll_done")
    k.i("s_barrier")
```

```python
from common import *
from sched import Block

import os
PREFETCH = int(os.environ.get('PREFETCH', '16'))
TOUCH = int(os.environ.get('TOUCH', '0'))
K1_NK, K1_NR, K1_NW = 224, 128, 128
K1_GRID = K1_NK + K1_NR + K1_NW
ORDER = os.environ.get("K1_ORDER", "krw")
_sz = {"k": K1_NK, "r": K1_NR, "w": K1_NW}
OFF = {}
_o = 0
for _c in ORDER:
    OFF[_c] = _o; _o += _sz[_c]
K1_LDS = 4 * 13568
TROW = 256
WVB = 53 * TROW
CHB = 2 * WVB
T2OFF = 2048

def role_kgen(k):
    W, CH, WP, D = 3, 12, 13, 14
    if OFF["k"]: k.i("s_sub_u32 s2, s2, %d" % OFF["k"])
    k.i("v_lshrrev_b32 v1, 6, v0")
    k.i("v_and_b32 v2, 63, v0")
    k.i("v_readfirstlane_b32 s3, v1")
    k.i("s_lshl_b32 s15, s2, 2")
    k.i("s_lshr_b32 s12, s3, 1")
    k.i("s_and_b32 s13, s3, 1")
    k.i("s_lshl_b32 s14, s2, 1")
    k.i("s_add_u32 s14, s14, s12")
    k.i("s_lshl_b32 s48, s14, 9")
    k.i("s_lshl_b32 s49, s13, 8")
    k.i("s_add_u32 s48, s48, s49")
    k.i("v_lshl_add_u32 v1, v2, 2, s48")
    k.i("s_waitcnt lgkmcnt(0)")
    stamp(k, 1)
    k.i("s_load_dword s50, %s, s15" % sp(P_LOGDT))
    for j, p in enumerate((P_ARE, P_AIM, P_BRE, P_BIM, P_CRE, P_CIM)):
        k.i("global_load_dword v%d, v1, %s" % (4 + j, sp(p)))
    if TOUCH:
        k.i("s_cmp_lt_u32 s2, 16")
        k.i("s_cbranch_scc0 L_kg_notouch")
        k.i("v_lshlrev_b32 v122, 21, v2")
        k.i("v_mov_b32 v123, 0")
        k.i("s_mov_b32 exec_hi, 0"); k.i("s_mov_b32 exec_lo, 0x3ff")
        k.i("global_load_dword v124, v122, %s" % sp(P_WS))
        k.i("s_mov_b32 exec_lo, 1")
        k.i("global_load_dword v125, v123, %s" % sp(P_OUT))
        k.i("global_load_dword v126, v123, %s" % sp(P_DSKIP))
        k.i("s_mov_b64 exec, -1")
        k.label("L_kg_notouch")
    ws_srd(k)
    k.i("s_mul_i32 s51, s12, %d" % CHB)
    k.i("s_mul_i32 s52, s3, %d" % WVB)
    k.i("s_add_u32 s51, s51, %d" % T2OFF)
    k.i("v_lshrrev_b32 v10, 2, v2")
    k.i("v_and_b32 v11, 3, v2")
    k.i("v_lshl_add_u32 v11, v11, 2, s52")
    for c in range(16):
        k.i("v_xor_b32 v12, %d, v10" % c)
        k.i("v_lshl_add_u32 v%d, v12, 4, v11" % (104 + c))
    k.i("v_and_b32 v10, 15, v2")
    k.i("v_lshrrev_b32 v11, 4, v2")
    k.i("v_lshl_add_u32 v13, v10, 8, s52")
    for q in range(4):
        k.i("v_or_b32 v12, %d, v11" % (4 * q))
        k.i("v_xor_b32 v12, v12, v10")
        k.i("v_lshl_add_u32 v%d, v12, 4, v13" % (100 + q))
    k.i("v_lshl_add_u32 v72, v2, 4, s52")
    k.i("s_xor_b32 s53, s3, 1"); k.i("s_mul_i32 s53, s53, %d" % WVB)
    k.i("v_lshl_add_u32 v73, v2, 4, s53")
    k.i("s_lshl_b32 s54, s13, 4")
    k.i("v_add_u32 v13, s54, v10")
    k.i("v_and_b32 v87, 3, v13")
    k.i("v_lshrrev_b32 v14, 2, v13")
    k.i("v_lshlrev_b32 v13, 5, v13")
    k.i("v_lshl_add_u32 v13, v14, 2, v13")
    k.i("v_add_u32 v13, s51, v13")
    k.i("v_max_u32 v14, 1, v11")
    k.i("v_lshlrev_b32_e64 v15, v14, 2")
    k.i("v_lshlrev_b32 v16, 4, v11")
    k.i("v_subrev_u32 v17, 1, v11")
    k.i("v_mul_u32_u24 v17, 1056, v17")
    k.i("v_cmp_gt_u32 vcc, 2, v11")
    k.i("v_cndmask_b32 v16, v17, v16, vcc")
    k.i("v_add_u32 v74, v13, v16")
    k.i("v_add_u32 v75, v74, v15")
    k.i("v_lshlrev_b32 v17, 1, v15")
    k.i("v_mov_b32 v18, 1056")
    k.i("v_cmp_eq_u32 vcc, 3, v11")
    k.i("v_cndmask_b32 v17, v17, v18, vcc")
    k.i("v_add_u32 v76, v74, v17")
    k.i("v_add_u32 v77, v76, v15")
    k.i("v_mul_u32_u24 v17, 4224, v11")
    k.i("v_add_u32 v78, v13, v17")
    k.i("v_cmp_eq_u32 vcc, 0, v87")
    k.i("v_cndmask_b32_e64 v87, 4, 8, vcc")
    k.i("v_sub_u32 v87, v74, v87")
    k.i("s_lshl_b32 s57, s13, 6")
    k.i("v_add_u32 v88, s57, v2")
    k.i("v_sub_u32 v89, 69, v88")
    k.i("v_lshlrev_b32 v89, 3, v89")
    k.i("v_mov_b32 v90, 1")
    k.i("v_mov_b32 v16, 2059")
    k.i("v_mov_b32 v17, 2056")
    k.i("v_cmp_eq_u32 vcc, 5, v88")
    k.i("v_cndmask_b32 v89, v89, v17, vcc")
    k.i("v_subrev_u32 v14, 74, v88")
    k.i("v_mul_u32_u24 v15, 43, v14")
    k.i("v_lshrrev_b32 v15, 8, v15")
    k.i("v_mul_u32_u24 v17, 6, v15")
    k.i("v_sub_u32 v17, v14, v17")
    k.i("v_lshlrev_b32 v18, 7, v17")
    k.i("v_sub_u32 v18, %d, v18" % (16 * 72 + 4))
    k.i("v_lshl_add_u32 v18, v15, 2, v18")
    k.i("v_cmp_le_u32 vcc, 74, v88")
    k.i("v_cndmask_b32 v89, v89, v18, vcc")
    k.i("v_mov_b32 v19, 16")
    k.i("v_cndmask_b32 v90, v90, v19, vcc")
    k.i("v_cmp_gt_u32 s[60:61], 2, v17")
    k.i("s_and_b64 s[60:61], s[60:61], vcc")
    k.i("v_subrev_u32 v14, 100, v88")
    k.i("v_cmp_le_u32 vcc, 110, v88")
    k.i("v_cndmask_b32_e64 v15, 0, 1, vcc")
    k.i("v_mul_u32_u24 v17, 10, v15")
    k.i("v_sub_u32 v17, v14, v17")
    k.i("v_lshlrev_b32 v18, 7, v17")
    k.i("v_sub_u32 v18, %d, v18" % (16 * 120 + 8))
    k.i("v_lshl_add_u32 v18, v15, 3, v18")
    k.i("v_cmp_le_u32 vcc, 100, v88")
    k.i("v_cndmask_b32 v89, v89, v18, vcc")
    k.i("s_andn2_b64 s[60:61], s[60:61], vcc")
    k.i("v_cmp_le_u32 s[62:63], 8, v17")
    k.i("s_and_b64 s[62:63], s[62:63], vcc")
    k.i("s_or_b64 s[60:61], s[60:61], s[62:63]")
    k.i("v_cmp_gt_u32 vcc, 5, v88"); k.i("s_or_b64 s[60:61], s[60:61], vcc")
    k.i("v_subrev_u32 v14, 70, v88"); k.i("v_cmp_gt_u32 vcc, 4, v14"); k.i("s_or_b64 s[60:61], s[60:61], vcc")
    k.i("v_subrev_u32 v14, 98, v88"); k.i("v_cmp_gt_u32 vcc, 2, v14"); k.i("s_or_b64 s[60:61], s[60:61], vcc")
    k.i("v_cmp_le_u32 vcc, 120, v88"); k.i("s_or_b64 s[60:61], s[60:61], vcc")
    k.i("v_cndmask_b32 v89, v89, v16, s[60:61]")
    k.i("v_cndmask_b32_e64 v90, v90, 0, s[60:61]")
    for i in range(8):
        k.i("v_mad_u32_u24 v14, v90, %d, v89" % (7 - i))
        k.i("v_lshrrev_b32 v15, 5, v14")
        k.i("v_add_u32 v14, v14, v15")
        k.i("v_lshl_add_u32 v%d, v14, 2, s51" % (92 + i))
    k.i("s_waitcnt lgkmcnt(0)")
    k.i("s_lshl_b32 s55, s12, 4")
    k.i("s_lshr_b32 s50, s50, s55")
    k.i("s_lshl_b32 s50, s50, 16")
    k.i("v_mov_b32 v86, s50")
    k.i("v_mul_f32 v86, 0x%x, v86" % LOG2E)
    k.i("v_exp_f32 v86, v86")
    k.i("v_cvt_pk_bf16_f32 v86, v86, v86")
    k.i("v_and_b32 v86, 0xffff0000, v86")
    k.i("s_waitcnt vmcnt(0)")
    stamp(k, 2)
    blk = Block()
    class W:
        def i(self, t): blk.i(t)
    w = W()
    ACC = {(0, 0): 40, (1, 0): 44, (0, 1): 120, (1, 1): 124}
    for rnd in range(2):
        z1, z2, z3, z4, z6, Z, cur, tmp = 12, 14, 16, 18, 20, 22, 24, 26
        b0, b1, wc, w16, tb0, tb1, Zp, cur2, tmp2 = 28, 30, 32, 48, 50, 52, 54, 56, 58
        U = 80 if rnd == 0 else 4
        for j in range(6):
            if rnd == 0: w.i("v_lshlrev_b32 v%d, 16, v%d" % (80 + j, 4 + j))
            else: w.i("v_and_b32 v%d, 0xffff0000, v%d" % (4 + j, 4 + j))
        are, aim, bre, bim, cre, cim = U, U + 1, U + 2, U + 3, U + 4, U + 5
        la, ph = (10, 11) if rnd == 0 else (34, 35)
        w.i("v_mul_f32 v%d, v86, v%d" % (la, are))
        w.i("v_mul_f32 v%d, v86, v%d" % (ph, aim))
        w.i("v_mul_f32 v%d, 0x%x, v%d" % (la, LOG2E, la))
        w.i("v_mul_f32 v%d, %s, v%d" % (ph, INV2PI, ph))
        w.i("v_mul_f32 v%d, v86, v%d" % (bre, bre))
        w.i("v_mul_f32 v%d, v86, v%d" % (bim, bim))
        cmul(w, b0, cre, bre, tb0, conj_out=True)
        def direct(dst, mult, conj, t):
            if mult == 1:
                w.i("v_exp_f32 v%d, v%d" % (t, la)); w.i("v_fract_f32 v%d, v%d" % (t + 1, ph))
            else:
                w.i("v_mul_f32 v%d, %s, v%d" % (t, f32(mult), la))
                w.i("v_mul_f32 v%d, %s, v%d" % (t + 1, f32(-mult if conj else mult), ph))
                w.i("v_exp_f32 v%d, v%d" % (t, t)); w.i("v_fract_f32 v%d, v%d" % (t + 1, t + 1))
            w.i("v_cos_f32 v%d, v%d" % (dst, t + 1))
            w.i("v_sin_f32 v%d, v%d" % (dst + 1, t + 1))
            w.i("v_pk_mul_f32 %s, %s, %s op_sel_hi:[1,0]" % (v(dst, 2), v(dst, 2), v(t, 2)))
        direct(wc, 8, True, 60)
        direct(w16, 128, True, 62)
        direct(z1, 1, False, 64)
        direct(Z, 256, False, 60)
        tcount = [0]
        def tmpreg():
            t = 66 + 2 * (tcount[0] % 3); tcount[0] += 1
            return t
        def put(row, cls, reg):
            t = tmpreg(); cvtpk(w, t, reg, reg + 1)
            w.i("ds_write_b32 v%d, v%d offset:%d" % (104 + cls, t, row * TROW))
        def put2(rowa, rega, rowb, regb, cls):
            t = tmpreg()
            if rega is None: w.i("v_mov_b32 v%d, 0x3f80" % t)
            else: cvtpk(w, t, rega, rega + 1)
            cvtpk(w, t + 1, regb, regb + 1)
            w.i("ds_write2st64_b32 v%d, v%d, v%d offset0:%d offset1:%d" % (104 + cls, t, t + 1, rowa, rowb))
        cmul(w, b1, b0, w16, tb1)
        A = []
        A.append(lambda: (cmul(w, z2, z1, z1, tmp), cmul(w, Zp, Z, Z, tmp2), put(8, 8, Z), put(12, 12, Zp)))
        A.append(lambda: (cmul(w, z4, z2, z2, tmp), cmul(w, cur2, Zp, Zp, tmp2), put2(0, None, 16, cur2, 0)))
        A.append(lambda: (cmul(w, cur, Zp, z4, tmp), put(13, 13, cur)))
        A.append(lambda: (cmul(w, Zp, Zp, Z, tmp2), put(14, 14, Zp)))
        A.append(lambda: (cmul(w, cur2, cur2, Z, tmp2), put2(1, z1, 17, cur2, 1)))
        A.append(lambda: (cmul(w, cur, Zp, z4, tmp), put(15, 15, cur)))
        A.append(lambda: (cmul(w, cur2, cur2, Z, tmp2), put2(2, z2, 18, cur2, 2)))
        A.append(lambda: (cmul(w, z3, z2, z1, tmp), cmul(w, cur2, cur2, Z, tmp2), put2(3, z3, 19, cur2, 3)))
        A.append(lambda: (cmul(w, cur2, cur2, Z, tmp2), put2(4, z4, 20, cur2, 4)))
        A.append(lambda: (cmul(w, cur, z4, z1, tmp), put(5, 5, cur)))
        A.append(lambda: (cmul(w, z6, z4, z2, tmp), put(6, 6, z6)))
        A.append(lambda: (cmul(w, cur, z4, z3, tmp), put(7, 7, cur)))
        A.append(lambda: (cmul(w, cur, Z, z2, tmp), put(9, 9, cur)))
        A.append(lambda: (cmul(w, cur, Z, z4, tmp), put(10, 10, cur)))
        A.append(lambda: (cmul(w, cur, Z, z6, tmp), put(11, 11, cur)))
        ai = 0
        for c in range(16):
            put2(21 + c, b0, 37 + c, b1, c)
            if c < 15:
                cmul(w, b0, b0, wc, tb0); cmul(w, b1, b1, wc, tb1)
            if ai < len(A): A[ai](); ai += 1
        assert ai == len(A)
        for q in range(4):
            f = (12, 48)[q & 1]
            for n, off in enumerate((0, 16, 21, 37)):
                w.i("ds_read_b128 %s, v%d offset:%d" % (v(f + 4 * n, 4), 100 + q, off * TROW))
            for M in range(2):
                for N in range(2):
                    a_ = ACC[(M, N)]
                    w.i("v_mfma_f32_16x16x32_bf16 %s, %s, %s, %s" % (v(a_, 4), v(f + 4 * M, 4), v(f + 8 + 4 * N, 4), "0" if (rnd == 0 and q == 0) else v(a_, 4)))
    est = blk.emit(k); k.c("kgen estimate %d" % est)
    stamp(k, 5)
    k.i("s_cmp_eq_u32 s13, 0")
    k.i("s_cbranch_scc1 L_kg_keep0")
    for j in range(4):
        k.i("v_swap_b32 v%d, v%d" % (40 + j, 120 + j)); k.i("v_swap_b32 v%d, v%d" % (44 + j, 124 + j))
    k.label("L_kg_keep0")
    k.i("ds_write_b128 v72, v[120:123]")
    k.i("ds_write_b128 v72, v[124:127] offset:1024")
    k.i("s_waitcnt lgkmcnt(0)")
    k.i("s_barrier")
    k.i("ds_read_b128 v[120:123], v73")
    k.i("ds_read_b128 v[124:127], v73 offset:1024")
    k.i("s_waitcnt lgkmcnt(1)")
    for j in range(0, 4, 2): k.i("v_pk_add_f32 %s, %s, %s" % (v(40 + j, 2), v(40 + j, 2), v(120 + j, 2)))
    k.i("s_waitcnt lgkmcnt(0)")
    for j in range(0, 4, 2): k.i("v_pk_add_f32 %s, %s, %s" % (v(44 + j, 2), v(44 + j, 2), v(124 + j, 2)))
    for j in range(4): k.i("ds_write_b32 v%d, v%d" % (74 + j, 40 + j))
    k.i("s_mov_b32 exec_hi, 0")
    k.i("ds_write_b32 v78, v44 offset:%d" % (1056 * 4))
    k.i("s_mov_b32 exec_lo, 0xffff")
    for j in range(1, 4): k.i("ds_write_b32 v78, v%d offset:%d" % (44 + j, 1056 * (4 + j)))
    k.i("s_mov_b32 exec_lo, 0"); k.i("s_mov_b32 exec_hi, 0xffff")
    k.i("ds_write_b32 v74, v40 offset:4")
    k.i("v_subrev_u32 v14, 4, v76")
    k.i("ds_write_b32 v76, v42 offset:4")
    k.i("ds_write_b32 v14, v42")
    k.i("s_cmp_eq_u32 s13, 0")
    k.i("s_cselect_b32 exec_hi, 0xfffe, exec_hi")
    k.i("ds_write_b32 v87, v40")
    k.i("s_mov_b64 exec, -1")
    k.i("v_mov_b32 v14, s51")
    k.i("v_mov_b32 v15, 0")
    k.i("s_cmp_eq_u32 s13, 0")
    k.i("s_cbranch_scc0 L_kg_nox")
    k.i("s_mov_b32 exec_lo, 0"); k.i("s_mov_b32 exec_hi, 0x10000")
    a511 = 4 * (511 + (511 >> 5)); ax = 4 * (2056 + (2056 >> 5))
    k.i("ds_write_b32 v14, v40 offset:%d" % a511)
    for e in range(3): k.i("ds_write_b32 v14, v40 offset:%d" % (ax + 4 * e))
    for e in range(3, 8): k.i("ds_write_b32 v14, v15 offset:%d" % (ax + 4 * e))
    k.i("s_mov_b64 exec, -1")
    k.label("L_kg_nox")
    k.i("s_mul_i32 s58, s14, %d" % KSTR)
    k.i("s_add_u32 s58, s58, 0x%x" % WS_KR)
    k.i("v_lshl_add_u32 v19, v88, 4, s58")
    k.i("v_cmp_gt_u32 vcc, 120, v88")
    k.i("s_waitcnt lgkmcnt(0)")
    k.i("s_barrier")
    stamp(k, 6)
    for i in range(8): k.i("ds_read_b32 v%d, v%d" % (24 + i, 92 + i))
    k.i("s_and_b64 exec, exec, vcc")
    for p in range(4):
        k.i("s_waitcnt lgkmcnt(%d)" % (6 - 2 * p))
        cvtpk(k, 56 + p, 24 + 2 * p, 25 + 2 * p)
    k.i("buffer_store_dwordx4 v[56:59], v19, s[8:11], 0 offen" + stf("KR", " sc1"))
    stamp(k, 4)
    endpgm(k, 0)

XROW = 928
GWB = 16 * XROW
XTB = GWB + 4 * 896
STF = os.environ.get('STF', ' sc1')

def sincos_neg(k, c, sn, ph):
    k.i("v_cos_f32 v%d, v%d" % (c, ph))
    k.i("v_sin_f32 v%d, v%d" % (sn, ph))

def role_row(k):
    if int(os.environ.get("PRIO_ROW", "0")): k.i("s_setprio %s" % os.environ["PRIO_ROW"])
    k.i("v_lshrrev_b32 v1, 6, v0")
    k.i("v_and_b32 v2, 63, v0")
    k.i("v_readfirstlane_b32 s3, v1")
    k.i("s_sub_u32 s12, s2, %d" % OFF["r"])
    k.i("s_lshl_b32 s12, s12, 4")
    k.i("s_lshl_b32 s13, s3, 2")
    k.i("s_add_u32 s14, s12, s13")
    k.i("s_mul_i32 s15, s14, 896")
    k.i("v_lshl_add_u32 v3, v2, 4, s15")
    k.i("v_lshlrev_b32 v4, 4, v2")
    k.i("s_waitcnt lgkmcnt(0)")
    stamp(k, 1)
    k.i("s_mov_b32 exec_hi, 0x00ffffff")
    for r in range(4):
        k.i("global_load_dwordx4 %s, v3, %s offset:%d" % (v(8 + 4 * r, 4), sp(P_U), 896 * r))
    k.i("global_load_dwordx4 v[24:27], v4, %s" % sp(P_GW))
    k.i("s_mov_b64 exec, -1")
    ws_srd(k)
    k.i("v_and_b32 v5, 15, v2")
    k.i("v_lshrrev_b32 v6, 4, v2")
    k.i("v_cvt_f32_u32 v28, v5")
    k.i("v_lshlrev_b32 v7, 2, v6")
    k.i("v_cvt_f32_u32 v29, v7")
    F28R, F28I = 32, 36
    k.i("v_mul_f32 v30, %s, v28" % f32(-1.0 / 28))
    for i in range(8):
        d = i if i < 4 else 16 + (i - 4)
        k.i("v_add_f32 v31, %s, v29" % (("%d.0" % d) if d in (1, 2, 4) else ("0" if d == 0 else f32(d))))
        k.i("v_mul_f32 v31, v31, v30")
        sincos_neg(k, 40 + i, 48 + i, 31)
    for i in range(4):
        cvtpk(k, F28R + i, 40 + 2 * i, 40 + 2 * i + 1)
        cvtpk(k, F28I + i, 48 + 2 * i, 48 + 2 * i + 1)
    k.i("v_cmp_gt_u32 vcc, 3, v6")
    for r in (F28R + 2, F28R + 3, F28I + 2, F28I + 3):
        k.i("v_cndmask_b32 v%d, 0, v%d, vcc" % (r, r))
    TC, TS = 40, 44
    k.i("v_mul_f32 v30, %s, v28" % f32(-1.0 / 448))
    for j in range(4):
        k.i("v_add_f32 v31, %s, v29" % (("%d.0" % j) if j in (1, 2) else ("0" if j == 0 else f32(j))))
        k.i("v_mul_f32 v31, v31, v30")
        sincos_neg(k, TC + j, TS + j, 31)
    F16R, F16I = 48, 52
    k.i("v_mul_f32 v30, %s, v28" % f32(-1.0 / 16))
    for j in range(4):
        k.i("v_add_f32 v31, %s, v29" % (("%d.0" % j) if j in (1, 2) else ("0" if j == 0 else f32(j))))
        k.i("v_mul_f32 v31, v31, v30")
        sincos_neg(k, 56, 57, 31)
        cvtpk(k, F16R + j, 56, 57, neg_hi=True)
        cvtpk(k, F16I + j, 57, 56)
    k.i("s_mul_i32 s48, s13, %d" % XROW)
    k.i("v_add_u32 v56, s48, v4")
    k.i("s_mul_i32 s49, s3, 896")
    k.i("s_add_u32 s49, s49, %d" % GWB)
    k.i("v_add_u32 v57, s49, v4")
    k.i("v_lshlrev_b32 v58, 3, v2")
    k.i("v_add_u32 v58, s48, v58")
    k.i("v_cmp_le_u32 vcc, 48, v2")
    k.i("v_cndmask_b32 v59, 0, -128, vcc" if False else "v_mov_b32 v59, 512")
    k.i("v_mov_b32 v60, 384")
    k.i("v_cndmask_b32 v59, v59, v60, vcc")
    k.i("v_add_u32 v59, v58, v59")
    k.i("v_and_b32 v60, 3, v2")
    k.i("v_mul_u32_u24 v60, %d, v60" % XROW)
    k.i("v_lshl_add_u32 v60, v6, 4, v60")
    k.i("v_add_u32 v60, s48, v60")
    k.i("v_lshlrev_b32 v61, 4, v6")
    k.i("v_add_u32 v61, s49, v61")
    k.i("v_mul_u32_u24 v62, 1040, v5")
    k.i("v_lshl_add_u32 v62, v6, 8, v62")
    k.i("s_lshl_b32 s51, s3, 4")
    k.i("s_add_u32 s51, s51, %d" % XTB)
    k.i("v_add_u32 v62, s51, v62")
    k.i("s_mul_i32 s51, s3, 1040"); k.i("s_add_u32 s51, s51, %d" % XTB)
    k.i("v_add_u32 v65, s51, v4")
    k.i("s_lshr_b32 s50, s12, 4"); k.i("s_mul_i32 s50, s50, %d" % SX1)
    k.i("s_lshl_b32 s51, s3, 10")
    k.i("s_add_u32 s50, s50, s51")
    k.i("s_add_u32 s50, s50, 0x%x" % WS_X1)
    k.i("v_add_u32 v66, s50, v4")
    k.i("v_and_b32 v63, 1, v6")
    k.i("v_lshlrev_b32 v63, 3, v63")
    k.i("v_lshrrev_b32 v64, 2, v5")
    k.i("v_add_u32 v63, v63, v64")
    k.i("v_mul_u32_u24 v63, %d, v63" % XROW)
    k.i("v_lshrrev_b32 v64, 1, v6")
    k.i("v_lshl_add_u32 v63, v64, 5, v63")
    k.i("v_and_b32 v67, 3, v2")
    k.i("v_lshl_add_u32 v63, v67, 3, v63")
    k.i("s_lshl_b32 s51, s3, 6")
    k.i("v_add_u32 v63, s51, v63")
    k.i("v_lshl_add_u32 v64, v64, 4, v5")
    k.i("v_lshlrev_b32 v64, 5, v64")
    k.i("v_and_b32 v67, 1, v6")
    k.i("v_lshl_add_u32 v64, v67, 4, v64")
    k.i("s_lshr_b32 s51, s12, 4"); k.i("s_mul_i32 s51, s51, %d" % SUT)
    k.i("s_lshl_b32 s55, s3, 10"); k.i("s_add_u32 s51, s51, s55")
    k.i("s_add_u32 s51, s51, 0x%x" % WS_UT)
    k.i("v_add_u32 v64, s51, v64")
    k.i("s_mov_b32 s56, 4096"); k.i("s_mov_b32 s57, 8192"); k.i("s_mov_b32 s58, 12288")
    k.i("s_cmp_lt_u32 s3, 2"); k.i("s_cselect_b32 s58, s58, 0x7ff00000")
    k.i("s_waitcnt vmcnt(0)")
    stamp(k, 3)
    k.i("s_mov_b32 exec_hi, 0x00ffffff")
    for r in range(4):
        k.i("ds_write_b128 v56, %s offset:%d" % (v(8 + 4 * r, 4), XROW * r))
    k.i("ds_write_b128 v57, v[24:27]")
    k.i("s_mov_b64 exec, -1")
    XA = 8
    for r in range(4):
        k.i("ds_read_b64_tr_b16 %s, v58 offset:%d" % (v(XA + 4 * r, 2), XROW * r))
        k.i("ds_read_b64_tr_b16 %s, v59 offset:%d" % (v(XA + 4 * r + 2, 2), XROW * r))
    k.i("s_waitcnt lgkmcnt(0)")
    k.i("s_barrier")
    stamp(k, 4)
    DR, DI = 68, 84
    blk = Block()
    class W:
        def i(self, t): blk.i(t)
    w = W()
    for it in range(4):
        w.i("ds_read_b64_tr_b16 %s, v63 offset:%d" % (v(100 + 4 * it, 2), 256 * it))
        w.i("ds_read_b64_tr_b16 %s, v63 offset:%d" % (v(102 + 4 * it, 2), 256 * it + 4 * XROW))
    for r in range(4):
        mfma(w, DR + 4 * r, XA + 4 * r, F28R, "0")
        mfma(w, DI + 4 * r, XA + 4 * r, F28I, "0")
    for it in range(4):
        w.i("buffer_store_dwordx4 %s, v64, s[8:11], %s offen%s" % (v(100 + 4 * it, 4), "0" if it == 0 else "s%d" % (55 + it), stf("UT", " sc1")))
    P = 8; O = 8
    for r in range(4):
        twiddle4(w, DR + 4 * r, DI + 4 * r, TC, TS, 28 + 92 * (r & 1), 30 + 92 * (r & 1))
        for j in range(4): cvtpk(w, P + 4 * r + j, DR + 4 * r + j, DI + 4 * r + j)
    for r in range(4):
        mfma(w, DR + 4 * r, F16R, P + 4 * r, "0")
        mfma(w, DI + 4 * r, F16I, P + 4 * r, "0")
    for r in range(4):
        for j in range(4): cvtpk(w, O + 4 * j + r, DR + 4 * r + j, DI + 4 * r + j)
    for j in range(4):
        w.i("ds_write_b128 v62, %s offset:%d" % (v(O + 4 * j, 4), 64 * j))
    est = blk.emit(k); k.c("row main estimate %d" % est)
    k.i("s_waitcnt lgkmcnt(0)")
    k.i("s_barrier")
    stamp(k, 5)
    for i in range(4):
        if i == 3:
            k.i("s_cmp_eq_u32 s3, 3"); k.i("s_cbranch_scc1 L_row_no15")
        k.i("ds_read_b128 %s, v65 offset:%d" % (v(8 + 4 * i, 4), 4160 * i))
    k.label("L_row_no15")
    blk = Block(); GA = 116
    k.i("s_mov_b32 s52, 4096"); k.i("s_mov_b32 s53, 8192"); k.i("s_mov_b32 s54, 12288")
    k.i("s_waitcnt lgkmcnt(0)")
    for i in range(4):
        if i == 3:
            k.i("s_cmp_eq_u32 s3, 3"); k.i("s_cbranch_scc1 L_row_no15s")
        k.i("buffer_store_dwordx4 %s, v66, s[8:11], %s offen%s" % (v(8 + 4 * i, 4), "0" if i == 0 else "s%d" % (51 + i), stf("X1", " sc1")))
    k.label("L_row_no15s")
    stamp(k, 6)
    for q in range(14):
        a_, b_ = 68 + 8 * (q % 4), 72 + 8 * (q % 4)
        blk.i("ds_read_b128 %s, v60 offset:%d" % (v(a_, 4), 64 * q))
        blk.i("ds_read_b128 %s, v61 offset:%d" % (v(b_, 4), 64 * q))
        blk.i("v_mfma_f32_16x16x32_bf16 %s, %s, %s, %s" % (v(GA, 4), v(a_, 4), v(b_, 4), "0" if q == 0 else v(GA, 4)))
    blk.emit(k)
    for j in range(4):
        k.i("v_mul_f32 v%d, %s, v%d" % (GA + j, f32(-1.4426950408889634), GA + j))
    for j in range(4): k.i("v_exp_f32 v%d, v%d" % (GA + j, GA + j))
    for j in range(4): k.i("v_add_f32 v%d, 1.0, v%d" % (GA + j, GA + j))
    for j in range(4): k.i("v_rcp_f32 v%d, v%d" % (GA + j, GA + j))
    k.i("s_lshl_b32 s50, s14, 2")
    k.i("s_add_u32 s50, s50, 0x%x" % WS_G)
    k.i("v_mov_b32 v28, s50")
    k.i("s_mov_b32 exec_hi, 0")
    k.i("s_mov_b32 exec_lo, 1")
    k.i("buffer_store_dwordx4 %s, v28, s[8:11], 0 offen" % v(GA, 4))
    endpgm(k, 0)

WROW = 288
WARR = 32 * WROW

def role_w(k):
    if int(os.environ.get("PRIO_W", "0")): k.i("s_setprio %s" % os.environ["PRIO_W"])
    k.i("v_lshrrev_b32 v1, 6, v0")
    k.i("v_and_b32 v2, 63, v0")
    k.i("v_readfirstlane_b32 s3, v1")
    k.i("s_sub_u32 s14, s2, %d" % OFF["w"])
    k.i("s_lshr_b32 s12, s14, 1")
    k.i("s_and_b32 s14, s14, 1")
    k.i("s_and_b32 s13, s12, 1")
    k.i("v_lshrrev_b32 v3, 4, v2")
    k.i("s_lshl_b32 s15, s3, 3")
    k.i("v_add_u32 v3, s15, v3")
    k.i("v_and_b32 v4, 15, v2")
    k.i("v_lshlrev_b32 v4, 4, v4")
    k.i("v_lshl_add_u32 v5, v3, 6, s12")
    k.i("v_mul_u32_u24 v5, 450, v5")
    k.i("s_mul_i32 s15, s14, 240"); k.i("s_lshl_b32 s48, s13, 1"); k.i("s_sub_u32 s15, s15, s48")
    k.i("v_add_u32 v5, s15, v5")
    k.i("v_add_u32 v5, v5, v4")
    k.i("v_mul_u32_u24 v6, %d, v3" % WROW)
    k.i("v_add_u32 v6, v6, v4")
    k.i("s_lshr_b32 s48, s3, 1"); k.i("s_lshl_b32 s48, s48, 4")
    k.i("v_add_u32 v6, s48, v6")
    k.i("s_mov_b32 s48, %d" % (4 * 64 * 450))
    k.i("s_waitcnt lgkmcnt(0)")
    stamp(k, 1)
    srd(k, 52, P_WR, 921600)
    srd(k, 56, P_WI, 921600)
    for i in range(2):
        so = "0" if i == 0 else "s48"
        k.i("buffer_load_dwordx4 %s, v5, s[52:55], %s offen" % (v(8 + 4 * i, 4), so))
        k.i("buffer_load_dwordx4 %s, v5, s[56:59], %s offen" % (v(16 + 4 * i, 4), so))
    ws_srd(k, 8, WS_WT, 64 * SW2)
    k.i("s_mov_b32 s67, 224")
    k.i("v_lshrrev_b32 v41, 4, v2")
    k.i("v_bfe_u32 v42, v2, 2, 2")
    k.i("v_lshl_add_u32 v42, v41, 2, v42")
    k.i("v_bfe_u32 v43, v2, 1, 1")
    k.i("v_lshl_add_u32 v42, v43, 4, v42")
    k.i("v_mul_u32_u24 v42, %d, v42" % WROW)
    k.i("v_lshl_add_u32 v42, v43, 4, v42")
    k.i("v_and_b32 v43, 1, v2")
    k.i("v_lshl_add_u32 v42, v43, 3, v42")
    k.i("s_lshl_b32 s63, s3, 4")
    k.i("v_add_u32 v42, s63, v42")
    k.i("v_and_b32 v40, 15, v2")
    k.i("s_mul_i32 s63, s14, 120"); k.i("s_lshl_b32 s62, s3, 3"); k.i("s_add_u32 s63, s63, s62"); k.i("s_sub_u32 s63, s63, s13")
    k.i("v_and_b32 v43, 7, v40")
    k.i("v_add_u32 v43, s63, v43")
    k.i("s_mul_i32 s63, s12, %d" % SW2)
    k.i("v_lshl_add_u32 v45, v41, 4, s63")
    k.i("v_lshrrev_b32 v46, 3, v40")
    k.i("v_lshl_add_u32 v45, v46, 6, v45")
    k.i("v_lshl_add_u32 v44, v43, 7, v45")
    k.i("v_mov_b32 v47, 0x7ffffff0")
    k.i("s_sub_u32 s62, 119, s13")
    k.i("s_cmp_eq_u32 s14, 0"); k.i("s_cselect_b32 s66, s62, s67")
    k.i("s_mov_b32 s64, 0x05040100"); k.i("s_mov_b32 s65, 0x07060302")
    k.i("s_waitcnt vmcnt(0)")
    stamp(k, 3)
    for i in range(2):
        k.i("ds_write_b128 v6, %s offset:%d" % (v(8 + 4 * i, 4), 4 * WROW * i))
        k.i("ds_write_b128 v6, %s offset:%d" % (v(16 + 4 * i, 4), WARR + 4 * WROW * i))
    k.i("s_waitcnt lgkmcnt(0)")
    k.i("s_barrier")
    stamp(k, 4)
    blk = Block()
    for it in range(4):
        RB = 8 + 4 * it
        blk.i("ds_read_b64_tr_b16 %s, v42 offset:%d" % (v(RB, 2), 64 * it))
        blk.i("ds_read_b64_tr_b16 %s, v42 offset:%d" % (v(RB + 2, 2), WARR + 64 * it))
    for it in range(4):
        R, I, d = 8 + 4 * it, 8 + 4 * it + 2, 48 + 4 * it
        blk.i("v_perm_b32 v%d, v%d, v%d, s64" % (d, I, R))
        blk.i("v_perm_b32 v%d, v%d, v%d, s65" % (d + 1, I, R))
        blk.i("v_perm_b32 v%d, v%d, v%d, s64" % (d + 2, I + 1, R + 1))
        blk.i("v_perm_b32 v%d, v%d, v%d, s65" % (d + 3, I + 1, R + 1))
        a0 = 100 + it
        blk.i("v_add_u32 v%d, %d, v43" % (108 + (it & 1), 32 * it))
        blk.i("v_cmp_le_u32 s[%d:%d], v%d, s66" % (68 + 2 * (it & 1), 69 + 2 * (it & 1), 108 + (it & 1)))
        blk.i("v_add_u32 v%d, %d, v44" % (a0, 128 * 32 * it))
        blk.i("v_cndmask_b32 v%d, v47, v%d, s[%d:%d]" % (a0, a0, 68 + 2 * (it & 1), 69 + 2 * (it & 1)))
        blk.i("buffer_store_dwordx4 %s, v%d, s[8:11], 0 offen%s" % (v(d, 4), a0, stf("WT", " sc1")))
    blk.emit(k)
    stamp(k, 5)
    endpgm(k, 0)

def gen_k1(k, name):
    kernel_header(k, name)
    diag_begin(k)
    load_kernargs(k)
    if PREFETCH:
        k.i("s_cmp_lt_u32 s2, %d" % PREFETCH)
        k.i("s_cbranch_scc0 L_k1_nopf")
        code_prefetch(k, 120, "L_k1_pc")
        k.label("L_k1_nopf")
    lab = {"k": "L_k1_kgen", "r": "L_k1_row", "w": "L_k1_w"}
    for c in ORDER:
        k.i("s_cmp_lt_u32 s2, %d" % (OFF[c] + _sz[c]))
        k.i("s_cbranch_scc1 %s" % lab[c])
    k.i("s_endpgm")
    k.label("L_k1_kgen"); role_kgen(k)
    k.label("L_k1_row"); role_row(k)
    k.label("L_k1_w"); role_w(k)
```

```python
from common import *

import os
from sched import Block
K2_NC, K2_NF = 224, 225
K2_GRID = K2_NC + K2_NF
COLFIRST = int(os.environ.get('COLFIRST', '1'))
NCOLP = 225 if COLFIRST else 0
if COLFIRST: K2_GRID = NCOLP + K2_NC
GUARD = 128
CSTR = 2112
UOFF = 4 * CSTR
UPAD = 1088
CHL = UOFF + UPAD + 4096 + 64
K2_LDS_USED = GUARD + 2 * CHL
K2_LDS = 56320
K2_VGPR = 168
FUSE23 = int(os.environ.get('FUSE23', '0'))
B4 = lambda e: 592 + 48 * (e - 1)
B8 = lambda e: 800 + 80 * (e - 1)
TILES = {0: (0, 1, 6, 7), 1: (2, 3, 4, 5)}

def conv_main(k, h):
    ACC, H, VR, M1, M2, M3, M5, M6, MC, KF, AS = 16, 32, 104, 120, 124, 128, 132, 136, 140, 144, 160
    aH, aK, aV = 50, 51, 52
    aH, aK, aV = 10, 11, 12
    tiles = TILES[h]
    acc = {t: ACC + 4 * i for i, t in enumerate(tiles)}
    b = Block()
    first = set()
    def mf(t, A, B):
        c = acc[t] if t in first else "0"
        first.add(t)
        b.i("v_mfma_f32_16x16x32_bf16 %s, %s, %s, %s" % (v(acc[t], 4), v(A, 4), v(B, 4), v(c, 4) if c != "0" else "0"))
    uses = {}
    for t in tiles:
        for q in range(18):
            if q > 8 * t + 8: continue
            uses.setdefault(256 * t - 32 * q, []).append((t, q))
    hloaded = set(); nring = 0
    for x0 in sorted(uses, reverse=True):
        for (t, q) in uses[x0]:
            if q not in hloaded:
                hloaded.add(q)
                b.i("ds_read_b64 %s, v%d offset:%d" % (v(H + 4 * q, 2), aH, 1112 - 64 * q))
                b.i("ds_read_b64 %s, v%d offset:%d" % (v(H + 4 * q + 2, 2), aH, 1112 - 64 * q + 8))
        vr = VR + 4 * (nring & 3); nring += 1
        b.i("ds_read_b128 %s, v%d offset:%d" % (v(vr, 4), aV, UPAD + 2 * x0))
        for (t, q) in uses[x0]: mf(t, H + 4 * q, vr)
    PH, BX, PP = 32, 48, 96
    need4 = {tp: [t for t in tiles if t - tp in (2, 3, 4)] for tp in range(6)}
    need8 = {tp: [t for t in tiles if t - tp in (4, 5, 6, 7)] for tp in range(6)}
    corr = {tp: [t for t in tiles if t - tp == 4] for tp in range(6)}
    nbuf = 0; nk = 0
    for tp in range(6):
        if not (need4[tp] or need8[tp]): continue
        pa, pb = PH + 8 * (nbuf & 1), PH + 8 * (nbuf & 1) + 4
        bx, pp = BX + 24 * (nbuf & 1), PP + 12 * (nbuf & 1); nbuf += 1
        b.i("ds_read_b128 %s, v%d offset:%d" % (v(pa, 4), aV, UPAD + 512 * tp - 32))
        b.i("ds_read_b128 %s, v%d offset:%d" % (v(pb, 4), aV, UPAD + 512 * tp - 48))
        boxes = []
        if need4[tp]: boxes += [(0, pa, M1, pp), (1, pa, M2, pp + 2), (2, pa, M3, pp + 4), (3, pb, M2, pp + 6)]
        if need8[tp]: boxes += [(4, pa, M5, pp + 8), (5, pb, M6, pp + 10)]
        for (n, ph, m, dst) in boxes:
            b.i("v_mfma_f32_16x16x32_bf16 %s, %s, %s, 0" % (v(bx + 4 * n, 4), v(ph, 4), v(m, 4)))
        for (n, ph, m, dst) in boxes:
            b.i("v_cvt_pk_bf16_f32 v%d, v%d, v%d" % (dst, bx + 4 * n, bx + 4 * n + 1))
            b.i("v_cvt_pk_bf16_f32 v%d, v%d, v%d" % (dst + 1, bx + 4 * n + 2, bx + 4 * n + 3))
        for t in corr[tp]: mf(t, AS, pa)
        def kfrag(off0, off1):
            nonlocal nk
            kf = KF + 4 * (nk & 3); nk += 1
            b.i("ds_read_b64 %s, v%d offset:%d" % (v(kf, 2), aK, off0))
            b.i("ds_read_b64 %s, v%d offset:%d" % (v(kf + 2, 2), aK, off1))
            return kf
        for t in need4[tp]:
            D = t - tp
            for (e0, op) in ((1, pp), (3, pp + 4)):
                kf = kfrag(2 * (B4(e0) + 76 - 16 * D), 2 * (B4(e0 + 1) + 76 - 16 * D))
                mf(t, op, kf)
        for t in need8[tp]:
            D = t - tp
            kf = kfrag(2 * (B8(1) + 124 - 16 * D), 2 * (B8(2) + 124 - 16 * D))
            mf(t, pp + 8, kf)
    if os.environ.get('CONV_NODS'): b.ins = [x for x in b.ins if x.cls != 'ds']
    if os.environ.get('CONV_NOMFMA'): b.ins = [x for x in b.ins if x.cls != 'mfma']
    est = b.emit(k)
    k.c("scheduled estimate: %d cycles" % est)
    return acc

def role_end(k):
    if FUSE23: k.i("s_branch L_k2_next")
    else: endpgm(k, 1)

def conv_epilogue(k, h):
    tiles = TILES[h]; ACC = 16
    b = Block()
    for i, t in enumerate(tiles):
        b.i("ds_read_b64 %s, v13 offset:%d" % (v(56 + 2 * i, 2), UPAD + 512 * t))
    for i, t in enumerate(tiles):
        a = ACC + 4 * i; uu = 56 + 2 * i; x = 64 + 4 * i; o = 80 + 2 * i
        b.i("v_lshlrev_b32 v%d, 16, v%d" % (x, uu)); b.i("v_and_b32 v%d, 0xffff0000, v%d" % (x + 1, uu))
        b.i("v_lshlrev_b32 v%d, 16, v%d" % (x + 2, uu + 1)); b.i("v_and_b32 v%d, 0xffff0000, v%d" % (x + 3, uu + 1))
        b.i("v_pk_fma_f32 %s, %s, s[56:57], %s" % (v(a, 2), v(x, 2), v(a, 2)))
        b.i("v_pk_fma_f32 %s, %s, s[56:57], %s" % (v(a + 2, 2), v(x + 2, 2), v(a + 2, 2)))
        b.i("v_cvt_pk_bf16_f32 v%d, v%d, v%d" % (o, a, a + 1)); b.i("v_cvt_pk_bf16_f32 v%d, v%d, v%d" % (o + 1, a + 2, a + 3))
        if i & 1:
            b.i("v_permlane16_swap_b32 v%d, v%d" % (o - 2, o))
            b.i("v_permlane16_swap_b32 v%d, v%d" % (o - 1, o + 1))
            b.i("buffer_store_dwordx4 %s, v14, s[8:11], 0 offen offset:%d%s" % (v(o - 2, 4), 512 * tiles[i - 1], stf("AT", " sc1")))
    b.emit(k)

def role_conv(k):
    if int(os.environ.get("PRIO_CONV", "0")): k.i("s_setprio %s" % os.environ["PRIO_CONV"])
    k.i("v_lshrrev_b32 v1, 6, v0")
    k.i("v_and_b32 v2, 63, v0")
    k.i("v_readfirstlane_b32 s3, v1")
    if COLFIRST: k.i("s_sub_u32 s2, s2, %d" % NCOLP)
    k.i("s_and_b32 s48, s2, 7"); k.i("s_lshl_b32 s48, s48, 1")
    k.i("s_bfe_u32 s49, s2, 0x10003"); k.i("s_add_u32 s48, s48, s49")
    k.i("s_and_b32 s49, s2, 0xf0"); k.i("s_add_u32 s48, s48, s49")
    k.i("s_lshl_b32 s15, s48, 2")
    k.i("s_lshr_b32 s12, s3, 1")
    k.i("s_and_b32 s13, s3, 1")
    k.i("s_lshl_b32 s14, s48, 1")
    k.i("s_add_u32 s14, s14, s12")
    k.i("s_lshl_b32 s48, s13, 6")
    k.i("v_add_u32 v3, s48, v2")
    k.i("s_mul_i32 s49, s14, %d" % KSTR)
    k.i("s_add_u32 s49, s49, 0x%x" % WS_KR)
    k.i("v_lshl_add_u32 v4, v3, 4, s49")
    k.i("s_lshl_b32 s50, s14, 5")
    k.i("s_add_u32 s50, s50, 0x%x" % WS_UT)
    k.i("v_lshrrev_b32 v5, 1, v3")
    k.i("v_mul_u32_u24 v5, %d, v5" % SUT)
    k.i("v_and_b32 v6, 1, v3")
    k.i("v_lshl_add_u32 v5, v6, 4, v5")
    k.i("v_add_u32 v5, s50, v5")
    k.i("s_mov_b32 s50, %d" % (64 * SUT))
    k.i("s_waitcnt lgkmcnt(0)")
    stamp(k, 1)
    ws_srd(k)
    k.i("s_load_dword s51, %s, s15" % sp(P_DSKIP))
    for e in range(3):
        k.i("buffer_load_dwordx4 %s, v4, s[8:11], 0 offen offset:%d" % (v(16 + 4 * e, 4), 4 * e))
    k.i("buffer_load_dwordx4 v[40:43], v5, s[8:11], 0 offen")
    k.i("buffer_load_dwordx4 v[44:47], v5, s[8:11], s50 offen")
    k.i("s_mul_i32 s52, s12, %d" % CHL)
    k.i("s_add_u32 s52, s52, %d" % GUARD)
    k.i("s_add_u32 s53, s52, %d" % UOFF)
    k.i("v_lshl_add_u32 v6, v3, 4, s52")
    k.i("v_lshl_add_u32 v7, v3, 4, s53")
    for j in range(4): k.i("v_mov_b32 v%d, 0" % (32 + j))
    k.i("v_cmp_gt_u32 vcc, %d, v3" % (UPAD // 16))
    k.i("s_and_saveexec_b64 s[60:61], vcc")
    k.i("ds_write_b128 v7, v[32:35]")
    k.i("v_cmp_gt_u32 vcc, 4, v3")
    k.i("s_and_b64 exec, exec, vcc")
    k.i("s_cbranch_execz L_cv_nopad")
    k.i("ds_write_b128 v7, v[32:35] offset:%d" % (UPAD + 4096))
    k.label("L_cv_nopad")
    k.i("s_mov_b64 exec, s[60:61]")
    k.i("v_and_b32 v48, 15, v2")
    k.i("v_lshrrev_b32 v49, 4, v2")
    k.i("v_and_b32 v50, 3, v48")
    k.i("v_lshrrev_b32 v51, 2, v48")
    k.i("v_mul_u32_u24 v50, %d, v50" % CSTR)
    k.i("v_lshlrev_b32 v51, 3, v51")
    k.i("v_sub_u32 v50, v50, v51")
    k.i("v_add_u32 v50, s52, v50")
    k.i("v_lshl_add_u32 v10, v49, 4, v50")
    k.i("v_lshl_add_u32 v11, v49, 3, v50")
    k.i("v_lshlrev_b32 v51, 5, v48")
    k.i("v_add_u32 v51, s53, v51")
    k.i("v_lshl_add_u32 v12, v49, 4, v51")
    k.i("v_lshl_add_u32 v13, v49, 3, v51")
    k.i("v_lshlrev_b32 v14, 5, v48")
    k.i("v_lshrrev_b32 v53, 1, v49")
    k.i("v_lshl_add_u32 v14, v53, 4, v14")
    k.i("v_and_b32 v53, 1, v49")
    k.i("v_lshl_add_u32 v14, v53, 9, v14")
    k.i("s_mul_i32 s59, s14, %d" % SAT)
    k.i("s_add_u32 s59, s59, 0x%x" % WS_AT)
    k.i("v_add_u32 v14, s59, v14")
    k.i("v_lshlrev_b32 v52, 3, v49")
    k.i("v_sub_u32 v52, v52, v48")
    k.i("s_mov_b32 s54, 0x8001"); k.i("s_mov_b32 s55, 0x10001")
    for (reg, lo, hi, val) in ((120, 11, 13, 0x3f80), (124, 6, 10, 0x3f80), (128, 3, 5, 0x3f80), (132, 5, 11, 0x3f80), (136, 4, 12, 0x3f80), (140, 12, 13, 0xffff)):
        n = hi - lo + 1
        k.i("v_add_u32 v53, %d, v52" % (20 - lo))
        k.i("v_med3_i32 v53, v53, 0, 31")
        k.i("s_mov_b32 s56, 0x%x" % (((1 << n) - 1) << 20))
        k.i("v_lshrrev_b32_e64 v53, v53, s56")
        for p in range(4):
            k.i("v_bfe_u32 v54, v53, %d, 2" % (2 * p))
            k.i("v_mul_u32_u24 v54, 0x8001, v54")
            k.i("v_and_b32 v54, s55, v54")
            k.i("v_mul_u32_u24 v%d, 0x%x, v54" % (reg + p, val))
    k.i("s_waitcnt vmcnt(2)")
    stamp(k, 2)
    L0, L1, LX = 16, 20, 24
    k.i("ds_write_b128 v6, %s offset:%d" % (v(L0, 4), 3 * CSTR))
    k.i("ds_write_b128 v6, %s offset:%d" % (v(L1, 4), 1 * CSTR))
    for j in range(4): k.i("v_alignbit_b32 v%d, v%d, v%d, 16" % (28 + j, L1 + j, L0 + j))
    for j in range(4): k.i("v_alignbit_b32 v%d, v%d, v%d, 16" % (36 + j, LX + j, L1 + j))
    k.i("ds_write_b128 v6, v[28:31] offset:%d" % (2 * CSTR))
    k.i("ds_write_b128 v6, v[36:39] offset:%d" % (0 * CSTR))
    k.i("s_waitcnt vmcnt(0)")
    k.i("ds_write_b128 v7, v[40:43] offset:%d" % UPAD)
    k.i("ds_write_b128 v7, v[44:47] offset:%d" % (UPAD + 2048))
    k.i("s_lshl_b32 s58, s12, 4")
    k.i("v_mov_b32 v53, s52")
    k.i("s_waitcnt lgkmcnt(0)")
    k.i("s_lshr_b32 s51, s51, s58")
    k.i("s_lshl_b32 s56, s51, 16")
    k.i("s_mov_b32 s57, s56")
    k.i("s_barrier")
    stamp(k, 3)
    k.i("ds_read_u16 v54, v53 offset:%d" % (3 * CSTR + 2 * 752))
    k.i("s_waitcnt lgkmcnt(0)")
    k.i("v_lshl_or_b32 v54, v54, 16, v54")
    for p in range(4): k.i("v_and_b32 v%d, v54, v%d" % (160 + p, 140 + p))
    k.i("s_cmp_eq_u32 s13, 0")
    k.i("s_cbranch_scc0 L_cv_h1")
    conv_main(k, 0)
    stamp(k, 5)
    conv_epilogue(k, 0)
    role_end(k)
    k.label("L_cv_h1")
    conv_main(k, 1)
    stamp(k, 5)
    conv_epilogue(k, 1)
    role_end(k)

INB, EXB = 0, 9216

def fi(x):
    return {0: "0", 1: "1.0", 2: "2.0", 4: "4.0"}.get(x, f32(x))

def role_col(k):
    BR, BI, AR, AI, TC, TS, DA, ACR, ACI, P, WW = 16, 32, 48, 64, 80, 88, 96, 128, 136, 144, 152
    PLAIN = int(os.environ.get("COL_PLAIN", "1"))
    TW = twiddle4s if PLAIN else twiddle4
    if int(os.environ.get("PRIO_COL", "0")): k.i("s_setprio %s" % os.environ.get("PRIO_COL", "0"))
    k.i("v_lshrrev_b32 v1, 6, v0")
    k.i("v_and_b32 v2, 63, v0")
    k.i("v_readfirstlane_b32 s3, v1")
    k.i("s_sub_u32 s48, s2, %d" % (0 if COLFIRST else K2_NC))
    k.i("s_and_b32 s12, s48, 7"); k.i("s_lshl_b32 s12, s12, 1")
    k.i("s_bfe_u32 s49, s48, 0x10003"); k.i("s_add_u32 s12, s12, s49")
    k.i("s_and_b32 s49, s48, 0xf0"); k.i("s_add_u32 s12, s12, s49")
    k.i("s_lshr_b32 s13, s12, 4"); k.i("s_add_u32 s13, s13, 1")
    k.i("s_and_b32 s14, s12, 15")
    k.i("s_cmp_ge_u32 s12, 208")
    k.i("s_cselect_b32 s13, 14, s13")
    k.i("s_sub_u32 s48, s12, 216")
    k.i("s_cmp_ge_u32 s12, 216")
    k.i("s_cselect_b32 s13, 0, s13"); k.i("s_cselect_b32 s14, s48, s14")
    k.i("s_lshl_b32 s15, s13, 4"); k.i("s_add_u32 s15, s15, s14")
    k.i("s_mul_i32 s48, s14, 28"); k.i("s_add_u32 s48, s48, s13")
    k.i("s_sub_u32 s49, 448, s48")
    k.i("s_cmp_gt_u32 s48, 224")
    k.i("s_cselect_b32 s50, 1, 0")
    k.i("s_cselect_b32 s49, s49, s48")
    k.i("s_lshl_b32 s51, s15, 6")
    k.i("s_add_u32 s51, s51, 0x%x" % WS_X1)
    k.i("v_lshrrev_b32 v3, 2, v0")
    k.i("v_mul_u32_u24 v3, %d, v3" % SX1)
    k.i("v_and_b32 v4, 3, v0")
    k.i("v_lshl_add_u32 v3, v4, 4, v3")
    k.i("v_add_u32 v3, s51, v3")
    k.i("v_and_b32 v4, 15, v2")
    k.i("v_lshrrev_b32 v5, 4, v2")
    k.i("s_lshl_b32 s52, s3, 4")
    k.i("v_add_u32 v6, s52, v4")
    k.i("v_lshlrev_b32 v7, 2, v5")
    k.i("v_sub_u32 v9, 64, v6"); k.i("v_and_b32 v9, 63, v9")
    k.i("v_sub_u32 v8, 12, v7")
    k.i("v_cmp_eq_u32 vcc, 0, v6")
    k.i("v_addc_co_u32 v8, vcc, 0, v8, vcc")
    k.i("s_cmp_eq_u32 s50, 1")
    k.i("s_cselect_b64 vcc, -1, 0")
    k.i("v_cndmask_b32 v9, v6, v9, vcc")
    k.i("v_cndmask_b32 v8, v7, v8, vcc")
    k.i("v_mul_u32_u24 v9, %d, v9" % SW2)
    k.i("v_lshl_add_u32 v8, v8, 2, v9")
    k.i("s_lshl_b32 s53, s49, 7")
    k.i("s_add_u32 s53, s53, 0x%x" % WS_WT)
    k.i("v_add_u32 v8, s53, v8")
    k.i("s_waitcnt lgkmcnt(0)")
    stamp(k, 1)
    ws_srd(k)
    k.i("buffer_load_dwordx4 %s, v3, s[8:11], 0 offen" % v(DA, 4))
    k.i("s_mov_b32 s54, %d" % (64 * SX1))
    k.i("buffer_load_dwordx4 %s, v3, s[8:11], s54 offen" % v(DA + 4, 4))
    LATEW = int(os.environ.get("LATEW", "1"))
    def wloads():
        k.i("buffer_load_dwordx4 %s, v8, s[8:11], 0 offen" % v(WW, 4))
        k.i("buffer_load_dwordx4 %s, v8, s[8:11], 0 offen offset:64" % v(WW + 4, 4))
    if not LATEW: wloads()
    k.i("s_load_dword s55, %s, s53" % sp(P_WS))
    sc2 = 2.0 / (2048 * 448); sc1 = 1.0 / (2048 * 448)
    k.i("s_mov_b32 s56, %s" % f32(sc2))
    k.i("s_cmp_eq_u32 s48, 0"); k.i("s_cselect_b32 s56, %s, s56" % f32(sc1))
    k.i("s_cmp_eq_u32 s48, 224"); k.i("s_cselect_b32 s56, %s, s56" % f32(sc1))
    k.i("s_mov_b32 s57, s56")
    k.i("s_lshl_b32 s58, s50, 31"); k.i("s_xor_b32 s58, s58, s56"); k.i("s_mov_b32 s59, s58")
    k.i("v_and_b32 v9, 7, v0")
    k.i("v_lshlrev_b32 v9, 2, v9")
    k.i("v_lshrrev_b32 v10, 3, v0")
    k.i("v_xor_b32 v10, v10, v9")
    k.i("v_lshlrev_b32 v10, 2, v10")
    k.i("v_mul_u32_u24 v9, 288, v9")
    k.i("v_add_u32 v9, v9, v10")
    k.i("v_lshrrev_b32 v10, 2, v4")
    k.i("v_xor_b32 v10, v10, v5")
    k.i("v_lshlrev_b32 v10, 4, v10")
    k.i("v_mul_u32_u24 v11, 288, v4")
    k.i("v_add_u32 v10, v10, v11")
    k.i("v_xor_b32 v11, v4, v7")
    k.i("v_lshlrev_b32 v11, 2, v11")
    k.i("v_mul_u32_u24 v12, 288, v7")
    k.i("v_add_u32 v11, v11, v12")
    k.i("s_lshl_b32 s60, s3, 6"); k.i("s_add_u32 s60, s60, %d" % EXB)
    k.i("s_xor_b32 s61, s3, 1"); k.i("s_lshl_b32 s61, s61, 6"); k.i("s_add_u32 s61, s61, %d" % (EXB + 4608))
    k.i("v_add_u32 v12, s61, v11")
    k.i("v_add_u32 v11, s60, v11")
    k.i("v_and_b32 v13, 7, v4")
    k.i("v_add_u32 v13, s52, v13")
    k.i("v_lshlrev_b32 v13, 7, v13")
    k.i("v_lshrrev_b32 v14, 3, v4")
    k.i("v_lshl_add_u32 v13, v14, 6, v13")
    k.i("v_lshl_add_u32 v13, v5, 4, v13")
    k.i("s_mul_i32 s62, s15, %d" % SZ); k.i("s_add_u32 s62, s62, 0x%x" % WS_Z)
    k.i("v_add_u32 v13, s62, v13")
    k.i("v_cvt_f32_u32 v14, v6")
    k.i("v_cvt_f32_u32 v15, v7")
    t0, t1, t2, t3 = 160, 161, 162, 163
    k.i("v_mul_f32 v%d, %s, v14" % (t3, f32(-1.0 / 64)))
    for q in range(2):
        for i in range(4):
            k.i("v_add_f32 v%d, %s, v15" % (t0, fi(16 * q + i)))
            k.i("v_mul_f32 v%d, v%d, v%d" % (t0, t0, t3))
            k.i("v_cos_f32 v%d, v%d" % (t1, t0)); k.i("v_sin_f32 v%d, v%d" % (t2, t0))
            cvtpk(k, BR + 4 * q + i, t1, t2, neg_hi=True)
            cvtpk(k, BI + 4 * q + i, t2, t1)
    k.i("v_and_b32 v%d, 1, v4" % t0)
    k.i("v_mul_u32_u24 v%d, 0x8000, v%d" % (t0, t0))
    k.i("v_lshl_or_b32 v164, v%d, 16, v%d" % (t0, t0))
    for j in range(8):
        k.i("v_xor_b32 v%d, v164, v%d" % (BR + 8 + j, BR + j))
        k.i("v_xor_b32 v%d, v164, v%d" % (BI + 8 + j, BI + j))
    k.i("v_cvt_f32_u32 v%d, v4" % t3)
    k.i("v_mul_f32 v%d, %s, v%d" % (t3, f32(-1.0 / 32), t3))
    for j in range(4):
        k.i("v_add_f32 v%d, %s, v15" % (t0, fi(j)))
        k.i("v_mul_f32 v%d, v%d, v%d" % (t0, t0, t3))
        k.i("v_cos_f32 v%d, v%d" % (t1, t0)); k.i("v_sin_f32 v%d, v%d" % (t2, t0))
        cvtpk(k, AR + j, t1, t2, neg_hi=True)
        cvtpk(k, AI + j, t2, t1)
    k.i("s_mov_b32 s63, 0x80008000")
    for X in (AR, AI):
        for j in range(4):
            k.i("v_xor_b32 v%d, v164, v%d" % (X + 4 + j, X + j))
        for Tk in range(2):
            for j in range(4):
                src = X + 4 * Tk + j
                if j & 1: k.i("v_xor_b32 v%d, s63, v%d" % (X + 8 + 4 * Tk + j, src))
                else: k.i("v_mov_b32 v%d, v%d" % (X + 8 + 4 * Tk + j, src))
    k.i("v_mul_f32 v%d, %s, v14" % (t3, f32(-1.0 / 2048)))
    for T in range(2):
        for j in range(4):
            k.i("v_add_f32 v%d, %s, v15" % (t0, fi(16 * T + j)))
            k.i("v_mul_f32 v%d, v%d, v%d" % (t0, t0, t3))
            k.i("v_cos_f32 v%d, v%d" % (TC + 4 * T + j, t0)); k.i("v_sin_f32 v%d, v%d" % (TS + 4 * T + j, t0))
    stamp(k, 2)
    stamp(k, 2)
    k.i("s_waitcnt vmcnt(%d)" % (0 if LATEW else 2))
    stamp(k, 3)
    if LATEW: wloads()
    for i in range(2):
        for e in range(4):
            k.i("ds_write_b32 v9, v%d offset:%d" % (DA + 4 * i + e, INB + 128 * i + 288 * e))
    k.i("s_waitcnt lgkmcnt(0)")
    k.i("s_barrier")
    if os.environ.get("PRIO_COL2"): k.i("s_setprio %s" % os.environ["PRIO_COL2"])
    stamp(k, 4)
    blk = Block()
    class W_:
        def i(self, t): blk.i(t)
    w = W_()
    def big_stage(region):
        for T in range(2):
            for q in range(4):
                w.i("ds_read_b128 %s, v10 offset:%d" % (v(DA + 16 * T + 4 * q, 4), region + 4608 * T + 64 * (q ^ T)))
        for q in range(4):
            for T in range(2):
                a = DA + 16 * T + 4 * q
                mfma(w, ACR + 4 * T, a, BR + 4 * q, "0" if q == 0 else ACR + 4 * T)
                mfma(w, ACI + 4 * T, a, BI + 4 * q, "0" if q == 0 else ACI + 4 * T)
    def small_stage(outr, outi):
        for Tk in range(2):
            for To in range(2):
                mfma(w, outr + 4 * To, AR + 4 * (2 * To + Tk), P + 4 * Tk, "0" if Tk == 0 else outr + 4 * To)
                mfma(w, outi + 4 * To, AI + 4 * (2 * To + Tk), P + 4 * Tk, "0" if Tk == 0 else outi + 4 * To)
    tmps = [(160, 162), (164 + 0, 166)]
    WR, WI = 0, 0
    big_stage(INB)
    for T in range(2):
        TW(w, ACR + 4 * T, ACI + 4 * T, TC + 4 * T, TS + 4 * T, *tmps[T])
        for j in range(4): cvtpk(w, P + 4 * T + j, ACR + 4 * T + j, ACI + 4 * T + j)
    XR, XI = DA, DA + 8
    WR, WI = DA + 16, DA + 24
    small_stage(XR, XI)
    est = blk.emit(k); k.c("col block 1a estimate %d" % est)
    k.i("s_waitcnt vmcnt(0)")
    k.i("s_cmp_eq_u32 s50, 0")
    k.i("s_cbranch_scc1 L_col_norev")
    for j in range(4): k.i("v_swap_b32 v%d, v%d" % (WW + j, WW + 7 - j))
    k.i("s_cmp_eq_u32 s3, 0")
    k.i("s_cbranch_scc0 L_col_norev")
    k.i("v_writelane_b32 v%d, s55, 0" % WW)
    k.label("L_col_norev")
    stamp(k, 5)
    blk = Block()
    for j in range(8):
        w.i("v_lshlrev_b32 v%d, 16, v%d" % (WR + j, WW + j))
        w.i("v_and_b32 v%d, 0xffff0000, v%d" % (WI + j, WW + j))
    if PLAIN:
        for j in range(8):
            w.i("v_mul_f32 v%d, s56, v%d" % (WR + j, WR + j))
            w.i("v_mul_f32 v%d, s58, v%d" % (WI + j, WI + j))
    else:
        for j in range(0, 8, 2):
            w.i("v_pk_mul_f32 %s, %s, s[56:57]" % (v(WR + j, 2), v(WR + j, 2)))
            w.i("v_pk_mul_f32 %s, %s, s[58:59]" % (v(WI + j, 2), v(WI + j, 2)))
    for T in range(2):
        TW(w, XR + 4 * T, XI + 4 * T, WR + 4 * T, WI + 4 * T, *tmps[T])
        for j in range(4): cvtpk(w, P + 4 * T + j, XI + 4 * T + j, XR + 4 * T + j)
    small_stage(ACR, ACI)
    for T in range(2):
        TW(w, ACR + 4 * T, ACI + 4 * T, TC + 4 * T, TS + 4 * T, *tmps[T])
        for j in range(4): cvtpk(w, P + 4 * T + j, ACR + 4 * T + j, ACI + 4 * T + j)
    for T in range(2):
        for j in range(4):
            w.i("ds_write_b32 v%d, v%d offset:%d" % (11 + T, P + 4 * T + j, 288 * j))
    est = blk.emit(k); k.c("col block 1 estimate %d" % est)
    k.i("s_waitcnt lgkmcnt(0)")
    k.i("s_barrier")
    if os.environ.get("PRIO_COL3"): k.i("s_setprio %s" % os.environ["PRIO_COL3"])
    stamp(k, 6)
    blk = Block()
    big_stage(EXB)
    for T in range(2):
        for j in range(4): cvtpk(w, P + 4 * T + j, ACI + 4 * T + j, ACR + 4 * T + j)
    for j in range(4):
        w.i("v_mov_b32 v%d, v%d" % (WW + j, P + j))
        w.i("v_mov_b32_dpp v%d, v%d row_ror:8 row_mask:0xf bank_mask:0xc" % (P + j, P + 4 + j))
        w.i("v_mov_b32_dpp v%d, v%d row_ror:8 row_mask:0xf bank_mask:0x3" % (P + 4 + j, WW + j))
    for T in range(2):
        w.i("buffer_store_dwordx4 %s, v13, s[8:11], 0 offen offset:%d%s" % (v(P + 4 * T, 4), 1024 * T, stf("Z", " sc1")))
    est = blk.emit(k); k.c("col block 2 estimate %d" % est)
    role_end(k)

def gen_k2(k, name):
    kernel_header(k, name)
    diag_begin(k)
    load_kernargs(k)
    if COLFIRST:
        k.i("s_cmp_lt_u32 s2, %d" % K2_NF)
        k.i("s_cbranch_scc1 L_k2_col")
        k.i("s_cmp_lt_u32 s2, %d" % K2_GRID)
        k.i("s_cbranch_scc1 L_k2_conv")
    else:
        k.i("s_cmp_lt_u32 s2, %d" % K2_NC)
        k.i("s_cbranch_scc1 L_k2_conv")
        k.i("s_cmp_lt_u32 s2, %d" % K2_GRID)
        k.i("s_cbranch_scc1 L_k2_col")
    k.i("s_endpgm")
    k.label("L_k2_conv"); role_conv(k)
    k.label("L_k2_col"); role_col(k)
    if FUSE23:
        import k3
        k.label("L_k2_next")
        k.i("s_mov_b64 exec, -1")
        k.i("s_cmp_lt_u32 s2, %d" % k3.K3_GRID)
        k.i("s_cbranch_scc1 L_k2_rows")
        grid_arrive(k, "L_arr_x")
        endpgm(k, 1)
        k.label("L_k2_rows")
        k3.k3_body(k, K2_GRID)
```

```python
from common import *
from sched import Block

K3_GRID = 256
K3_BLOCK = 512
ZRS = 1040
ZI = 0
A1 = 8 * ZRS
K3_LDS_USED = A1 + 28 * 272 + 1024
K3_LDS = 83200
K3_VGPR = 88

def fi(x):
    return {0: "0", 1: "1.0", 2: "2.0", 4: "4.0"}.get(x, f32(x))

def gen_k3(k, name):
    kernel_header(k, name)
    diag_begin(k)
    load_kernargs(k)
    k.i("s_cmp_lt_u32 s2, %d" % K3_GRID)
    k.i("s_cbranch_scc1 L_k3_go")
    k.i("s_endpgm")
    k.label("L_k3_go")
    k3_body(k, False)

def k3_body(k, fused):
    k.i("v_lshrrev_b32 v1, 6, v0")
    k.i("v_and_b32 v2, 63, v0")
    k.i("v_readfirstlane_b32 s3, v1")
    k.i("s_and_b32 s4, s2, 7"); k.i("s_lshl_b32 s4, s4, 5"); k.i("s_lshr_b32 s5, s2, 3"); k.i("s_add_u32 s4, s4, s5")
    k.i("s_lshl_b32 s4, s4, 3")
    k.i("s_lshl_b32 s12, s4, 2"); k.i("s_add_u32 s12, s12, 0x%x" % WS_Z)
    k.i("v_lshrrev_b32 v3, 1, v0"); k.i("v_mul_u32_u24 v3, %d, v3" % SZ)
    k.i("v_and_b32 v4, 1, v0"); k.i("v_lshl_add_u32 v3, v4, 4, v3")
    k.i("v_add_u32 v3, s12, v3")
    k.i("s_lshl_b32 s13, s4, 1"); k.i("s_add_u32 s13, s13, 0x%x" % WS_AT)
    k.i("v_mul_u32_u24 v5, %d, v0" % SAT)
    k.i("v_add_u32 v5, s13, v5")
    k.i("v_lshrrev_b32 v6, 5, v0")
    k.i("v_bfe_u32 v7, v0, 1, 4")
    k.i("v_mov_b32 v8, 0x7ffffff0")
    k.i("v_mov_b32 v9, 16")
    k.i("v_cmp_eq_u32 vcc, 0, v6"); k.i("v_cndmask_b32_e64 v9, v9, 9, vcc")
    k.i("v_cmp_eq_u32 vcc, 14, v6"); k.i("v_cndmask_b32_e64 v9, v9, 8, vcc")
    k.i("v_cmp_eq_u32 vcc, 15, v6"); k.i("v_cndmask_b32_e64 v9, v9, 0, vcc")
    k.i("v_cmp_gt_u32 vcc, v9, v7"); k.i("v_cndmask_b32 v10, v8, v3, vcc")
    k.i("v_cmp_gt_u32 vcc, 448, v0"); k.i("v_cndmask_b32 v12, v8, v5, vcc")
    k.i("s_add_u32 s48, s4, s3")
    k.i("s_lshl_b32 s50, s48, 2"); k.i("s_add_u32 s50, s50, 0x%x" % WS_G)
    ZL, AL = 16, 24
    k.i("s_waitcnt lgkmcnt(0)")
    stamp(k, 1)
    ws_srd(k)
    k.i("s_load_dword s60, %s, s50" % sp(P_WS))
    k.i("buffer_load_dwordx4 %s, v10, s[8:11], 0 offen" % v(ZL, 4))
    k.i("buffer_load_dwordx4 %s, v12, s[8:11], 0 offen" % v(AL, 4))
    srd(k, 56, P_OUT, 2048 * 896)
    k.i("v_mul_u32_u24 v9, %d, v4" % (4 * ZRS))
    k.i("v_lshrrev_b32 v13, 2, v6"); k.i("v_and_b32 v13, 1, v13"); k.i("v_lshlrev_b32 v13, 3, v13")
    k.i("v_xor_b32 v13, v13, v7")
    k.i("v_lshl_add_u32 v13, v6, 4, v13")
    k.i("v_lshl_add_u32 v13, v13, 2, v9")
    k.i("v_lshrrev_b32 v14, 4, v0")
    k.i("v_add_u32 v14, v14, v0")
    k.i("v_lshlrev_b32 v14, 4, v14")
    k.i("v_add_u32 v14, %d, v14" % A1)
    k.i("v_and_b32 v15, 15, v2")
    k.i("v_lshrrev_b32 v32, 4, v2")
    k.i("v_lshrrev_b32 v33, 2, v15"); k.i("v_and_b32 v33, 1, v33"); k.i("v_lshlrev_b32 v33, 1, v33")
    k.i("v_xor_b32 v33, v33, v32")
    k.i("v_lshlrev_b32 v33, 4, v33")
    k.i("v_lshl_add_u32 v33, v15, 6, v33")
    k.i("s_mul_i32 s54, s3, %d" % ZRS)
    k.i("v_add_u32 v33, s54, v33")
    k.i("v_mul_u32_u24 v34, 272, v15")
    k.i("v_lshl_add_u32 v34, v32, 6, v34")
    k.i("s_lshl_b32 s54, s3, 1"); k.i("s_add_u32 s54, s54, %d" % A1)
    k.i("v_add_u32 v34, s54, v34")
    k.i("v_lshrrev_b32 v35, 1, v32")
    k.i("v_lshlrev_b32 v35, 4, v35")
    k.i("v_lshl_add_u32 v35, v15, 5, v35")
    k.i("v_and_b32 v36, 1, v32")
    k.i("v_lshl_add_u32 v35, v36, 9, v35")
    k.i("s_mul_i32 s54, s48, 896")
    k.i("v_add_u32 v35, s54, v35")
    GR, GI, TC, TS, H0, H1 = 36, 40, 44, 48, 52, 56
    t0, t1, t2, t3 = 60, 61, 62, 63
    k.i("v_cvt_f32_u32 v64, v15")
    k.i("v_lshlrev_b32 v65, 2, v32"); k.i("v_cvt_f32_u32 v65, v65")
    k.i("v_mul_f32 v%d, %s, v64" % (t3, f32(1.0 / 16)))
    for j in range(4):
        k.i("v_add_f32 v%d, %s, v65" % (t0, fi(j))); k.i("v_mul_f32 v%d, v%d, v%d" % (t0, t0, t3))
        k.i("v_cos_f32 v%d, v%d" % (t1, t0)); k.i("v_sin_f32 v%d, v%d" % (t2, t0))
        cvtpk(k, GR + j, t1, t2, neg_hi=True); cvtpk(k, GI + j, t2, t1)
    k.i("v_mul_f32 v%d, %s, v64" % (t3, f32(1.0 / 448)))
    for j in range(4):
        k.i("v_add_f32 v%d, %s, v65" % (t0, fi(j))); k.i("v_mul_f32 v%d, v%d, v%d" % (t0, t0, t3))
        k.i("v_cos_f32 v%d, v%d" % (TC + j, t0)); k.i("v_sin_f32 v%d, v%d" % (TS + j, t0))
    for tile, H in ((0, H0), (1, H1)):
        k.i("v_add_f32 v%d, %s, v64" % (t3, fi(16 * tile)))
        k.i("v_mul_f32 v%d, %s, v%d" % (t3, f32(1.0 / 28), t3))
        for j in range(4):
            k.i("v_add_f32 v%d, %s, v65" % (t0, fi(j))); k.i("v_mul_f32 v%d, v%d, v%d" % (t0, t0, t3))
            k.i("v_cos_f32 v%d, v%d" % (t1, t0)); k.i("v_sin_f32 v%d, v%d" % (t2, t0))
            cvtpk(k, H + j, t1, t2, neg_hi=True)
    k.i("v_cmp_gt_u32 vcc, 3, v32")
    k.i("v_cndmask_b32 v%d, 0, v%d, vcc" % (H0 + 3, H0 + 3))
    k.i("v_cndmask_b32 v%d, 0, v%d, vcc" % (H1 + 3, H1 + 3))
    stamp(k, 2)
    k.i("s_waitcnt vmcnt(1) lgkmcnt(0)")
    stamp(k, 3)
    k.i("s_mov_b32 s64, s60"); k.i("s_mov_b32 s65, s60")
    for e in range(4):
        k.i("ds_write_b32 v13, v%d offset:%d" % (ZL + e, ZI + ZRS * e))
    k.i("s_waitcnt lgkmcnt(0)")
    k.i("s_barrier")
    stamp(k, 4)
    blk = Block()
    class W_:
        def i(self, t): blk.i(t)
    w = W_()
    ZA, AV, DR, DI = 16, 68, 76, 80
    w.i("ds_read_b128 %s, v33" % v(ZA, 4))
    mfma(w, DR, ZA, GR, "0")
    mfma(w, DI, ZA, GI, "0")
    twiddle4(w, DR, DI, TC, TS, 60, 62)
    for j in range(4): cvtpk(w, ZA + j, DR + j, DI + j)
    mfma(w, DR, ZA, H0, "0")
    mfma(w, DI, ZA, H1, "0")
    blk.emit(k)
    k.i("s_waitcnt vmcnt(0)")
    k.i("s_cmp_lt_u32 s3, 7")
    k.i("s_cbranch_scc0 L_k3_noa")
    k.i("ds_write_b128 v14, %s" % v(AL, 4))
    k.label("L_k3_noa")
    k.i("s_waitcnt lgkmcnt(0)")
    k.i("s_barrier")
    stamp(k, 5)
    blk = Block()
    for tile in range(2):
        for j in range(4):
            w.i("ds_read_u16 v%d, v34 offset:%d" % (AV + 4 * tile + j, 16 * 272 * tile + 16 * j))
    for tile in range(2):
        b = DR if tile == 0 else DI; a = AV + 4 * tile
        for j in range(4): w.i("v_lshlrev_b32 v%d, 16, v%d" % (a + j, a + j))
        w.i("v_pk_add_f32 %s, %s, %s neg_lo:[0,1] neg_hi:[0,1]" % (v(a, 2), v(a, 2), v(b, 2)))
        w.i("v_pk_add_f32 %s, %s, %s neg_lo:[0,1] neg_hi:[0,1]" % (v(a + 2, 2), v(a + 2, 2), v(b + 2, 2)))
        w.i("v_pk_fma_f32 %s, %s, s[64:65], %s" % (v(a, 2), v(a, 2), v(b, 2)))
        w.i("v_pk_fma_f32 %s, %s, s[64:65], %s" % (v(a + 2, 2), v(a + 2, 2), v(b + 2, 2)))
        o = 4 + 2 * tile
        cvtpk(w, o, a, a + 1); cvtpk(w, o + 1, a + 2, a + 3)
    w.i("v_permlane16_swap_b32 v4, v6")
    w.i("v_permlane16_swap_b32 v5, v7")
    est = blk.emit(k); k.c("k3 estimate %d" % est)
    k.i("s_mov_b32 exec_lo, 0x0fffffff"); k.i("s_mov_b32 exec_hi, 0x0fffffff")
    k.i("buffer_store_dwordx4 v[4:7], v35, s[56:59], 0 offen%s" % stf("OUT", " sc1"))
    endpgm(k, 2)
```

```python
from asmlib import Ins, isv

def cost(ins):
    mn = ins.mn
    if ins.cls == "mfma": return 4.0
    if ins.cls == "ds":
        if "b128" in mn: return 13.0 if "write" in mn else 9.5
        if "write" in mn: return 7.0 if "addtid" in mn else (9.0 if "b32" in mn else 10.0)
        return 8.0
    if ins.cls == "vmem": return 10.0
    if ins.cls == "valu": return 8.5 if ins.trans else 4.6
    return 2.0

def latency(p, c):
    if p.cls == "mfma":
        if c.cls == "mfma" and p.dst == c.srcC and not (p.dst & c.ab): return 16.0 * (p.passes // 4)
        return 16.0 * (p.passes // 4) + 30.0
    if p.cls == "ds": return 128.0
    if p.cls == "vmem": return 800.0
    if p.cls == "valu":
        base = cost(p)
        if c.cls == "mfma": return base + 8.0
        if p.trans: return base + 4.0
        return base
    return 4.0

import os
WAIT_MERGE = float(os.environ.get('WAIT_MERGE', '1e9'))

class Block:
    def __init__(self, lds_lat=None):
        self.ins = []
        self.extra = []
    def i(self, text):
        self.ins.append(Ins(text)); return len(self.ins) - 1
    def order(self, a, b): self.extra.append((a, b))
    def emit(self, k, pre_ds=0, pre_vm=0, max_ds=14, drain=False):
        N = len(self.ins); I = self.ins
        preds = [dict() for _ in range(N)]
        lastw, readers = {}, {}
        last_dsw, ds_since_w, last_st, last_salu_scc = None, [], None, None
        for n, c in enumerate(I):
            for r in c.r:
                if r in lastw:
                    p = lastw[r]; preds[n][p] = max(preds[n].get(p, 0), latency(I[p], c))
            for r in c.w:
                if r in lastw:
                    p = lastw[r]
                    if not (I[p].cls == "mfma" and c.cls == "mfma" and I[p].dst == c.srcC):
                        preds[n][p] = max(preds[n].get(p, 0), latency(I[p], c) if I[p].cls in ("mfma", "ds", "vmem") else 1.0)
                for p in readers.get(r, []):
                    if p != n: preds[n][p] = max(preds[n].get(p, 0), 12.0 if (I[p].cls == "mfma" and r in I[p].srcC and c.cls == "valu") else 1.0)
            for r in c.r: readers.setdefault(r, []).append(n)
            for r in c.w: lastw[r] = n; readers[r] = []
            if c.cls == "ds":
                isw = "write" in c.mn
                if last_dsw is not None: preds[n][last_dsw] = max(preds[n].get(last_dsw, 0), 1.0)
                if isw:
                    for p in ds_since_w: preds[n][p] = max(preds[n].get(p, 0), 1.0)
                    last_dsw = n; ds_since_w = []
                else: ds_since_w.append(n)
            if c.cls == "vmem" and "store" in c.mn:
                if last_st is not None: preds[n][last_st] = max(preds[n].get(last_st, 0), 1.0)
                last_st = n
            if c.cls == "salu":
                if last_salu_scc is not None: preds[n][last_salu_scc] = max(preds[n].get(last_salu_scc, 0), 1.0)
                last_salu_scc = n
        for a, b in self.extra: preds[b][a] = max(preds[b].get(a, 0), 1.0)
        succ = [[] for _ in range(N)]
        for n in range(N):
            for p in preds[n]: succ[p].append(n)
        prio = [0.0] * N
        for n in range(N - 1, -1, -1):
            base = 16.0 if I[n].cls == "mfma" else cost(I[n])
            prio[n] = base + max([preds[sx][n] - base + prio[sx] if preds[sx][n] > base else prio[sx] for sx in succ[n]], default=0.0)
        issue = [None] * N
        npred = [len(preds[n]) for n in range(N)]
        ready = [n for n in range(N) if npred[n] == 0]
        t, mf_free = 0.0, 0.0
        dsq, vmq = [], []
        ds_done, vm_done = 0, 0
        loads_w = {}
        order = []
        while ready:
            best, bk = None, None
            for n in ready:
                c = I[n]
                rt = t
                for p, l in preds[n].items(): rt = max(rt, issue[p] + l)
                if c.cls == "mfma": rt = max(rt, mf_free)
                if c.cls == "ds" and len(dsq) + pre_ds - ds_done >= max_ds:
                    rt = max(rt, t + 64.0)
                key = (round(rt / 4.0), -prio[n], n)
                if bk is None or key < bk: best, bk = n, key
            n = best; c = I[n]
            rt = t
            for p, l in preds[n].items(): rt = max(rt, issue[p] + l)
            if c.cls == "mfma": rt = max(rt, mf_free)
            wd = wv = None
            for p in preds[n]:
                P = I[p]
                if (P.w & (c.r | c.w)):
                    if P.cls == "ds":
                        pos = dsq.index(p)
                        if pos >= ds_done: wd = pos if wd is None else max(wd, pos)
                    elif P.cls == "vmem":
                        pos = vmq.index(p)
                        if pos >= vm_done: wv = pos if wv is None else max(wv, pos)
            if c.cls == "ds" and len(dsq) - ds_done >= max_ds:
                pos = len(dsq) - max_ds
                wd = pos if wd is None else max(wd, pos)
            parts = []
            if wv is not None:
                parts.append("vmcnt(%d)" % min(63, len(vmq) - 1 - wv)); vm_done = wv + 1
            if wd is not None:
                while wd + 1 < len(dsq) and issue[dsq[wd + 1]] + WAIT_MERGE <= rt: wd += 1
                a = min(15, len(dsq) - 1 - wd); parts.append("lgkmcnt(%d)" % a); ds_done = len(dsq) - a
            if parts: k.i("s_waitcnt " + " ".join(parts))
            k.i(c.text)
            issue[n] = rt
            t = rt + cost(c)
            if c.cls == "mfma": mf_free = rt + 16.0 * (c.passes // 4)
            if c.cls == "ds": dsq.append(n)
            if c.cls == "vmem": vmq.append(n)
            ready.remove(n); order.append(n)
            for sx in succ[n]:
                npred[sx] -= 1
                if npred[sx] == 0: ready.append(sx)
        assert len(order) == N
        if drain and len(dsq) > ds_done: k.i("s_waitcnt lgkmcnt(0)")
        return t
```
